```python
import torch

def _softmax(x, axis=-1):
    return torch.softmax(x, dim=axis)

def _gelu(x):
    return torch.nn.functional.gelu(x, approximate='tanh')

def _silu(x):
    return torch.nn.functional.silu(x)

def _sigmoid(x):
    return torch.sigmoid(x)

def _layernorm(x, axis=-1, eps=1e-05):
    m = x.mean(dim=axis, keepdim=True)
    v = x.var(dim=axis, keepdim=True, unbiased=False)
    return (x - m) / torch.sqrt(v + eps)

def _scatter_add(tgt, idx, src, axis=0):
    return tgt.clone().index_add_(axis, idx, src)

def _segment_sum(src, seg, n):
    out = torch.zeros((n,) + src.shape[1:], dtype=src.dtype)
    return out.index_add_(0, seg, src)

def _pad(x, pw):
    flat = tuple((v for pair in reversed(pw) for v in pair))
    return torch.nn.functional.pad(x, flat)
kernel_name = 'gated_mix__memory_aug_recurrent_mem_tr__ssm_conv_s4d__prompt'

def setup_inputs():

    _w = lambda a: (lambda t: t.to(torch.bfloat16) if t.is_floating_point() else t)(torch.as_tensor(a))

    def _A_setup():
        B, S, Dm = (1, 2048, 576)
        H, Dh = (32, 128)
        M, seg = (8, 32)
        seg = min(seg, S)
        S = S // seg * seg
        return {'x': _w((lambda *s: torch.randn(*s, dtype=torch.bfloat16) * 0.05)(B, S, Dm)), 'mem0': _w((lambda *s: torch.randn(*s, dtype=torch.bfloat16) * 0.4)(B, M, Dm)), 'Wq': _w((lambda *s: torch.randn(*s, dtype=torch.bfloat16) * 6.4)(Dm, H, Dh) * Dm ** (-0.5)), 'Wk': _w((lambda *s: torch.randn(*s, dtype=torch.bfloat16) * 6.4)(Dm, H, Dh) * Dm ** (-0.5)), 'Wv': _w((lambda *s: torch.randn(*s, dtype=torch.bfloat16) * 0.4)(Dm, H, Dh) * Dm ** (-0.5)), 'Wo': _w((lambda *s: torch.randn(*s, dtype=torch.bfloat16) * 0.4)(H, Dh, Dm) * (H * Dh) ** (-0.5)), 'seg_len': seg}
    _A_in = _A_setup()

    def _B_setup():
        Bsz, L, D, N = (1, 2048, 576, 128)
        return {'u': _w((lambda *s: torch.randn(*s, dtype=torch.bfloat16) * 0.05)(Bsz, L, D)), 'log_A_real': _w((lambda *s: torch.randn(*s, dtype=torch.bfloat16) * 6.4)(D, N) * 0.5), 'A_imag': _w((lambda *s: torch.randn(*s, dtype=torch.bfloat16) * 0.05)(D, N) * 3.14), 'C_real': _w((lambda *s: torch.randn(*s, dtype=torch.bfloat16) * 0.2)(D, N) / N ** 0.5), 'C_imag': _w((lambda *s: torch.randn(*s, dtype=torch.bfloat16) * 0.2)(D, N) / N ** 0.5), 'log_dt': _w((lambda *s: torch.randn(*s, dtype=torch.bfloat16) * 0.05)(D) * 0.5 - 4.0), 'D_skip': _w((lambda *s: torch.randn(*s, dtype=torch.bfloat16) * 0.05)(D))}
    _B_in = _B_setup()
    return {'A_x': _A_in['x'], 'A_mem0': _A_in['mem0'], 'A_Wq': _A_in['Wq'], 'A_Wk': _A_in['Wk'], 'A_Wv': _A_in['Wv'], 'A_Wo': _A_in['Wo'], 'A_seg_len': _A_in['seg_len'], 'B_u': _B_in['u'], 'B_log_A_real': _B_in['log_A_real'], 'B_A_imag': _B_in['A_imag'], 'B_C_real': _B_in['C_real'], 'B_C_imag': _B_in['C_imag'], 'B_log_dt': _B_in['log_dt'], 'B_D_skip': _B_in['D_skip'], 'gate_w': _w((lambda *s: torch.randn(*s, dtype=torch.bfloat16) * 0.05)(576) * 16.0)}

def reference(A_x, A_mem0, A_Wq, A_Wk, A_Wv, A_Wo, A_seg_len, B_u, B_log_A_real, B_A_imag, B_C_real, B_C_imag, B_log_dt, B_D_skip, gate_w):

    def _A_ref(x, mem0, Wq, Wk, Wv, Wo, seg_len):
        B, S, Dm = x.shape
        H, Dh = (Wq.shape[1], Wq.shape[2])
        M = mem0.shape[1]
        scale = Dh ** (-0.5)
        n_seg = S // seg_len
        L = M + seg_len
        idx = torch.arange(L)
        mask = (idx[:, None] < M) | (idx[:, None] >= idx[None, :])
        mem = mem0
        outs = []
        for s in range(n_seg):
            xs = x[:, s * seg_len:(s + 1) * seg_len, :].clone()
            h = torch.concatenate([mem, xs], axis=1)
            q = torch.einsum('btd,dhe->bhte', h, Wq)
            k = torch.einsum('btd,dhe->bhte', h, Wk)
            v = torch.einsum('btd,dhe->bhte', h, Wv)
            scores = torch.einsum('bhqe,bhke->bhqk', q, k) * scale
            scores = torch.where(mask[None, None], scores, -1000000000.0)
            p = _softmax(scores, axis=-1)
            o = torch.einsum('bhqk,bhke->bhqe', p, v)
            o = torch.einsum('bhte,hed->btd', o, Wo)
            mem = o[:, :M, :].clone()
            outs.append(o[:, M:, :])
        return torch.concatenate(outs, axis=1)

    def _B_ref(u, log_A_real, A_imag, C_real, C_imag, log_dt, D_skip):
        L = u.shape[1]
        dt = torch.exp(log_dt)
        A = -torch.exp(log_A_real) + 1j * A_imag
        C = (C_real + 1j * C_imag) * dt[:, None]
        pos = (lambda x, dt: x.to(dt))(torch.arange(L), log_dt.dtype)
        P = torch.exp((A * dt[:, None])[:, :, None] * pos[None, None, :])
        K = 2.0 * torch.einsum('dn,dnl->dl', C, P).real
        L2 = 2 * L
        u_t = (lambda x, *d: x.permute(*d))(u, 0, 2, 1)
        Kf = (lambda x, *a, **k: torch.fft.rfft(x.float(), *a, **k))(K, L2)
        Uf = (lambda x, *a, **k: torch.fft.rfft(x.float(), *a, **k))(u_t, L2)
        y = (lambda x, *a, **k: torch.fft.irfft(x, *a, **k).to(torch.bfloat16))(Uf * Kf[None, :, :], L2)[:, :, :L]
        y = (lambda x, *d: x.permute(*d))(y, 0, 2, 1)
        return y + u * D_skip[None, None, :]
    x = A_x
    g = _sigmoid((x * gate_w).sum(-1, keepdims=True))
    a = _A_ref(x, A_mem0, A_Wq, A_Wk, A_Wv, A_Wo, A_seg_len)
    b = _B_ref(x, B_log_A_real, B_A_imag, B_C_real, B_C_imag, B_log_dt, B_D_skip)
    return g * a + (1 - g) * b
```

```python
import re
REG = re.compile(r'^(v|a|s)(\d+)$|^(v|a|s)\[(\d+):(\d+)\]$')
def regs(tok):
    tok = tok.strip()
    if tok.startswith('-'): tok = tok[1:]
    if tok.startswith('|'): tok = tok.strip('|')
    m = REG.match(tok)
    if m:
        if m.group(1): return [(m.group(1), int(m.group(2)))]
        return [(m.group(3), i) for i in range(int(m.group(4)), int(m.group(5))+1)]
    if tok == 'vcc': return [('s', 106), ('s', 107)]
    if tok == 'exec': return [('s', 126), ('s', 127)]
    if tok == 'm0': return [('s', 124)]
    return []
TRANS = ('v_exp_', 'v_log_', 'v_rcp_', 'v_rsq_', 'v_sqrt_', 'v_sin_', 'v_cos_')
class I:
    def __init__(self, text):
        self.text = text; t = text.split(';')[0].strip()
        self.label = t.endswith(':'); self.dirv = t.startswith('.') or t.startswith('@')
        self.op = t.split()[0] if t else ''
        rest = t[len(self.op):].strip()
        ops = [x.strip() for x in rest.split(',')] if rest else []
        self.mods = ''
        if ops:
            p = ops[-1].split(None, 1);
            m = re.search(r'\s(op_sel|op_sel_hi|neg_lo|neg_hi|quad_perm|row_|offset|offen|sc0|sc1|nt|lds|glc|cbsz|abid|blgp|dst_sel|src0_sel|clamp|mul:|div:)', rest)
            if m: self.mods = rest[m.start():]; rest2 = rest[:m.start()]; ops = [x.strip() for x in rest2.split(',')]
        self.ops = ops; op = self.op
        self.mfma = op.startswith('v_mfma') or op.startswith('v_smfmac')
        self.valu = op.startswith('v_') and not self.mfma
        self.ds = op.startswith('ds_'); self.vmem = op.startswith('buffer_') or op.startswith('global_')
        self.smem = op.startswith('s_load') or op.startswith('s_mem') or op.startswith('s_atomic') or op.startswith('s_buffer_load')
        self.salu = op.startswith('s_') and not self.smem
        self.branch = op.startswith('s_cbranch') or op == 's_branch'
        self.dpp = 'quad_perm' in self.mods or 'row_' in self.mods
        self.trans = op.startswith(TRANS)
        R = [regs(o) for o in ops]; flat = lambda x: [r for y in x for r in y]
        self.w = []; self.r = []; self.C = []; self.AB = []; self.passes = 0; self.sdata = []
        if self.mfma:
            self.w = R[0]; self.AB = R[1] + R[2]
            if op.startswith('v_smfmac'): self.C = R[0]; self.AB += R[3]
            else: self.C = R[3]
            self.r = self.AB + self.C
            self.passes = 8 if '32x32' in op else 4
            if op.endswith('_f32') and 'x4_f32' in op: self.passes = 8
        elif self.valu:
            if 'swap' in op: self.w = R[0]+R[1]; self.r = R[0]+R[1]
            elif op.startswith('v_cmp'): self.w = R[0]; self.r = flat(R[1:])
            elif op in ('v_add_co_u32','v_sub_co_u32','v_addc_co_u32','v_subb_co_u32'): self.w = R[0]+R[1]; self.r = flat(R[2:])
            else:
                self.w = R[0]; self.r = flat(R[1:])
                if op.startswith('v_fmac') or op.startswith('v_pk_fmac') or op.startswith('v_dot2c') or self.dpp or op.startswith('v_writelane') or 'dst_sel' in self.mods: self.r = self.r + R[0]
        elif self.ds:
            if op.startswith('ds_read') or op.startswith('ds_bpermute') or op.startswith('ds_permute') or op.startswith('ds_swizzle') or '_rtn' in op: self.w = R[0]; self.r = flat(R[1:])
            else: self.r = flat(R)
            if 'addtid' in op: self.r = self.r + [('s',124)]
        elif self.vmem:
            lds = ' lds' in (' '+self.mods) or '_lds_' in op
            if lds: self.r = flat(R) + [('s',124)]
            elif '_load' in op or ('atomic' in op and 'sc0' in self.mods and op.startswith('global')): self.w = R[0]; self.r = flat(R[1:])
            else:
                self.r = flat(R)
                if 'x3' in op or 'x4' in op: self.sdata = R[0] if op.startswith('buffer') else R[1]
            self.lds = lds
        elif self.smem:
            self.w = R[0]; self.r = flat(R[1:]) + (R[0] if 'atomic' in op else [])
        elif self.salu and ops:
            if op.startswith('s_cmp') or op.startswith('s_bitcmp') or self.branch or op in ('s_waitcnt','s_nop','s_sleep','s_setprio'): self.r = flat(R)
            else: self.w = R[0]; self.r = flat(R[1:])
            if 'saveexec' in op: self.w = self.w + [('s',126),('s',127)]
        self.ws = set(self.w); self.rs = set(self.r)
    def states(self):
        if self.label or self.dirv or not self.op: return 0
        if self.op == 's_nop': return int(self.ops[0], 0) + 1
        return 1

def need(p, c):
    n = 0
    vw = {r for r in p.ws if r[0] != 's'}; sw = {r for r in p.ws if r[0] == 's'}
    if p.valu:
        if c.mfma and vw & c.rs: n = max(n, 2)
        if c.valu and vw & c.rs:
            if c.dpp or c.op.startswith('v_permlane'): n = max(n, 2)
            if c.op.startswith('v_readlane') or c.op.startswith('v_readfirstlane'): n = max(n, 1)
            if p.trans: n = max(n, 1)
            if 'op_sel' in p.mods and not p.op.startswith('v_pk') or 'dst_sel' in p.mods: n = max(n, 1)
        if sw & c.rs:
            if c.vmem: n = max(n, 5)
            if c.valu: n = max(n, 4 if 'lane' in c.op else 2)
    if p.mfma:
        big = {4: 8, 8: 12}[p.passes]
        if c.mfma:
            if p.ws & set(c.AB): n = max(n, big)
            if p.ws & set(c.C) and not (p.w == c.C and p.passes == c.passes): n = max(n, big-2)
            if p.ws & c.ws and not (p.w == c.w): n = max(n, big)
        elif (c.valu or c.ds or c.vmem) and p.ws & (c.rs | c.ws): n = max(n, big)
        if c.valu and set(p.C) & c.ws: n = max(n, p.passes-1)
    if p.sdata and set(p.sdata) & c.ws: n = max(n, 2 if c.valu else 1)
    if p.salu and ('s',124) in p.ws and ('s',124) in c.rs and (c.vmem or c.ds): n = max(n, 1)
    return n

class Asm:
    def __init__(self): self.L = []; self.uid = 0
    def __call__(self, text):
        for ln in text.split('\n'):
            ln = ln.strip()
            if ln and not ln.startswith(';'): self.L.append(I(ln))
    def lab(self, p='L'):
        self.uid += 1; return f'{p}_{self.uid}'
    def waits(self):
        L = self.L; ins = {}
        def walk(lo, hi, vm, lg):
            i = lo
            while i < hi:
                c = L[i]
                if c.op == '@reset': vm.clear(); lg.clear()
                elif c.op == '@vmclear': vm.clear()
                elif c.op == '@loop':
                    j = next(k for k in range(i, hi) if L[k].op == '@end' and L[k].ops == c.ops)
                    walk(i+1, j, vm, lg); walk(i+1, j, vm, lg); i = j
                elif c.op == 's_waitcnt':
                    m = re.search(r'vmcnt\((\d+)\)', c.text)
                    if m: del vm[:max(0, len(vm)-int(m.group(1)))]
                    m = re.search(r'lgkmcnt\((\d+)\)', c.text)
                    if m:
                        n = int(m.group(1))
                        if n == 0 or not any(x[1] for x in lg): del lg[:max(0, len(lg)-n)]
                elif c.op and not c.label and not c.dirv:
                    touch = c.rs | c.ws
                    if c.op == 's_barrier': touch = {('L', 0)}
                    if ';!' in c.text: touch = set()
                    w = ins.setdefault(i, [None, None])
                    k = max([n for n, x in enumerate(vm) if x & touch], default=-1)
                    if k >= 0:
                        n = min(63, len(vm)-1-k); w[0] = n if w[0] is None else min(w[0], n)
                    k = max([n for n, x in enumerate(lg) if x[0] & touch], default=-1)
                    if k >= 0:
                        n = 0 if any(x[1] for x in lg) else min(15, len(lg)-1-k); w[1] = n if w[1] is None else min(w[1], n)
                    if w[0] is not None: del vm[:max(0, len(vm)-w[0])]
                    if w[1] is not None: del lg[:max(0, len(lg)-w[1])]
                    if c.vmem: vm.append(set(c.ws))
                    if c.ds: lg.append((set(c.ws) if c.ws else {('L', 0)}, False))
                    if c.smem and ';!' not in c.text: lg.append((set(c.ws), True))
                i += 1
        walk(0, len(L), [], [])
        out = []
        for i, c in enumerate(L):
            w = ins.get(i)
            if w and (w[0] is not None or w[1] is not None):
                s = 's_waitcnt' + (f' vmcnt({w[0]})' if w[0] is not None else '') + (f' lgkmcnt({w[1]})' if w[1] is not None else '')
                if c.mfma and len(out) >= 2 and out[-1].valu and not out[-2].valu and not out[-2].label:
                    out.insert(len(out)-1, I(s))
                elif c.mfma and len(out) >= 3 and out[-1].valu and out[-2].valu and out[-3].mfma:
                    out.insert(len(out)-2, I(s))
                else: out.append(I(s))
            out.append(c)
        self.L = out
    def hazards(self):
        L = self.L; labels = {c.op[:-1]: i for i, c in enumerate(L) if c.label}
        preds = {}
        for i, c in enumerate(L):
            if c.branch and c.ops and c.ops[0] in labels: preds.setdefault(labels[c.ops[0]], []).append(i)
        pad = [0]*len(L)
        def dist(path):
            t = 0; lastm = None; p = L[path[0]]
            if p.mfma: lastm = (0, p.passes)
            for k in path[1:]:
                c = L[k]; t += pad[k]
                if c.states() == 0: continue
                t += 1
                if c.mfma:
                    if lastm: t = max(t, lastm[0]+lastm[1])
                    lastm = (t, c.passes)
                if k != path[-1]: t += c.states()-1
            return t-1
        def back(i, path, depth, ci):
            if depth > 13: return
            prev = []
            if i > 0 and L[i-1].op not in ('s_branch', 's_endpgm'): prev.append(i-1)
            if L[i].label: prev += preds.get(i, [])
            for j in prev:
                p = L[j]; np_ = [j] + path
                if p.states():
                    n = need(p, L[ci])
                    if n:
                        while dist(np_) < n: pad[ci] += 1
                back(j, np_, depth + p.states() + pad[j], ci)
        for rep in range(2):
            for i, c in enumerate(L):
                if c.states() and (c.valu or c.mfma or c.ds or c.vmem): back(i, [i], 0, i)
        out = []
        for i, c in enumerate(L):
            n = pad[i]
            while n > 0:
                k = min(n, 16); out.append(I(f's_nop {k-1}')); n -= k
            out.append(c)
        self.L = out
    def text(self, auto=True):
        if auto: self.waits(); self.hazards()
        return '\n'.join(c.text if (c.label or c.dirv) else ' '+c.text.split(';')[0].strip() for c in self.L if not c.op.startswith('@'))
    def sim(self, l0, l1):
        t = 0; mf = -99; vb = 0; on = False; out = []
        for c in self.L:
            if c.label and c.op[:-1] == l0: on = True
            if c.label and c.op[:-1] == l1: break
            if not on or not c.states(): continue
            if c.mfma: t = max(t, mf, vb); mf = t + 4*c.passes; vb = t + (12 if 'smfmac' in c.op else 8)
            elif c.valu: t = max(t, vb); vb = t + (8 if (c.trans or 'permlane' in c.op) else 4)
            out.append((t, c.text)); t += 4*c.states()
        return out
def V(a, n=1): return f'v{a}' if n == 1 else f'v[{a}:{a+n-1}]'
def A(a, n=1): return f'a{a}' if n == 1 else f'a[{a}:{a+n-1}]'
def S(a, n=1): return f's{a}' if n == 1 else f's[{a}:{a+n-1}]'
def X(a, n=1):
    assert (a < 256) == (a+n-1 < 256)
    return V(a, n) if a < 256 else A(a-256, n)
```

```python
from asmlib import *
WS_PART = 0x0; PSLOT = 0x80000; PHEAD = 9344
WS_RING = 0x100000; RSLOT = 0x4000
WS_KV = 0x1000000
WS_Q = 0x3000000
WS_O = 0x4000000
WS_KM = 0x5000000
WS_B = 0x5900000
WS_G = 0x5C00000
WS_SIZE = 0x6000000
KA = dict(x=0, mem0=8, wq=16, wk=24, wv=32, wo=40, loga=64, aim=72, cr=80, ci=88, logdt=96, dsk=104, gate=112, out=120, dbg=128, ws=136)
SZ = dict(x=2359296, mem0=9216, wq=4718592, wk=4718592, wv=4718592, wo=4718592, loga=147456, aim=147456, cr=147456, ci=147456,
          logdt=1152, dsk=1152, gate=1152, out=2359296, dbg=256, ws=WS_SIZE)
def srds(a, lst):
    for n, r in lst: a(f's_load_dwordx2 s[{r}:{r+1}], s[0:1], {KA[n]}')
    for n, r in lst: a(f's_mov_b32 s{r+2}, {SZ[n]}\ns_mov_b32 s{r+3}, 0x20000')
    a('s_waitcnt lgkmcnt(0)')
def lane(a, d): a(f'v_mbcnt_lo_u32_b32 v{d}, -1, 0\nv_mbcnt_hi_u32_b32 v{d}, -1, v{d}')
def expr(a, d, src, terms, const=0, tmp=None, st=101):
    a(f'v_mov_b32 v{d}, {const}')
    for lo, wd, mul in terms:
        a(f'v_bfe_u32 v{tmp}, v{src}, {lo}, {wd}')
        if mul & (mul-1) == 0: a(f'v_lshl_add_u32 v{d}, v{tmp}, {mul.bit_length()-1}, v{d}')
        else: a(f's_mov_b32 s{st}, {mul}\nv_mad_u32_u24 v{d}, v{tmp}, s{st}, v{d}')
```

```python
from common import *
import struct
def f2u(x): return struct.unpack('<I', struct.pack('<f', x))[0]
WS, DBG, SX = 's[8:11]', 's[12:15]', 's[28:31]'
AQ, AK, AV, XF = 16, 32, 48, 64
NS = 30; RING = 36864
def cvt(d, s): return f'v_cvt_pk_bf16_f32 v{d}, v{s}, v{s+1}'
def bases(a):
    a(f'''s_lshl_b32 s54, s7, 5
s_add_u32 s54, s54, s6
s_lshl_b32 s37, s54, 14
s_add_u32 s37, s37, {WS_KV}
s_lshl_b32 s38, s54, 13
s_add_u32 s38, s38, {WS_Q}
s_lshl_b32 s39, s54, 12
s_add_u32 s39, s39, {WS_KM + 32*4096}
s_lshl_b32 s40, s7, 1
s_and_b32 s55, s4, 1
s_add_u32 s40, s40, s55
s_lshl_b32 s40, s40, 5
s_add_u32 s40, s40, s6
s_lshl_b32 s40, s40, 12
s_lshr_b32 s55, s4, 1
s_lshl_b32 s55, s55, 11
s_add_u32 s40, s40, s55
s_add_u32 s40, s40, {WS_O}
s_mov_b32 s36, 0''')
def nxt(a): a('s_add_u32 s37, s37, 0x200000\ns_add_u32 s38, s38, 0x100000\ns_add_u32 s39, s39, 0x80000\ns_add_u32 s40, s40, 0x100000\ns_add_u32 s36, s36, 1')
def xdma(n): return [f's_add_u32 m0, s42, {n*2048}', f's_add_u32 s54, s41, {n*64}', f'buffer_load_dwordx4 v2, {SX}, s54 offen lds']
def gen(opt):
    a = Asm(); a.uid = 1000
    a('ATT:')
    if opt.get('prof'): a('s_memtime s[68:69]')
    srds(a, [('ws',8),('dbg',12),('wq',16),('wk',20),('wv',24),('x',28)])
    a('s_sub_u32 s54, s5, 1\ns_lshl_b32 s54, s54, 5\ns_add_u32 s57, s54, s3\ns_lshr_b32 s6, s57, 2\ns_and_b32 s7, s57, 3\ns_lshl_b32 s59, s6, 7\ns_add_u32 s59, s59, s7\ns_add_u32 s59, s59, %d' % WS_FLAG)
    lane(a, 8)
    expr(a, 2, 8, [(0,2,16)], 0, 9); expr(a, 3, 8, [(4,2,16)], 0, 9); a('v_xor_b32 v2, v2, v3'); expr(a, 2, 8, [(2,4,1152)], 'v2', 9)
    a('''s_and_b32 s54, s4, 1
s_lshr_b32 s55, s4, 1
s_mul_i32 s41, s54, 18432
s_mul_i32 s56, s55, 576
s_add_u32 s41, s41, s56
s_mul_i32 s56, s7, 36864
s_add_u32 s41, s41, s56
s_lshl_b32 s42, s54, 10
s_mul_i32 s56, s55, 18432
s_add_u32 s42, s42, s56''')
    for n in range(9): a('\n'.join(xdma(n)))
    a('s_add_u32 s41, s41, 147456\ns_xor_b32 s42, s42, 0x10000')
    a(f's_lshl_b32 s54, s6, 8\ns_lshl_b32 s55, s4, 6\ns_add_u32 s54, s54, s55\ns_mul_i32 s43, s4, {NS*1024}\ns_add_u32 s43, s43, {RING}')
    expr(a, 0, 8, [(2,4,8192),(0,2,16)], 's54', 9)
    expr(a, 1, 8, [(5,1,512),(2,2,64),(4,1,32),(0,2,8)], 's43', 9)
    order = [(m, ks) for m in (1, 2, 0) for ks in range(36)]
    wreg = lambda m, ks: 80 + 4*(36*m + ks)
    def wdma(i):
        m, ks = order[i]
        a(f's_add_u32 m0, s43, {(i%NS)*1024}\ns_mov_b32 s54, {ks*131072}\nbuffer_load_dwordx4 v0, s[{16+4*m}:{19+4*m}], s54 offen lds')
    for i in range(NS): wdma(i)
    bases(a)
    expr(a, 3, 8, [(5,1,16)], 0, 9); expr(a, 4, 8, [(2,2,16)], 0, 9); a('v_xor_b32 v3, v3, v4'); expr(a, 3, 8, [(0,5,64)], 'v3', 9); a('v_xor_b32 v4, 32, v3')
    a('s_lshr_b32 s54, s4, 1\ns_and_b32 s55, s4, 1\ns_lshl_b32 s56, s54, 10\ns_lshl_b32 s58, s55, 7\ns_add_u32 s56, s56, s58')
    expr(a, 5, 8, [(0,1,16),(1,1,4096),(2,1,32),(3,1,8192),(4,1,64),(5,1,256)], 's56', 9)
    a('s_lshl_b32 s56, s54, 13\ns_lshl_b32 s58, s55, 10\ns_add_u32 s56, s56, s58\ns_add_u32 s56, s56, 2048')
    expr(a, 6, 8, [(0,3,16),(3,1,4096),(4,1,128),(5,1,256)], 's56', 9)
    a('v_lshlrev_b32 v7, 4, v8\ns_lshl_b32 s54, s4, 11\nv_add_u32 v10, s54, v7\ns_lshl_b32 s54, s4, 10\nv_add_u32 v11, s54, v7')
    a('v_mov_b64 v[12:13], -1\nv_mov_b64 v[14:15], -1')
    G = 6
    for i0 in range(0, 108, G):
        a(f's_waitcnt vmcnt({min(NS, 108-i0) - G})')
        for i in range(i0, i0+G):
            r = wreg(*order[i])
            for j in range(2): a(f'ds_read_b64_tr_b16 {X(r+2*j,2)}, v1 offset:{(i%NS)*1024 + 256*j}')
        a('s_waitcnt lgkmcnt(0)')
        for i in range(i0+NS, min(108, i0+NS+G)): wdma(i)
    a('s_barrier')
    if opt.get('prof'): a('s_memtime s[70:71]')
    xr = lambda ks: f'ds_read_b128 {V(XF+4*(ks%4),4)}, v{3+(ks&1)} offset:{(ks>>1)*2048}'
    a('@loop A1\nATT1:')
    for ks in range(3): a(xr(ks))
    for ks in range(36):
        x = V(XF+4*(ks%4), 4); c = lambda r: '0' if ks == 0 else V(r, 16)
        a(f'v_mfma_f32_32x32x16_bf16 {V(AK,16)}, {X(wreg(1,ks),4)}, {x}, {c(AK)}')
        if ks+3 < 36: a(xr(ks+3))
        if ks == 12: a(f's_waitcnt vmcnt(0)\ns_barrier ;!\nv_mov_b32 v9, s36\ns_cmp_eq_u32 s4, 0\ns_cbranch_scc0 ATTNF\nbuffer_store_byte v9, off, {WS}, s59 sc1\ns_cmp_eq_u32 s36, 1\ns_cbranch_scc0 ATTNF\nbuffer_store_byte v9, off, {DBG}, s57 sc1\nATTNF:')
        a(f'v_mfma_f32_32x32x16_bf16 {V(AV,16)}, {x}, {X(wreg(2,ks),4)}, {c(AV)}')
        if 13 <= ks < 22: a('\n'.join(xdma(ks-13)))
        a(f'v_mfma_f32_32x32x16_bf16 {V(AQ,16)}, {X(wreg(0,ks),4)}, {x}, {c(AQ)}')
    a('v_xor_b32 v3, 0x10000, v3\nv_xor_b32 v4, 0x10000, v4\ns_add_u32 s41, s41, 147456\ns_min_u32 s41, s41, 2341440\ns_xor_b32 s42, s42, 0x10000\ns_waitcnt vmcnt(0)\ns_barrier')
    a(f'buffer_store_dwordx4 v[12:15], v11, {WS}, s39 offen sc1\nbuffer_store_dwordx4 v[12:15], v7, {WS}, s40 offen sc1\nbuffer_store_dwordx4 v[12:15], v7, {WS}, s40 offen offset:1024 sc1')
    for r, ad, sb, st in ((AK, 5, 37, 512), (AV, 6, 37, 512), (AQ, 10, 38, 1024)):
        for U in range(2):
            for i in range(4): a(cvt(r+8*U+i, r+8*U+2*i))
            a(f'buffer_store_dwordx4 {V(r+8*U,4)}, v{ad}, {WS}, s{sb} offen offset:{U*st} sc1')
    nxt(a)
    a('s_cmp_lt_u32 s36, 16\ns_cbranch_scc1 ATT1\n@end A1')
    a(f's_waitcnt vmcnt(0)\ns_barrier\nv_mov_b32 v9, s36\ns_cmp_eq_u32 s4, 0\ns_cbranch_scc0 ATTNG\nbuffer_store_byte v9, off, {WS}, s59 sc1\nbuffer_store_byte v9, off, {DBG}, s57 sc1\nATTNG:')
    if opt.get('prof'): a('s_memtime s[72:73]')
    Q, K, Vv, KM, MK, S_, SM, P, Z, O, ONE = 16, 32, 64, 80, 96, 104, 112, 120, 128, 132, 148
    bases(a)
    a('s_and_b32 s54, s4, 1\ns_lshl_b32 s55, s54, 8\ns_lshl_b32 s54, s54, 4\ns_lshr_b32 s56, s4, 1\ns_lshl_b32 s56, s56, 13\ns_add_u32 s56, s56, 2048')
    expr(a, 0, 8, [(0,4,16),(4,2,512)], 's55', 9)
    expr(a, 1, 8, [(0,1,16),(1,1,4096),(2,1,32),(3,1,64),(4,2,256)], 0, 9); a('v_add_u32 v2, 0x2000, v1\nv_add_u32 v3, s56, v7\nv_add_u32 v4, 0x1000, v3\nv_add_u32 v5, 0x1000, v0')
    expr(a, 10, 8, [(0,4,1)], 's54', 9); expr(a, 11, 8, [(4,1,4),(5,1,16)], 0, 9); a(f'v_sub_u32 v10, v10, v11\nv_mov_b32 v11, {f2u(-1e30)}')
    for kt in range(2):
        for r in range(4): a(f'v_cmp_gt_i32 vcc, {8*kt+r}, v10\nv_cndmask_b32 v{MK+4*kt+r}, 0, v11, vcc')
    for i in range(4): a(f'v_mov_b32 v{ONE+i}, 0x3f803f80')
    a(f'v_mov_b32 v{P+5}, 0\nv_mov_b32 v{P+6}, 0\ns_mov_b32 s50, {f2u(128**-0.5 * 1.4426950408889634)}\ns_mov_b32 s49, 400000')
    a('@loop A2\nATT2:')
    for wa in range(4): a(f'buffer_load_dwordx4 {V(Q+4*wa,4)}, v{(0,5)[wa>>1]}, {WS}, s38 offen offset:{(wa&1)*2048} sc1')
    for kt in range(2):
        for wa in range(4): a(f'buffer_load_dwordx4 {V(K+16*kt+4*wa,4)}, v{1+kt}, {WS}, s37 offen offset:{(wa>>1)*1024 + (wa&1)*128} sc1')
    for w in range(2):
        for T in range(2): a(f'buffer_load_dwordx4 {V(Vv+8*w+4*T,4)}, v{3+w}, {WS}, s37 offen offset:{T*1024} sc1')
    for wa in range(4):
        for kt in range(2): a(f'v_mfma_f32_16x16x32_bf16 {V(S_+4*kt,4)}, {V(K+16*kt+4*wa,4)}, {V(Q+4*wa,4)}, {V((MK if wa == 0 else S_)+4*kt,4)}')
    a(f'v_max3_f32 v10, v{S_}, v{S_+1}, v{S_+2}\nv_max3_f32 v10, v10, v{S_+3}, v{S_+4}\nv_max3_f32 v10, v10, v{S_+5}, v{S_+6}\nv_max_f32 v10, v10, v{S_+7}\ns_waitcnt vmcnt(0)')
    a('ATT2P:')
    for w in range(4): a(f'buffer_load_dwordx4 {V(KM+4*w,4)}, v7, {WS}, s39 offen offset:{w*1024} sc1')
    a(f'''s_sub_u32 s49, s49, 1
s_cselect_b32 s49, 0, s49
s_cselect_b32 s66, -1, -2
v_max3_u32 v9, v{KM}, v{KM+4}, v{KM+8}
v_max_u32 v9, v9, v{KM+12}
v_cmp_lt_u32 vcc, s66, v9
v_swap_b32 v{KM+2}, v{KM+4}
v_swap_b32 v{KM+3}, v{KM+5}
v_swap_b32 v{KM+10}, v{KM+12}
v_swap_b32 v{KM+11}, v{KM+13}
s_cbranch_vccnz ATT2P''')
    for wa in range(4): a(f'v_mfma_f32_16x16x32_bf16 {V(SM+4*(wa&1),4)}, {V(KM+8*(wa>>1),4)}, {V(Q+4*wa,4)}, ' + ('0' if wa < 2 else V(SM+4*(wa&1),4)))
    a(f's_cmp_lt_u32 s4, 2\ns_cbranch_scc1 ATT2E\nv_mov_b64 {V(KM+4,2)}, {V(KM+12,2)}\nv_mov_b64 {V(KM+6,2)}, {V(KM+14,2)}\nATT2E:')
    a(f'''v_add_f32 v{SM}, v{SM}, v{SM+6}
v_add_f32 v{SM+1}, v{SM+1}, v{SM+7}
v_max3_f32 v10, v10, v{SM}, v{SM+1}
v_mov_b32 v11, v10
v_permlane16_swap_b32 v10, v11
v_max_f32 v10, v10, v11
v_mov_b32 v11, v10
v_permlane32_swap_b32 v10, v11
v_max_f32 v10, v10, v11
v_mul_f32 v10, s50, v10''')
    for r in range(S_, S_+10): a(f'v_fma_f32 v{r}, v{r}, s50, -v10')
    for r in range(S_, S_+10): a(f'v_exp_f32 v{r}, v{r}')
    for i in range(4): a(cvt(P+i, S_+2*i))
    a(cvt(P+4, SM)); a(cvt(P+7, SM))
    a(f'v_mfma_f32_16x16x32_bf16 {V(Z,4)}, {V(ONE,4)}, {V(P,4)}, 0')
    for T in range(2):
        for w in range(2): a(f'v_mfma_f32_16x16x32_bf16 {V(O+8*T+4*w,4)}, {V(Vv+8*w+4*T,4)}, {V(P,4)}, 0')
        if T == 0: a(f'v_mfma_f32_16x16x16_bf16 {V(Z,4)}, {V(ONE,2)}, {V(P+4,2)}, {V(Z,4)}')
    for T in range(2):
        for w in range(2): a(f'v_mfma_f32_16x16x16_bf16 {V(O+8*T+4*w,4)}, {V(KM+4+2*w,2)}, {V(P+4+2*T,2)}, {V(O+8*T+4*w,4)}')
        if T == 0: a(f'v_rcp_f32 v{Z}, v{Z}')
    for T in range(2):
        for i in range(8): a(f'v_mul_f32 v{O+8*T+i}, v{O+8*T+i}, v{Z}')
        for i in range(4): a(cvt(O+8*T+i, O+8*T+2*i))
        a(f'buffer_store_dwordx4 {V(O+8*T,4)}, v7, {WS}, s40 offen offset:{T*1024} sc1')
    nxt(a)
    a('s_cmp_lt_u32 s36, 16\ns_cbranch_scc1 ATT2\n@end A2')
    if opt.get('hst'): hstamps(a, 252, [(1,68),(14,82),(4,70),(5,72),(6,78)])
    elif opt.get('prof'):
        a(f'''s_memtime s[74:75]
s_waitcnt lgkmcnt(0)
s_sub_u32 s70, s70, s68
s_sub_u32 s72, s72, s68
s_sub_u32 s74, s74, s68
v_mov_b32 v12, s70
v_mov_b32 v13, s72
v_mov_b32 v14, s74
v_mov_b32 v15, s49
s_lshl_b32 s54, s57, 4
s_add_u32 s54, s54, 0x202000
buffer_store_dwordx4 v[12:15], off, {WS}, s54''')
    a('s_waitcnt vmcnt(0)\ns_endpgm')
    return a.text()
```

```python
from common import *
import struct, math
def f2u(x): return struct.unpack('<I', struct.pack('<f', x))[0]
WS, DBG, SX, SWO, SOUT, SG = 's[8:11]', 's[12:15]', 's[16:19]', 's[20:23]', 's[24:27]', 's[28:31]'
SLA, SAI, SCR, SCI, SDT, SDK = 32, 36, 40, 44, 76, 80
CS = 4160; CW = 8*CS; UB = 4*CW; US = 1552; UC = 4*US
TAB = 4160 + 64; PAR = 3*4160 + 64
def cvt(d, s, s2=None): return f'v_cvt_pk_bf16_f32 v{d}, v{s}, v{s+1 if s2 is None else s2}'
L2E = 1.4426950408889634
LHI = struct.unpack('<f', struct.pack('<I', f2u(L2E) & 0xffffff00))[0]; LLO = (L2E - LHI)*math.log(2)
def bexp(a, r, t):
    a(f'v_mul_f32 v{t}, {f2u(LLO)}, v{r}\nv_mul_f32 v{r}, {f2u(LHI)}, v{r}\nv_exp_f32 v{r}, v{r}\nv_fmac_f32 v{r}, v{t}, v{r}\n{cvt(r, r, r)}\nv_lshlrev_b32 v{r}, 16, v{r}')
def conv(a, opt):
    XR, U2, GA, POS, AC, T, GV = 16, 48, 64, 124, 132, 148, 180
    a('s_sub_u32 s54, s5, 5\ns_mul_i32 s54, s54, 24\ns_add_u32 s54, s54, s3\ns_lshl_b32 s55, s54, 4\ns_lshl_b32 s6, s54, 3\ns_add_u32 s6, s6, s4')
    a('v_mul_u32_u24 v1, 9216, v0')
    for i in range(8): a(f's_add_u32 s54, s55, {i*1152}\nbuffer_load_dwordx4 {V(XR+4*i,4)}, v1, {SX}, s54 offen')
    a(f's_mul_i32 s7, s4, {CW}\ns_add_u32 s56, s7, {TAB}')
    a('v_lshlrev_b32 v2, 3, v8')
    for u in range(4):
        for k in range(15):
            r = GA + 15*u + k
            a(f'v_add_u32 v{r}, {512*u + k - 7}, v2\nv_cvt_f32_i32 v{r}, v{r}\n{cvt(r, r, r)}\nv_lshlrev_b32 v{r}, 16, v{r}\nv_cvt_i32_f32 v{r}, v{r}')
            a(f'v_ashrrev_i32 v3, 2, v{r}\nv_add_u32 v3, 0x180, v3\nv_min_i32 v{r}, v{r}, v3\nv_lshl_add_u32 v{r}, v{r}, 2, s56')
    a(f'v_and_b32 v2, 15, v8\nv_cvt_f32_u32 v{POS}, v2\nv_mul_f32 v{POS+1}, 4.0, v{POS}\nv_mul_f32 v{POS+2}, 4.0, v{POS+1}\nv_add_f32 v{POS+3}, {f2u(256.)}, v{POS+2}')
    a(f'v_mul_f32 v{POS+4}, 4.0, v{POS+2}\nv_add_f32 v{POS+5}, {f2u(1536.)}, v{POS+4}\nv_add_f32 v{POS+4}, {f2u(512.)}, v{POS+4}')
    expr(a, 2, 0, [(0,5,16),(5,2,US),(7,1,2*UC)], UB, 9)
    a(f'v_mov_b64 v[12:13], 0\nv_mov_b64 v[14:15], 0\nds_write_b128 v2, v[12:15]\nds_write_b128 v2, v[12:15] offset:{UC}')
    expr(a, 1, 0, [(0,2,US),(2,6,16)], UB + 512, 9)
    a('s_mov_b32 s58, 0x05040100\ns_mov_b32 s59, 0x07060302')
    for c in range(8):
        d = U2 + 4*(c&3)
        for j in range(4): a(f'v_perm_b32 v{d+j}, v{XR+4*(6-2*j)+(c>>1)}, v{XR+4*(7-2*j)+(c>>1)}, s{58+(c&1)}')
        if c < 4: a(f'ds_write_b128 v1, {V(d,4)} offset:{c*UC}')
        if c == 3: a('s_waitcnt lgkmcnt(0)')
    expr(a, 2, 8, [(0,6,32)], 's7', 9)
    expr(a, 4, 8, [(0,4,64),(4,2,16)], 's56', 9)
    expr(a, 5, 8, [(0,6,16)], 's7', 9)
    expr(a, 6, 8, [(0,3,CS),(3,2,16)], 's7', 9); a('v_lshrrev_b32 v9, 5, v8\nv_xor_b32 v9, 1, v9\nv_lshl_add_u32 v6, v9, 4, v6')
    a(f's_mul_i32 s54, s4, {UC}\ns_add_u32 s54, s54, {UB}'); expr(a, 7, 8, [(0,5,16),(5,1,US)], 's54', 9)
    expr(a, 10, 8, [(0,5,64),(5,1,16)], 0, 9)
    expr(a, 11, 8, [(0,3,CS),(3,2,16)], 's7', 9)
    a('s_mov_b32 s60, 0\ns_barrier\n@loop CR\nCONVR:')
    a('s_lshl_b32 s54, s6, 8\ns_lshl_b32 s55, s6, 1\nv_lshlrev_b32 v9, 2, v8')
    for i, s in enumerate((SLA, SAI, SCR, SCI)): a(f'buffer_load_dword v{T+i}, v9, s[{s}:{s+3}], s54 offen')
    a(f'buffer_load_ushort v{T+4}, off, s[{SDT}:{SDT+3}], s55\nbuffer_load_ushort v{T+5}, off, s[{SDK}:{SDK+3}], s55')
    expr(a, 3, 8, [(4,2,16)], 's7', 9)
    for t in range(16): a(f'v_mov_b32 v{AC+t}, 0')
    a(f'v_lshlrev_b32 v{T+4}, 16, v{T+4}'); bexp(a, T+4, 9)
    a(f'v_lshlrev_b32 v{T+5}, 16, v{T+5}\nv_cmp_eq_u32 vcc, 0, v8\nv_cndmask_b32 v{AC}, 0, v{T+5}, vcc')
    for h in range(2):
        p = T+8+4*h
        for i in range(4): a(f'v_and_b32 v{p+i}, 0xffff0000, v{T+i}' if h else f'v_lshlrev_b32 v{p+i}, 16, v{T+i}')
        bexp(a, p, 9)
        for i in range(4): a(f'v_mul_f32 v{p+i}, v{p+i}, v{T+4}')
        a(f'v_mul_f32 v{p}, {f2u(-L2E)}, v{p}\nv_mul_f32 v{p+1}, 0.15915494, v{p+1}\nv_add_f32 v{p+2}, v{p+2}, v{p+2}\nv_add_f32 v{p+3}, v{p+3}, v{p+3}')
        a(f'ds_write_b128 v2, {V(p,4)} offset:{PAR + 16*h}')
    PR = T; E = T+4; C = T+16; SN = T+18; AA = T+24
    a(f's_waitcnt lgkmcnt(0)\nds_read_b128 {V(PR,4)}, v3 offset:{PAR}\ns_mov_b32 s61, 0\n@loop CK\nCONVK:')
    for i in range(6): a(f'v_mul_f32 v{E+2*i}, v{PR}, v{POS+i}\nv_mul_f32 v{E+2*i+1}, v{PR+1}, v{POS+i}')
    a(f'v_mov_b64 {V(C,2)}, {V(PR+2,2)}\nv_add_u32 v3, 64, v3\nds_read_b128 {V(PR,4)}, v3 offset:{PAR}')
    pend = []
    def ev(i):
        e = E+2*i; s = SN+i
        return [f'v_fract_f32 v{e+1}, v{e+1}', f'v_exp_f32 v{e}, v{e}', f'v_sin_f32 v{s}, v{e+1}', f'v_cos_f32 v{e+1}, v{e+1}', None, f'v_mul_f32 v{s}, v{s}, v{e}', f'v_mul_f32 v{e}, v{e+1}, v{e}']
    def ca(i):
        e = E+2*i; s = SN+i; d = AA+2*i
        return [f'v_mul_f32 v{d}, v{e}, v{C}', f'v_mul_f32 v{d+1}, v{e}, v{C+1}', f'v_fma_f32 v{d}, -v{s}, v{C+1}, v{d}', f'v_fma_f32 v{d+1}, -v{s}, v{C}, -v{d+1}']
    mm = lambda t: [f'v_mfma_f32_16x16x4_f32 {V(AC+4*t,4)}, v{AA+2*(t>>1)+h}, v{(E+4+2*t, SN+2+t)[h]}, {V(AC+4*t,4)}' for h in range(2)]
    for blk, t in ((ev(0)+ca(0), None), (ev(2), 0), (ev(3), 1), (ev(1)+[None]+ca(1), None), (ev(4), 2), (ev(5), 3)):
        if pend: a(pend.pop(0))
        for x in blk:
            if x is not None: a(x)
            elif pend: a(pend.pop(0))
        if t is not None: pend += mm(t)
    a('s_add_u32 s61, s61, 1\ns_cmp_lt_u32 s61, 32\n' + '\n'.join(pend) + '\ns_cbranch_scc1 CONVK\n@end CK')
    for t in range(4): a(f'ds_write_b128 v4, {V(AC+4*t,4)} offset:{1024*t}')
    a(f's_mov_b64 exec, 3\nds_write_b128 v5, v[12:15] offset:{TAB-32}\ns_mov_b64 exec, -1\ns_waitcnt lgkmcnt(0)')
    for k in range(60): a(f'ds_read_b32 v{GV+k}, v{GA+k}')
    a('s_waitcnt lgkmcnt(0)\nds_write_b128 v11, v[12:15]')
    for u in range(4):
        for c in range(8):
            d = AC + 4*((8*u+c)%8)
            for j in range(4): a(cvt(d+j, GV+15*u+c+2*j))
            a(f'ds_write_b128 v5, {V(d,4)} offset:{c*CS + 48 + 1024*u}')
        a('s_waitcnt lgkmcnt(0)')
    def rd(it):
        D_, k = it>>1, it&1; f = GV + 16*(it%3); m = 2*D_ - k
        return [f'ds_read_b128 {V(f,4)}, v6 offset:{32*m+32}', f'ds_read_b128 {V(f+4,4)}, v7 offset:{(32-D_)*16 + 2*k*US}',
                f'ds_read_b128 {V(f+8,4)}, v7 offset:{(64-D_)*16 + 2*k*US}', f'ds_read_b128 {V(f+12,4)}, v6 offset:{32*m+32+2048}']
    a('\n'.join(rd(0) + rd(1)))
    for it in range(64):
        f = GV + 16*(it%3); r = rd(it+2) if it < 62 else ['']*4
        for n, (x, y) in enumerate(((0, 4), (0, 8), (12, 4))):
            a(f'v_mfma_f32_32x32x16_bf16 {V(AC+16*n,16)}, {V(f+x,4)}, {V(f+y,4)}, ' + ('0' if it == 0 else V(AC+16*n,16)))
            a('\n'.join(r[:2] if n == 0 else r[n+1:n+2]))
    a(f's_lshl_b32 s54, s6, 12\ns_add_u32 s54, s54, {WS_B}\ns_barrier')
    for c in range(4): a(f'ds_write_b128 v1, {V(U2+4*c,4)} offset:{c*UC}')
    for i in range(16): a(f'v_add_f32 v{AC+16+i}, v{AC+16+i}, v{AC+32+i}')
    for t in range(2):
        for U in range(2):
            d = AC + 16*t + 8*U
            for j in range(4): a(cvt(d+j, d+2*j))
            a(f'v_permlane32_swap_b32 v{d}, v{d+2}\nv_permlane32_swap_b32 v{d+1}, v{d+3}\nbuffer_store_dwordx4 {V(d,4)}, v10, {WS}, s54 offen offset:{2048*t + 32*U} sc1')
    a('s_add_u32 s6, s6, 4\ns_add_u32 s60, s60, 1\ns_cmp_lt_u32 s60, 2\ns_waitcnt vmcnt(0)\ns_barrier\ns_cbranch_scc1 CONVR\n@end CR')
    a(f's_cmp_eq_u32 s4, 0\ns_cbranch_scc0 OUT\nv_mov_b32 v9, 1\ns_mov_b64 exec, 1\nbuffer_atomic_add v9, off, {DBG}, 0 offset:160 sc1\ns_mov_b64 exec, -1')

def out(a, opt):
    RG = 36864; L_G = 4*RG; L_R = L_G + 1024; L_B = L_R + 12288
    a('@reset\nOUT:')
    if opt.get('prof'): a('s_memtime s[70:71]')
    a('s_sub_u32 s54, s5, 5\ns_lshl_b32 s54, s54, 5\ns_add_u32 s57, s54, s3\ns_mul_i32 s6, s57, 43\ns_lshr_b32 s6, s6, 9\ns_mul_i32 s54, s6, 12\ns_sub_u32 s7, s57, s54')
    a(f's_mul_i32 s54, s7, 96\ns_mul_i32 s55, s4, {1024*1152}\ns_add_u32 s54, s54, s55\ns_mul_i32 s43, s4, {RG}')
    for n in range(3):
        a(f'v_add_u32 v9, {64*n}, v8\nv_mul_u32_u24 v10, 171, v9\nv_lshrrev_b32 v10, 10, v10\nv_mul_u32_u24 v11, 1056, v10\nv_lshl_add_u32 v11, v9, 4, v11\nv_add_u32 v{n}, s54, v11')
    wreg = lambda ks, t: 128 + 12*ks + 4*t
    def wdma(ks):
        for n in range(3): a(f's_add_u32 m0, s43, {(ks%12)*3072 + n*1024}\ns_mov_b32 s54, {ks*36864}\nbuffer_load_dwordx4 v{n}, {SWO}, s54 offen lds')
    expr(a, 3, 8, [(5,1,1536),(4,1,384),(2,2,96),(0,2,8)], 's43', 9)
    for ks in range(12): wdma(ks)
    for k0 in range(0, 32, 2):
        a(f's_waitcnt vmcnt({3*(min(12, 32-k0) - 2)})')
        for ks in (k0, k0+1):
            for t in range(3):
                for j in range(2): a(f'ds_read_b64_tr_b16 {X(wreg(ks,t)+2*j,2)}, v3 offset:{(ks%12)*3072 + 768*j + 32*t}')
        a('s_waitcnt lgkmcnt(0)')
        for ks in (k0+12, k0+13):
            if ks < 32: wdma(ks)
    GW, XG = 16, 52
    expr(a, 0, 8, [(0,2,16)], 0, 9); expr(a, 1, 8, [(2,4,1152)], 'v0', 9)
    a(f's_lshl_b32 s54, s4, 5\ns_add_u32 s54, s54, s6\ns_mul_i32 s55, s54, 18432')
    for n in range(4): a(f'v_mov_b32 v{12+n}, 0')
    for hf in range(2):
        for j in range(9): a(f'buffer_load_dwordx4 {V(GW+4*j,4)}, v0, {SG}, 0 offen offset:{576*hf + 64*j}')
        for n in range(4):
            x = XG + 36*(n&1)
            if n%2 == 0:
                for n2 in (n, n+1):
                    a(f's_add_u32 s54, s55, {n2*8*18432}')
                    for j in range(9): a(f'buffer_load_dwordx4 {V(XG+36*(n2&1)+4*j,4)}, v1, {SX}, s54 offen offset:{576*hf + 64*j}')
            for j in range(36): a(f'v_dot2_f32_bf16 v{12+n}, v{x+j}, v{GW+j}, v{12+n}')
    DP = 'row_mask:0xf bank_mask:0xf'; a('s_nop 2')
    for qp in ('[1,0,3,2]', '[2,3,0,1]'):
        for n in range(4): a(f'v_add_f32_dpp v{12+n}, v{12+n}, v{12+n} quad_perm:{qp} {DP}')
    for n in range(4): a(f'v_mul_f32 v{12+n}, {f2u(-L2E)}, v{12+n}\nv_exp_f32 v{12+n}, v{12+n}\nv_add_f32 v{12+n}, 1.0, v{12+n}\nv_rcp_f32 v{12+n}, v{12+n}')
    a(f's_lshl_b32 s54, s4, 8\ns_add_u32 s54, s54, {L_G}'); expr(a, 2, 8, [(2,4,4)], 's54', 9)
    for n in range(4): a(f'ds_write_b32 v2, v{12+n} offset:{64*n}')
    if opt.get('prof'): a('s_memtime s[72:73]')
    a(f'''v_lshlrev_b32 v0, 2, v8
v_mov_b32 v1, 72
v_mov_b32 v2, 0x10101010
v_cmp_gt_u32 vcc, 32, v8
v_cndmask_b32 v1, v1, v2, vcc
s_mov_b32 s49, 400000
s_mov_b32 exec_hi, 0x100
OUTW:
buffer_load_dword v2, v0, {DBG}, 0 offen sc1
s_sub_u32 s49, s49, 1
s_cselect_b32 s49, 0, s49
s_cbranch_scc1 OUTX
v_cmp_gt_u32 vcc, v1, v2
s_cbranch_vccnz OUTW
OUTX:
s_mov_b64 exec, -1
s_waitcnt vmcnt(0)''')
    if opt.get('prof'): a('s_memtime s[74:75]')
    a(f's_lshl_b32 s37, s6, 17\ns_lshl_b32 s54, s4, 15\ns_add_u32 s37, s37, s54\ns_add_u32 s37, s37, {WS_O}')
    a(f's_mul_i32 s54, s7, 3\ns_min_u32 s55, s4, 2\ns_add_u32 s54, s54, s55\ns_lshl_b32 s38, s54, 16\ns_lshl_b32 s56, s6, 5\ns_add_u32 s38, s38, s56\ns_add_u32 s38, s38, {WS_B}')
    a('s_lshl_b32 s39, s54, 5\ns_mul_i32 s56, s6, 18432\ns_add_u32 s39, s39, s56')
    a('v_lshlrev_b32 v0, 4, v8'); expr(a, 1, 8, [(0,6,512)], 496, 9)
    expr(a, 2, 8, [(0,2,8),(2,4,4096)], 0, 9)
    a(f's_lshl_b32 s54, s4, 9\ns_add_u32 s54, s54, {L_B}'); expr(a, 3, 8, [(0,6,8)], 's54', 9)
    expr(a, 5, 8, [(0,4,4)], L_G, 9)
    a(f's_mul_i32 s54, s4, 3072\ns_add_u32 s54, s54, {L_R}\nv_add_u32 v6, s54, v0\ns_lshl_b32 s55, s55, 10\ns_add_u32 s55, s55, {L_R}\nv_add_u32 v7, s55, v0')
    expr(a, 4, 8, [(0,4,1152),(4,2,8)], 0, 9)
    AC, BT, OB, NB = 16, 28, 32, 24
    BUD = 's_sub_u32 s49, s49, 1\ns_cselect_b32 s49, 0, s49\ns_cselect_b32 s66, -1, -2'
    a(f'''s_mov_b32 s36, 0
@loop OT
OUTT:
buffer_load_dwordx2 v[10:11], v2, {WS}, s38 offen sc1
s_barrier
ds_read_b32 v9, v5
v_add_u32 v5, 64, v5
ds_write_b64 v3, v[10:11]
s_waitcnt lgkmcnt(0)
ds_read_b64_tr_b16 v[10:11], v3
v_sub_f32 v12, 1.0, v9
v_lshlrev_b32 v{BT}, 16, v10
v_and_b32 v{BT+1}, 0xffff0000, v10
v_lshlrev_b32 v{BT+2}, 16, v11
v_and_b32 v{BT+3}, 0xffff0000, v11''')
    for i in range(4): a(f'v_mul_f32 v{BT+i}, v{BT+i}, v12')
    a(f'''OUTP:
buffer_load_dword v10, v1, {WS}, s37 offen sc1
{BUD}
v_cmp_lt_u32 vcc, s66, v10
s_cbranch_vccnz OUTP''')
    for q in range(1, 8): a(f's_add_u32 s{58+q}, s37, {4096*q}')
    ld = lambda ks: f'buffer_load_dwordx4 {V(OB+4*(ks%NB),4)}, v0, {WS}, s{58+(ks>>2) if ks >= 4 else 37} offen offset:{(ks&3)*1024} sc1'
    for ks in range(NB): a(ld(ks))
    a('v_mov_b32 v10, 0')
    for ks in range(32):
        o = OB+4*(ks%NB)
        for t in range(3):
            a(f'v_mfma_f32_16x16x32_bf16 {V(AC+4*t,4)}, {X(wreg(ks,t),4)}, {V(o,4)}, ' + ('0' if ks == 0 else V(AC+4*t,4)))
            if t == 0: a(f'v_max_u32 v10, v10, v{o}')
        if ks+NB < 32: a(ld(ks+NB))
    a('v_cmp_lt_u32 vcc, s66, v10\ns_cbranch_vccnz OUTP')
    for t in range(3): a(f'ds_write_b128 v6, {V(AC+4*t,4)} offset:{1024*t}')
    a('s_add_u32 s37, s37, 0x100000\ns_add_u32 s38, s38, 256\ns_add_u32 s36, s36, 1\ns_cmp_eq_u32 s4, 3\ns_barrier\ns_cbranch_scc1 OUTN')
    for w in range(4): a(f'ds_read_b128 {V(OB+4*w,4)}, v7 offset:{3072*w}')
    for i in range(4): a(f'v_add_f32 v{OB+i}, v{OB+i}, v{OB+4+i}')
    for i in range(4): a(f'v_add_f32 v{OB+8+i}, v{OB+8+i}, v{OB+12+i}')
    for i in range(4): a(f'v_add_f32 v{OB+i}, v{OB+i}, v{OB+8+i}')
    for i in range(4): a(f'v_fmac_f32 v{BT+i}, v{OB+i}, v9')
    a(f'{cvt(BT, BT)}\n{cvt(BT+1, BT+2)}\nbuffer_store_dwordx2 {V(BT,2)}, v4, {SOUT}, s39 offen\nOUTN:\ns_add_u32 s39, s39, {8*18432}\ns_cmp_lt_u32 s36, 16\ns_cbranch_scc1 OUTT\n@end OT')
    if opt.get('hst'): hstamps(a, 167, [(12,68),(15,82),(7,70),(8,72),(9,74),(10,78)])
    elif opt.get('prof'):
        a('s_memtime s[76:77]\ns_waitcnt lgkmcnt(0)')
        for i in range(4): a(f's_sub_u32 s{70+2*i}, s{70+2*i}, s68\nv_mov_b32 v{12+i}, s{70+2*i}')
        a(f's_lshl_b32 s54, s57, 5\ns_add_u32 s54, s54, 0x203000\nbuffer_store_dwordx4 v[12:15], off, {WS}, s54\nv_mov_b32 v16, s49\nbuffer_store_dword v16, off, {WS}, s54 offset:16')
    a('s_waitcnt vmcnt(0)\ns_endpgm')

def gen(opt):
    a = Asm(); a.uid = 2000
    a('CONV:')
    if opt.get('prof'): a('s_memtime s[68:69]')
    srds(a, [('ws',8),('dbg',12),('x',16),('wo',20),('out',24),('gate',28),('loga',SLA),('aim',SAI),('cr',SCR),('ci',SCI),('logdt',SDT),('dsk',SDK)])
    lane(a, 8)
    a('s_cmp_ge_u32 s3, 24\ns_cbranch_scc1 OUT')
    conv(a, opt); out(a, opt)
    return a.text()
```

```python
from common import *
import struct
N = [8+4*i for i in range(6)]; MA, MB, M8, X0, X1, W0, W1 = 32, 36, 40, 44, 48, 52, 56
G0, G1, G2, G3, G4 = 60, 64, 68, 72, 76
PA, PB, PC = N[0], N[2], N[4]
L_Q, L_K, L_SEL, L_PUB, L_P, L_ONE, L_W = 8192, 10240, 12288, 13312, 14336, 15360, 16384
WREG = 36864
WS, DBG, SWQ, SWK, SWV, SWO, SM0 = 's[8:11]', 's[12:15]', 16, 20, 24, 28, 32
def f2u(x): return struct.unpack('<I', struct.pack('<f', x))[0]

def plan(w):
    a_, b_ = w, 4+w; n = [c for c in range(8) if c not in (a_, b_)]
    us = [u for u in range(4) if u != w]
    Q = lambda T, c, A, buf=None: (('q', T, c), A, (G0, G1)[T], buf)
    K = lambda T, c, A, buf=None: (('k', T, c), A, (G2, G3)[T], buf)
    Vv = lambda T, c, A, buf=None: (('v', T, c), A, (W0, W1)[T], buf)
    acc = (G2, W0, W1, G1)
    O = lambda u, t, A, buf=None: (('o', u, t), A, acc[t], buf)
    s = {}
    l = [Q(0,a_,MA,PA), Q(1,a_,MA,PB), Q(0,8,M8,PC), Q(1,8,M8,X0), K(0,a_,MA,W0), K(1,a_,MA), K(0,8,M8), K(1,8,M8),
         Q(0,b_,MB), Q(1,b_,MB)]
    for T, i in ((0,0),(0,1),(0,2),(1,0),(1,1),(0,3),(0,4),(0,5),(1,2),(1,3),(1,4),(1,5)):
        l.append(Q(T, n[i], N[i], {13: X0, 14: W0, 20: X0, 21: W0}.get(len(l))))
    for T, i in ((0,8),(1,8),(0,0),(0,1),(0,2),(1,0),(0,3),(0,4),(0,5),(1,1),(1,2),(1,3),(1,4),(1,5)):
        l.append(K(T, b_ if i == 8 else n[i], MB if i == 8 else N[i], W0 if len(l) in (27, 33) else None))
    l += [Vv(0,8,M8), Vv(1,8,M8), 'sx0', 'sx1']
    for i in range(4): l += [Vv(0,n[i],N[i]), Vv(1,n[i],N[i])]
    l += [Vv(0,n[4],N[4]), Vv(0,n[5],N[5]), Vv(1,n[4],N[4]), 'sm0', 'sm1', Vv(1,n[5],N[5])]
    l += [Vv(0,a_,X0,PA), Vv(0,b_,X1), Vv(1,a_,X0,PB), Vv(1,b_,X1)]
    l += ['zx', 'px0', 'px1', 'zm', 'pm0', 'pm1']
    l += [O(w,0,M8,PC), O(w,1,M8,PA), O(w,2,M8,PB), O(w,3,M8)]
    l += [(('h',0,0), X0, G0, None), (('h',1,0), X1, G0, None)]
    oa = (MA, MB, G3)
    for t in range(4):
        for k in range(3): l.append(O(us[k], t, oa[k], {77: PC, 79: PA}.get(len(l))))
    loc = {}; nl = nr = 0
    for e in l:
        if isinstance(e, str): continue
        if e[3] is not None: loc[e[0]] = ('L', nl); nl += 1
        else: loc[e[0]] = ('R', 80+8*nr); nr += 1
    assert nl == 18 and nr == 54, (nl, nr)
    return l, loc, n, us

def init(a, w, loc):
    a('s_mul_i32 s54, s3, %d' % PHEAD)
    a(f's_add_u32 s37, s54, {WS_PART + w*2048}\ns_add_u32 s38, s54, {WS_PART + 8192 + 256*w}')
    for n in range(4): a(f's_mov_b32 s{39+n}, {WS_PART + n*8*PHEAD}')
    a(f's_mov_b32 s45, {WS_RING}\ns_lshl_b32 s54, s3, 14\ns_add_u32 s47, s54, {WS_KV + w*4096}\ns_add_u32 s58, s54, {WS_KV}')
    a(f's_lshl_b32 s54, s3, 12\ns_add_u32 s48, s54, {WS_KM + w*1024}\ns_mov_b32 s49, 400000\ns_mov_b32 s36, 0')
    sc = f2u(128**-0.5 * 1.4426950408889634)
    a(f's_mov_b32 s50, {sc}\ns_mov_b32 s51, {sc}\ns_mov_b32 s52, {(127-48)<<23}\ns_mov_b32 s53, {112<<23}\ns_lshl_b32 s57, s3, 2')
    lane(a, 8)
    if w < 2: a(f's_lshr_b32 s59, s3, 3\ns_lshl_b32 s59, s59, 11\ns_add_u32 s59, s59, {1024 if w == 0 else 0}\ns_and_b32 s60, s3, 7')
    elif w == 2: a('s_mov_b32 s59, 8192\ns_lshr_b32 s60, s3, 2\ns_and_b32 s55, s3, 3')
    if w < 3:
        red_addr(a, w, 7, 8, 9)
        a('s_and_b32 s54, s60, 1\ns_lshl_b32 s54, s54, 8\ns_lshr_b32 s61, s60, 1\ns_lshl_b32 s61, s61, 6\ns_add_u32 s54, s54, s61\ns_add_u32 s54, s54, s59')
        expr(a, 10, 8, [(1,1,512),(2,1,32),(0,1,16),(4,1,8),(5,1,4),(3,1,1<<30)], 's54', 9)
        if w == 2:
            a('s_lshr_b32 s54, s60, 2\ns_lshl_b32 s54, s54, 5\ns_bfe_u32 s61, s60, 0x10001\ns_lshl_b32 s61, s61, 9\ns_add_u32 s54, s54, s61\ns_and_b32 s61, s60, 1\ns_lshl_b32 s61, s61, 7\ns_add_u32 s54, s54, s61\ns_add_u32 s54, s54, 8192')
            expr(a, 10, 8, [(0,1,8),(1,1,256),(2,1,64),(4,1,16),(3,1,1<<30),(5,1,1<<28)], 's54', 9)
            a('v_xor_b32 v10, 0x10000000, v10')
            a('s_lshl_b32 s54, s55, 29\nv_or_b32 v10, s54, v10')
        a('v_mov_b64 v[12:13], -1\nv_mov_b64 v[14:15], -1')
        for sl in range(1):
            for n in range(4):
                a(f's_mov_b32 s54, {WS_PART + sl*PSLOT + n*8*PHEAD}\nbuffer_store_dwordx4 v[12:15], v7, {WS}, s54 offen sc1')
        for sl in range(4): a(f's_mov_b32 s54, {WS_RING + sl*RSLOT}\nbuffer_store_dword{"x2 v[12:13]" if w == 2 else " v12"}, v10, {WS}, s54 offen sc1')
        a(f'v_lshlrev_b32 v11, 4, v8\nds_write_b32 v11, v10 offset:{L_PUB + 4*w}')
    else:
        expr(a, 16, 8, [(0,2,2),(2,1,1)], 0, 9)
        a('v_and_b32 v9, 15, v8\nv_cmp_lt_u32 vcc, 7, v9\nv_cndmask_b32 v9, v9, v16, vcc\nv_mov_b32 v10, 0x3f80\nv_mov_b32 v11, 0x3f800000')
        for r in range(4):
            a(f'v_mov_b32 v{12+r}, 0\nv_cmp_eq_u32 vcc, {2*r}, v9\nv_cndmask_b32 v{12+r}, v{12+r}, v10, vcc\nv_cmp_eq_u32 vcc, {2*r+1}, v9\nv_cndmask_b32 v{12+r}, v{12+r}, v11, vcc')
        a(f'v_lshlrev_b32 v11, 4, v8\nds_write_b128 v11, v[12:15] offset:{L_SEL}')
        for r in range(4): a(f'v_mov_b32 v{16+r}, 0x3f803f80')
        a(f'ds_write_b128 v11, v[16:19] offset:{L_ONE}')
    expr(a, 0, 8, [(4,2,64)], (w&1)*16, 9); expr(a, 1, 8, [(0,4,16)], 0, 9); a('v_xor_b32 v0, v0, v1')
    expr(a, 1, 8, [(4,1,8192),(5,1,32*8192)], 4*w*8192, 9); a('v_add_u32 v0, v0, v1')
    expr(a, 4, 8, [(5,1,64)], (w&1)*128, 9); expr(a, 1, 8, [(0,5,16)], 0, 9); a('v_xor_b32 v4, v4, v1')
    expr(a, 1, 8, [(5,1,1152)], (32*(w&1) + 4*(w>>1))*1152, 9); a('v_add_u32 v4, v4, v1')
    expr(a, 7, 8, [(4,1,32)], (w&1)*64, 9); expr(a, 1, 8, [(0,3,16)], 0, 9); a('v_xor_b32 v7, v7, v1')
    expr(a, 1, 8, [(3,1,1152),(4,1,8*1152),(5,1,64*1152)], (32*(w&1) + 4*(w>>1))*1152, 9); a('v_add_u32 v7, v7, v1')
    base = [(4,2,WREG),(0,1,8)]
    expr(a, 2, 8, [(1,1,32)], (8*(w>>1) + (w&1))*16, 9); expr(a, 1, 8, [(4,1,16),(2,2,64)], 0, 9); a('v_xor_b32 v2, v2, v1')
    expr(a, 1, 8, base + [(2,2,256)], L_W, 9); a('v_add_u32 v2, v2, v1\nv_xor_b32 v3, 64, v2')
    expr(a, 5, 8, [(1,1,16),(3,1,32)], 8*w*16, 9); expr(a, 1, 8, [(2,1,64),(4,1,128)], 0, 9); a('v_xor_b32 v5, v5, v1')
    expr(a, 1, 8, base + [(2,1,512)], L_W, 9); a('v_add_u32 v5, v5, v1\nv_xor_b32 v6, 64, v5')
    expr(a, 1, 8, [(0,6,16)], L_W + WREG*w, 9)
    a('s_lshl_b32 s62, s3, 8\ns_mul_i32 s63, s3, %d' % (128*1152))
    groups = [(m, c) for m in 'qkv' for c in range(9)] + [('o', u, tp) for u in range(4) for tp in range(2)] + [('h',)]
    def dma(gi):
        g = groups[gi]
        for p in range(4):
            a(f's_mov_b32 m0, {L_W + WREG*w + (5 + gi%4)*4096 + p*1024}')
            ro = 16*(p>>1) + 2*(p&1)
            if g[0] in 'qkv': off, sb, vr, srd = (64*g[1] + ro)*8192, 62, 0, {'q':SWQ,'k':SWK,'v':SWV}[g[0]]
            elif g[0] == 'o': off, sb, vr, srd = (64*(g[1]>>1) + 8*(g[1]&1) + ro)*1152 + 512*g[2], 63, 4, SWO
            else: off, sb, vr, srd = ro*1152 + 1024, 63, 7, SWO
            a(f's_add_u32 s54, s{sb}, {off}\nbuffer_load_dwordx4 v{vr}, s[{srd}:{srd+3}], s54 offen lds')
    for gi in range(3): dma(gi)
    for gi, g in enumerate(groups):
        left = min(len(groups)-1-gi, 2)
        a(f's_waitcnt vmcnt({4*left}) lgkmcnt(0)\ns_barrier')
        if gi == 0 and w == 0:
            a(f's_getreg_b32 s64, hwreg(HW_REG_XCC_ID,0,3)\ns_lshl_b32 s54, s64, 2\ns_add_u32 s54, s54, 128\nv_mov_b32 v8, 1\ns_mov_b64 exec, 1\nbuffer_atomic_add v8, off, {DBG}, s54 sc1\ns_mov_b64 exec, -1')
        if gi+3 < len(groups): dma(gi+3)
        if g[0] == 'h':
            lane(a, 8)
            expr(a, 0, 8, [(1,1,16)], 2*w*16, 9); expr(a, 2, 8, [(3,1,32),(4,1,64)], 0, 9); a('v_xor_b32 v0, v0, v2')
            expr(a, 2, 8, base + [(2,2,128)], L_W, 9); a('v_add_u32 v0, v0, v2')
        for T in range(2):
            if g[0] in 'qkv': key, ad, ex = (g[0], T, g[1]), 2+T, 0
            elif g[0] == 'o': key, ad, ex = ('o', g[1], 2*g[2]+T), 5+T, 0
            else: key, ad, ex = ('h', T, 0), 0, 512*T
            kind, idx = loc[key]
            dst = idx if kind == 'R' else (8 if idx < 10 else 16 + 8*(idx-10))
            for p in range(4): a(f'ds_read_b64_tr_b16 {X(dst+2*p,2)}, v{ad} offset:{(5+gi%4)*4096 + p*1024 + ex}')
            if kind == 'L' and idx < 10:
                a(f'ds_write_b128 v1, v[8:11] offset:{idx*2048}\nds_write_b128 v1, v[12:15] offset:{idx*2048+1024}')
    a('s_waitcnt lgkmcnt(0)\ns_barrier')
    for idx in range(10, 18):
        r = 16 + 8*(idx-10)
        a(f'ds_write_b128 v1, {V(r,4)} offset:{idx*2048}\nds_write_b128 v1, {V(r+4,4)} offset:{idx*2048+1024}')
    lane(a, 8)
    a('v_lshlrev_b32 v0, 4, v8\nv_lshrrev_b32 v6, 4, v8\nv_xor_b32 v6, v6, v8\nv_lshlrev_b32 v6, 3, v6')
    expr(a, 2, 8, [(1,1,0xAAAA)], 0x4444, 9)
    expr(a, 4, 8, [(4,2,256),(2,2,32),(0,1,16)], 0, 9)
    expr(a, 3, 8, [(1,1,128)], 'v4', 9)
    expr(a, 5, 8, [(0,4,32),(4,2,8)], 0, 9); expr(a, 10, 8, [(2,2,8)], 0, 9); a('v_xor_b32 v5, v5, v10')
    if w < 3: red_addr(a, w, 7, 8, 9)
    expr(a, 10, 8, [(2,2,2304),(0,1,1152),(1,1,64),(4,2,16)], 0, 9)
    a('s_waitcnt lgkmcnt(0)')
    for r, ch in ((MA, w), (M8, 8), (MB, 4+w)): a(f'buffer_load_dwordx4 {V(r,4)}, v10, s[{SM0}:{SM0+3}], 0 offen offset:{ch*128}')
    L = a.lab('RSB'); E = a.lab('RSE')
    a(f'''s_mov_b32 s54, 128
{L}:
buffer_load_dwordx4 v[8:11], off, {DBG}, s54 sc1
buffer_load_dwordx4 v[12:15], off, {DBG}, s54 offset:16 sc1
s_cmp_lt_u32 s49, 1
s_cbranch_scc1 {E}
s_sub_u32 s49, s49, 1
v_add3_u32 v16, v8, v9, v10
v_add3_u32 v16, v16, v11, v12
v_add3_u32 v16, v16, v13, v14
v_add_u32 v16, v16, v15
v_cmp_gt_u32 vcc, 32, v16
s_cbranch_vccnz {L}
{E}:
s_waitcnt vmcnt(0)
v_max3_u32 v16, v8, v9, v10
v_max3_u32 v16, v16, v11, v12
v_max3_u32 v16, v16, v13, v14
v_max_u32 v16, v16, v15
v_readfirstlane_b32 s64, v16''')
    if w == 3:
        L = a.lab('RF'); E = a.lab('RFE')
        a(f'''{L}:
buffer_load_dword v7, off, {DBG}, s57 sc1
s_cmp_lt_u32 s49, 1
s_cbranch_scc1 {E}
s_sub_u32 s49, s49, 1
v_readfirstlane_b32 s54, v7
s_and_b32 s59, s54, 0xff
s_cbranch_scc0 {L}
s_and_b32 s59, s54, 0xff00
s_cbranch_scc0 {L}
{E}:
s_waitcnt vmcnt(0)''')

def red_addr(a, w, d, ln, tmp):
    a('s_lshl_b32 s54, s60, 7\ns_add_u32 s54, s54, s59')
    expr(a, d, ln, [(3,3,PHEAD),(0,3,16)], 's54', tmp)
    if w == 2: a(f's_lshl_b32 s54, s55, 29\nv_or_b32 v{d}, s54, v{d}')

def zero(b): return [f'v_mov_b64 {V(b,2)}, 0', f'v_mov_b64 {V(b+2,2)}, 0']
def ldw(buf, idx): return [f'ds_read_b128 {V(buf,4)}, v1 offset:{idx*2048}', f'ds_read_b128 {V(buf+4,4)}, v1 offset:{idx*2048+1024}']
def cvt(d, s): return f'v_cvt_pk_bf16_f32 v{d}, v{s}, v{s+1}'
def padd(b): return f'v_pk_add_f32 {V(b,2)}, {V(b,2)}, {V(b+2,2)}'
DP = 'row_mask:0xf bank_mask:0xf'
DENSE = {
 'sx0': f'v_mfma_f32_16x16x32_bf16 {V(G4,4)}, {V(X0,4)}, {V(G0,4)}, 0',
 'sx1': f'v_mfma_f32_16x16x32_bf16 {V(G4,4)}, {V(X1,4)}, {V(G1,4)}, {V(G4,4)}',
 'sm0': f'v_mfma_f32_16x16x32_bf16 {V(M8,4)}, {V(G2,4)}, {V(G0,4)}, 0',
 'sm1': f'v_mfma_f32_16x16x32_bf16 {V(M8,4)}, {V(G3,4)}, {V(G1,4)}, {V(M8,4)}',
 'zx': f'v_mfma_f32_16x16x32_bf16 {V(G3,4)}, {V(G2,4)}, {V(G1,4)}, 0',
 'zm': f'v_mfma_f32_16x16x16_bf16 {V(G3,4)}, {V(G2,2)}, {V(G0,2)}, {V(G3,4)}',
 'px0': f'v_mfma_f32_16x16x32_bf16 {V(X0,4)}, {V(MA,4)}, {V(G1,4)}, 0',
 'px1': f'v_mfma_f32_16x16x32_bf16 {V(X1,4)}, {V(MB,4)}, {V(G1,4)}, 0',
 'pm0': f'v_mfma_f32_16x16x16_bf16 {V(X0,4)}, {V(G4+2,2)}, {V(G0,2)}, {V(X0,4)}',
 'pm1': f'v_mfma_f32_16x16x16_bf16 {V(X1,4)}, {V(G4+2,2)}, {V(G0+2,2)}, {V(X1,4)}',
}
def step(a, w, mode, l, loc, n, us, opt):
    sf = ' sc1' if mode else ''
    P = f'R{w}{mode}'
    ns = {i: [] for i in range(len(l))}; vs = {i: [] for i in range(len(l))}
    def put(d, s0, lst, per=1):
        for i, x in enumerate(lst): d[s0 + i//per].append(x)
    lidx = {i: loc[e[0]][1] for i, e in enumerate(l) if not isinstance(e, str) and e[3] is not None}
    pos = lambda ch: (ch&3)*2048 + (ch>>2)*1024
    add2 = lambda b: [f'v_add_f32 v{b}, v{b}, v{b+2}', f'v_add_f32 v{b+1}, v{b+1}, v{b+3}']
    tag = lambda r: f'v_and_or_b32 v{r}, v{r}, -2, s65'
    rdn = lambda i: f'ds_read_b128 {V(N[i],4)}, v0 offset:{pos(n[i])}'
    T = N[5]
    b1, b2 = opt.get('b1', 4), opt.get('b2', 10)
    ns[1].append(f's_cbranch_vccnz {P}P2')
    ns[b1] += ['s_barrier', rdn(0)]; ns[b1+1] += [rdn(1)]; ns[b1+2] += [rdn(2)]
    wrb = f'ds_write_b128 v0, {V(MB,4)} offset:{w*2048+1024}'
    chb = [f'v_max3_u32 v{T}, v{MB}, v{MB+1}, v{MB+2}', f'v_max_u32 v{T}, v{MB+3}, v{T}', f'v_cmp_lt_u32 vcc, s66, v{T}']
    ns[5] += ['s_waitcnt vmcnt(%d)' % (3*opt.get('f2', 0)), wrb]; vs[5] += chb[:2]; vs[6] += chb[2:]
    vs[7] += [f's_cbranch_vccnz {P}PB', f'{P}B:']
    ns[b2] += ['s_barrier', rdn(3)]; ns[b2+1] += [rdn(4)]; ns[b2+2] += [rdn(5)]
    put(ns, 21, [f'buffer_load_dwordx4 {V(X0+4*j,4)}, v3, {WS}, s47 offen offset:{j*1024} sc1' for j in range(2)])
    ns[7] += ldw(X0, lidx[13]); put(ns, 8, ldw(W0, lidx[14])); put(ns, 14, ldw(X0, lidx[20]) + ldw(W0, lidx[21]))
    ns[18] += [f'buffer_load_dwordx4 {V(MA,4)}, v0, {WS}, s47 offen offset:2048 sc1']
    ns[24] += [f'buffer_load_dwordx4 {V(MB,4)}, v0, {WS}, s47 offen offset:3072 sc1']
    ns[25] += [f'buffer_store_dwordx4 {V(G4,4)}, v0, {WS}, s48 offen' + opt.get('kmf', ' sc1')]
    ns[34] += ['s_add_u32 s48, s48, %d' % opt.get('kmi', 0x20000)]; ns[35] += ['s_add_u32 s47, s47, %d' % opt.get('kvi', 0x80000)]
    ns[20] += ['s_add_u32 s45, s45, 0x4000', 's_bitset0_b32 s45, 16']; ns[42] += ['s_add_u32 s44, s45, 8192', f's_add_u32 s43, s45, {w*2048}']
    ns[31] += ['s_xor_b32 s46, s45, 0x8000']
    ns[43] += ['s_and_b32 s65, s36, 1']
    if w < 3:
        ns[30] += [f'ds_read_b32 v{G4}, v0 offset:{L_PUB + 4*w}']
        vs[29] += [f'v_mov_b64 {V(G4+2,2)}, -1']
        ns[36] += [f'buffer_store_dword{"x2" if w == 2 else ""} {V(G4+2, 2 if w == 2 else 1)}, v{G4}, {WS}, s46 offen{sf}']
    else:
        vs[12].append('v_readfirstlane_b32 s54, v7')
        put(ns, 0, ['s_add_u32 s59, s36, 2', 's_min_u32 s59, s59, 63', 's_lshl_b32 s60, s59, 3', 's_lshr_b32 s61, s59, 2', 's_lshl_b32 s59, s59, 19', 's_add_u32 s59, s59, s58'], 2)
        vs[28].append(f'v_lshlrev_b32 v{G4}, 3, v0')
        ns[15] += ['s_lshr_b32 s54, s54, s60']; ns[16] += ['s_and_b32 s54, s54, 0xff']
        ns[3] += ['s_add_u32 s62, s59, 8192']
        ns[19] += ['s_cmp_gt_u32 s54, s61', f's_cbranch_scc0 {P}FL', f'{P}FR:']
        if opt.get('touch', 1):
            ns[30] += [f'buffer_load_dword v7, v{G4}, {WS}, s59 offen sc1 ;!']
            ns[31] += [f'buffer_load_dword v7, v{G4}, {WS}, s62 offen sc1 ;!']
        ns[36] += [f'buffer_load_dword v7, off, {DBG}, s57 sc1 ;!']
    put(ns, 22, ldw(W0, lidx[27]))
    qpost = lambda b, d: [f'v_mul_f32 v{b}, s50, v{b}', f'v_mul_f32 v{b+1}, s50, v{b+1}', f'v_fmac_f32 v{b}, s50, v{b+2}', f'v_fmac_f32 v{b+1}, s50, v{b+3}', cvt(d, b)]
    q0 = qpost(G0, G0); q1 = qpost(G1, G0+1)
    put(vs, 19, q0[:4]); vs[22].append(q0[4]); vs[23] += q1[:2]; put(vs, 24, q1[2:])
    put(ns, 28, ldw(W0, lidx[33]))
    ns[27].append(f'ds_write_b64 v5, {V(G0,2)} offset:{L_Q + w*512}')
    ns[32].append('s_barrier')
    put(ns, 32, [f'ds_read_b64_tr_b16 {V(G0+2*u,2)}, v6 offset:{L_Q + u*512}' for u in range(4)])
    put(vs, 32, add2(G2)); vs[34] += zero(W0); vs[35] += zero(W1)
    vs[36] += [cvt(G2, G2)]; vs[37] += add2(G3)[:1]; vs[38] += add2(G3)[1:] + [cvt(G2+1, G3)]; ns[39] += [f'ds_write_b64 v5, {V(G2,2)} offset:{L_K + w*512}']
    put(ns, 40, [f'ds_read_b128 {V(X0+4*j,4)}, v0 offset:{w*2048 + j*1024}' for j in range(2)])
    spost = lambda b: [f'v_add_f32_dpp v{b}, v{b+2}, v{b} quad_perm:[2,3,0,1] {DP}', f'v_add_f32_dpp v{b+1}, v{b+3}, v{b+1} quad_perm:[2,3,0,1] {DP}',
                       f'v_exp_f32_dpp v{b+2}, v{b} quad_perm:[0,1,0,1] {DP}', f'v_exp_f32_dpp v{b+3}, v{b+1} quad_perm:[0,1,0,1] {DP}']
    put(vs, 41, spost(G4) + [cvt(G4+2, G4+2)])
    ns[44].append('s_barrier')
    trk = [f'ds_read_b64_tr_b16 {V(G2+2*u,2)}, v6 offset:{L_K + u*512}' for u in range(4)]
    ns[45] += trk[:1]; ns[46] += trk[1:3]; ns[47] += trk[3:]
    ns[47].append(f'ds_write_b32 v0, v{G4+2} offset:{L_P + 4*w}')
    put(ns, 48, ldw(PA, lidx[54]) + ldw(PB, lidx[56]))
    vs[52] += [f'v_mov_b32 v{G0+1}, 0', f'v_mov_b32 v{G0+2}, 0']
    ns[52].append(f'ds_read_b128 {V(G2,4)}, v0 offset:{L_ONE}')
    ns[53] += ['s_barrier', f'ds_read_b128 {V(G1,4)}, v0 offset:{L_P}']
    put(vs, 54, spost(M8)); vs[58].append(cvt(G0, M8+2))
    put(ns, 54, ldw(PC, lidx[64]) + ldw(PA, lidx[65]) + ldw(PB, lidx[66]))
    ns[48].append('s_cmp_eq_u32 s36, 63'); ns[49].append('s_waitcnt vmcnt(%d)' % (2 if w < 3 else 2 + 2*opt.get('touch', 1)))
    vs[58] += add2(W0); vs[59] += add2(W1); vs[60] += [cvt(G4+2, W0), cvt(G4+3, W1)]
    ns[61].append(f's_cbranch_scc1 {P}TAIL')
    vs[61] += [cvt(G0+3, M8+2), zero(W0)[0]]; vs[62] += zero(G2)
    if opt.get('pk', 1): mul = [f'v_pk_mul_f32 {V(X0+2*i,2)}, {V(X0+2*i,2)}, {V(G3,2)} op_sel_hi:[1,0]' for i in range(4)]
    else: mul = [f'v_mul_f32 v{X0+i}, v{X0+i}, v{G3}' for i in range(8)]
    vs[63] += [f'v_rcp_f32 v{G3}, v{G3}', f'v_subrev_u32 v{G3+2}, s52, v{G3+2}', zero(W0)[1], f'v_cmp_le_u32 vcc, s53, v{G3+2}', f'{P}RJ:'] + mul + [f's_cbranch_vccnz {P}FB'] + [cvt(M8+i, X0+2*i) for i in range(4)]
    vs[63] += [f'ds_write_b128 v4, {V(M8,4)} offset:{L_Q + (w>>1)*1024 + (w&1)*128}', 's_waitcnt lgkmcnt(1)']
    vs[64] += zero(W1); vs[65] += zero(G1); vs[66] += zero(G0)
    ns[67] += ['s_barrier'] + [f'ds_read_b128 {V(X0+4*j,4)}, v3 offset:{L_Q + j*1024}' for j in range(2)]
    ro = [f'ds_read_b128 {V(r,4)}, v4 offset:{L_Q + (u>>1)*1024 + (u&1)*128}' for r, u in zip((MA, MB, G3), us)]
    ns[67] += ro
    put(ns, 70, ldw(PC, lidx[77]) + ldw(PA, lidx[79]))
    ns[74].append(f'ds_read_b64_tr_b16 {V(G4,2)}, v6 offset:{L_K + w*512}')
    put(vs, 71, add2(G0) + [cvt(G0, G0), tag(G0), cvt(G2, G2), tag(G2), cvt(G2+1, G2+2), cvt(G2+2, W0), cvt(G2+3, W0+2), cvt(W1, W1), tag(W1)])
    vs[81].append(cvt(W1+1, W1+2))
    vs[70].append(f'v_lshrrev_b32 v{M8}, 2, v0')
    ns[75].append(f'buffer_store_dword v{G0}, v{M8}, {WS}, s38 offen{sf}')
    ns[80].append(f'buffer_store_dwordx4 {V(G2,4)}, v0, {WS}, s37 offen{sf}')
    ns[77].append('s_add_u32 s36, s36, 1')
    RB = [G0, G1, G2, G3] if w < 2 else [X0, X1, PB, PB+4]
    rld = [f'buffer_load_dwordx4 {V(RB[i],4)}, v7, {WS}, s{39+i} offen sc1 ;!' for i in range(4)]
    BUD = 's_sub_u32 s49, s49, 1\ns_cselect_b32 s49, 0, s49\ns_cselect_b32 s66, -1, -2\ns_cselect_b32 s67, 1, 0'
    if w == 2:
        hs = opt.get('hs', 78)
        for i in range(4): ns[min(81, hs+i)].append(rld[i])
    pre1 = ldw(PA, lidx[0]) + ldw(PC, lidx[2]) + ldw(W0, lidx[4]); pre2 = ldw(PB, lidx[1]) + ldw(X0, lidx[3])
    a('\n'.join(pre1 + pre2 + zero(G4)) + '\ns_mov_b32 s66, -1')
    if opt.get('prof'): a('s_memtime s[70:71]\ns_waitcnt lgkmcnt(0)\ns_mov_b32 s72, s49')
    if opt.get('drop') is not None: a('s_mov_b32 s49, 0\ns_mov_b32 s53, -1')
    if opt.get('prof'):
        for k in range(6): a(f's_mov_b32 s{90+k}, 0\ns_mov_b32 s{76+2*k}, s70')
    f1, f2 = opt.get('f1', 0), opt.get('f2', 0)
    a(f's_waitcnt vmcnt(0)\n@loop {P}\n{P}TOP:\n@vmclear')
    if f1 and w < 3: a(f's_waitcnt vmcnt({4+3*f2})')
    a('\n'.join(zero(G0) + zero(G1) + zero(G2) + [zero(G3)[0]]))
    T = G3+2
    a(f'''s_waitcnt vmcnt({2+3*f2}) lgkmcnt(0)
ds_write_b128 v0, {V(MA,4)} offset:{w*2048}
v_max3_u32 v{T}, v{MA}, v{MA+1}, v{MA+2}
s_waitcnt vmcnt({1+3*f2})
v_max3_u32 v{T}, v{MA+3}, v{M8}, v{T}
v_max3_u32 v{T+1}, v{M8+1}, v{M8+2}, v{M8+3}
v_max_u32 v{T}, v{T+1}, v{T}
v_cmp_lt_u32 vcc, s66, v{T}
{P}STEP:''')
    vs[0].append(zero(G3)[1])
    st = opt.get('st', [])
    def stamp(p):
        if p in st: a(f's_memtime s[{76+2*st.index(p)}:{77+2*st.index(p)}] ;!')
    for i, e in enumerate(l):
        if isinstance(e, str): a(DENSE[e])
        else:
            kind, idx = loc[e[0]]
            a(f'v_smfmac_f32_16x16x64_bf16 {V(e[2],4)}, {V(e[1],4)}, {X(idx if kind == "R" else e[3], 8)}, v2')
        stamp(i)
        a('\n'.join(x for x in ns[i] + vs[i] if not any(x.startswith(p) for p in opt.get('drop', []))))
    a(f'{cvt(W1+2, G1)}\n{cvt(W1+3, G1+2)}\nbuffer_store_dwordx4 {V(W1,4)}, v0, {WS}, s37 offen offset:1024{sf}\n{P}HOP:')
    stamp('hop')
    if w < 2:
        for k in range(opt.get('d1', (4, 0))[w]): a('s_nop 3')
        a('\n'.join(rld))
    if w < 3: a(f'ds_read_b128 {V(MA,4)}, v0 offset:{L_SEL}\nds_read_b32 v{M8}, v0 offset:{L_PUB + 4*w}')
    a('\n'.join(pre1 + (pre2 if w != 2 else [])))
    if w < 3:
        if w == 2: a(f's_cmp_lg_u32 s55, 0\ns_cbranch_scc1 {P}NR')
        if f1:
            for k in range(opt.get('e1', (4, 4, 0))[w]): a('s_nop 3')
            a(f'{P}R1:\n' + '\n'.join(rld))
        a(f'{P}P1:\n{BUD}\n@vmclear')
        T = M8+1
        bo = lambda d, x, y: f'v_bitop3_b32 v{d}, v{x}, v{y}, s65 bitop3:0x7e'
        for i in range(4):
            a(f's_waitcnt vmcnt({3-i+4*f1})')
            if i == 0: stamp('ld')
            o2 = (RB[i], MA) if w < 2 else (MA, RB[i])
            a(f'v_mfma_f32_16x16x32_bf16 {V(MB,4)}, {V(o2[0],4)}, {V(o2[1],4)}, ' + ('0' if i == 0 else V(MB,4)))
            if i == 1: a(bo(T, RB[0], RB[1]))
            elif i == 3: a(bo(T+1, RB[2], RB[3]))
        a(f'v_bitop3_b32 v{T}, v{T}, v{T+1}, 1 bitop3:0xa8\nv_cmp_lt_u32 vcc, s67, v{T}')
        if opt.get('eb', 1): a(f's_cbranch_vccnz {P}R1')
        if w < 2: a(f'v_permlane32_swap_b32 v{MB}, v{MB+2}\nv_permlane32_swap_b32 v{MB+1}, v{MB+3}\n' + '\n'.join(add2(MB) + [cvt(MB, MB)]))
        else: a('\n'.join([f'v_add_f32_dpp v{MB+i}, v{MB+i}, v{MB+i} row_ror:8 {DP}' for i in range(4)] + [cvt(MB, MB), cvt(MB+1, MB+2)]))
        if not opt.get('eb', 1): a(f's_cbranch_vccnz {P}R1')
        a(f'buffer_store_dword{"x2" if w == 2 else ""} {V(MB, 2 if w == 2 else 1)}, v{M8}, {WS}, s45 offen{sf}\n{P}NR:')
        if w == 2: a('s_waitcnt vmcnt(1) lgkmcnt(0)\n' + '\n'.join(pre2))
    stamp('p1')
    a('s_barrier ;!')
    if st: a('s_memtime s[74:75] ;!')
    for k in range(opt.get('d2', 0)): a('s_nop 3')
    lda = [f'buffer_load_dwordx4 {V(MA,4)}, v0, {WS}, s43 offen sc1 ;!', f'buffer_load_dwordx4 {V(M8,4)}, v0, {WS}, s44 offen sc1 ;!', f'buffer_load_dwordx4 {V(MB,4)}, v0, {WS}, s43 offen offset:1024 sc1 ;!']
    if f2: a('\n'.join(lda[:2] + ['s_nop 3']*opt.get('d3', 2) + lda[2:] + ['s_nop 3']*opt.get('e2', 5) + [f'{P}P2:'] + lda + [BUD]))
    else: a('\n'.join([f'{P}P2:'] + lda[:2] + [BUD] + ['s_nop 3']*opt.get('d3', 2) + lda[2:]))
    a(f'@end {P}')
    if st:
        a('s_waitcnt lgkmcnt(0)')
        for k in range(len(st)): a(f's_sub_u32 s88, s74, s{76+2*k}\ns_add_u32 s{90+k}, s{90+k}, s88\ns_mov_b32 s{76+2*k}, s74')
    a(f'''s_branch {P}TOP
@reset
{P}PB:
buffer_load_dwordx4 {V(MB,4)}, v0, {WS}, s43 offen offset:1024 sc1 ;!
{BUD}
@vmclear
s_waitcnt vmcnt({f2})
{wrb}
''' + '\n'.join(chb) + f'''
s_cbranch_vccnz {P}PB
s_waitcnt lgkmcnt(0)
s_branch {P}B''')
    if w < 3 and not f1: a(f'@reset\n{P}R1:\n' + '\n'.join(rld) + f'\ns_branch {P}P1')
    a(f'''@reset
{P}TAIL:
s_waitcnt lgkmcnt(0)
ds_read_b64_tr_b16 {V(G4,2)}, v6 offset:{L_K + w*512}
buffer_store_dwordx4 {V(G4,4)}, v0, {WS}, s48 offen sc1''')
    if opt.get('prof'):
        a(f'''s_memtime s[74:75]
s_waitcnt lgkmcnt(0)
s_sub_u32 s74, s74, s70
s_sub_u32 s70, s70, s68
s_sub_u32 s72, s72, s49
v_mov_b32 v8, s74
v_mov_b32 v9, s70
v_mov_b32 v10, s72
v_mov_b32 v11, {mode}
s_lshl_b32 s54, s3, 6
s_add_u32 s54, s54, {0x200000 + w*16}
buffer_store_dwordx4 v[8:11], off, {WS}, s54
s_add_u32 s54, s54, 0x1000
v_mov_b32 v12, s90
v_mov_b32 v13, s91
v_mov_b32 v14, s92
v_mov_b32 v15, s93
buffer_store_dwordx4 v[12:15], off, {WS}, s54''')
    a('s_waitcnt vmcnt(0)\ns_endpgm')
    a(f'''@reset
{P}FB:
s_waitcnt vmcnt(0) lgkmcnt(0)
ds_write_b64 v6, {V(G4,2)} offset:{L_Q + w*512}
ds_read_b128 {V(G2,4)}, v0 offset:{L_ONE}
s_barrier''')
    for u in range(4): a(f'ds_read_b64 {V(X0+2*u,2)}, v6 offset:{L_Q + u*512}')
    t = G3
    a(f'''s_waitcnt lgkmcnt(0)
s_barrier
v_max3_f32 v{t}, v{X0}, v{X0+1}, v{X0+2}
v_max3_f32 v{t}, v{t}, v{X0+3}, v{X0+4}
v_max3_f32 v{t}, v{t}, v{X0+5}, v{X0+6}
v_max3_f32 v{t}, v{t}, v{X0+7}, v{M8}
v_max_f32 v{t}, v{t}, v{M8+1}
v_mov_b32 v{t+1}, v{t}
v_permlane16_swap_b32 v{t}, v{t+1}
v_max_f32 v{t}, v{t}, v{t+1}
v_mov_b32 v{t+1}, v{t}
v_permlane32_swap_b32 v{t}, v{t+1}
v_max_f32 v{t}, v{t}, v{t+1}''')
    rs = [X0+i for i in range(8)] + [M8, M8+1]
    for r in rs: a(f'v_sub_f32 v{r}, v{r}, v{t}')
    for r in rs: a(f'v_exp_f32_dpp v{r}, v{r} quad_perm:[0,1,0,1] {DP}')
    for u in range(4): a(cvt(G1+u, X0+2*u))
    a(cvt(G0, M8)); a(cvt(G0+3, M8))
    for e in ('zx', 'px0', 'px1', 'zm', 'pm0', 'pm1'): a(DENSE[e])
    a('\n'.join(zero(G2)) + f'\nv_rcp_f32 v{G3}, v{G3}\ns_mov_b64 vcc, 0\ns_nop 7\ns_branch {P}RJ')
    if w == 3:
        a(f'''@reset
{P}FL:
buffer_load_dword v7, off, {DBG}, s57 sc1
s_cmp_lt_u32 s49, 1
s_waitcnt vmcnt(0)
s_cbranch_scc1 {P}FR
s_sub_u32 s49, s49, 1
v_readfirstlane_b32 s54, v7
s_lshr_b32 s54, s54, s60
s_and_b32 s54, s54, 0xff
s_cmp_gt_u32 s54, s61
s_cbranch_scc1 {P}FR
s_branch {P}FL''')

def gen(opt):
    out = []
    a = Asm(); a('REC:')
    if opt.get('prof'): a('s_memtime s[68:69]')
    srds(a, [('ws',8),('dbg',12),('wq',SWQ),('wk',SWK),('wv',SWV),('wo',SWO),('mem0',SM0)])
    for w in range(1, 4): a(f's_cmp_eq_u32 s4, {w}\ns_cbranch_scc1 RECW{w}')
    out.append(a.text())
    for w in range(4):
        l, loc, n, us = plan(w)
        a = Asm(); a.uid = 100*w; a(f'RECW{w}:'); init(a, w, loc)
        if opt.get('mode') is None: a(f's_cmp_eq_u32 s64, 32\ns_cbranch_scc0 RECM{w}')
        elif opt['mode'] == 1: a(f's_branch RECM{w}')
        step(a, w, 0, l, loc, n, us, opt)
        a(f'@reset\nRECM{w}:'); step(a, w, 1, l, loc, n, us, opt)
        out.append(a.text())
        if opt.get('sim') == w:
            for t, x in a.sim(f'R{w}0TOP', f'R{w}0TAIL'): print(t, x)
    return '\n'.join(out)
```

```python
import sys
from common import *
import gen_rec
NAME = 'gated_mix__memory_aug_recurrent_mem_tr__ssm_conv_s4d__prompt_kernel'
def body(opt):
    roles = opt.get('roles', 'rac'); HS[0] = opt.get('hst', 0)
    a = Asm()
    a('''s_cmp_ge_u32 s2, 256
s_cbranch_scc1 KEND
v_lshrrev_b32 v1, 6, v0
s_and_b32 s5, s2, 7
v_readfirstlane_b32 s4, v1
s_lshr_b32 s3, s2, 3''')
    if opt.get('anyxcd'): a('s_lshr_b32 s5, s2, 5\ns_and_b32 s3, s2, 31')
    a('s_cmp_eq_u32 s5, 0\ns_cbranch_scc1 ' + ('REC' if 'r' in roles else 'KEND'))
    a('s_cmp_le_u32 s5, 4\ns_cbranch_scc1 ' + ('ATT' if 'a' in roles else 'KEND'))
    a('s_branch ' + ('CONV' if 'c' in roles else 'KEND'))
    a('KEND:\ns_endpgm')
    t = [a.text()]
    if 'a' in roles:
        import gen_att; t.append(gen_att.gen(opt))
    if 'c' in roles:
        import gen_conv; t.append(gen_conv.gen(opt))
    if 'r' in roles: t.append(gen_rec.gen(opt))
    t = '\n'.join(t)
    return t.replace('s_memtime', 's_memrealtime').replace('s_memrealtime s[68:69]', 's_memrealtime s[68:69]\ns_memtime s[88:89]').replace('s_memrealtime s[78:79]', 's_memrealtime s[78:79]\ns_memtime s[82:83]') if HS[0] == 1 else t
def full(opt):
    ref = open('cdna_kernels/' + NAME[:-7] + '.s.ref').read()
    head = ref[:ref.index(NAME + ':')].replace('grid=(4608,1,1) block=(256,1,1) lds=0', 'grid=(256,1,1) block=(256,1,1) lds=163840')
    tail = ref[ref.index('.section .rodata'):].replace('next_free_vgpr 256', 'next_free_vgpr 512')
    return head + NAME + ':\n' + body(opt) + '\ns_endpgm\n' + tail
if __name__ == '__main__':
    opt = eval(sys.argv[2]) if len(sys.argv) > 2 else {}
    open(sys.argv[1], 'w').write(full(opt))
```

```python
from asmlib import *
WS_PART = 0x0; PSLOT = 0x80000; PHEAD = 9344
WS_FLAG = 0x120000
WS_RING = 0x100000; RSLOT = 0x4000
WS_KV = 0x1000000
WS_Q = 0x3000000
WS_O = 0x4000000
WS_KM = 0x5000000
WS_B = 0x5900000
WS_G = 0x5C00000
WS_SIZE = 0x6000000
KA = dict(x=0, mem0=8, wq=16, wk=24, wv=32, wo=40, loga=64, aim=72, cr=80, ci=88, logdt=96, dsk=104, gate=112, out=120, dbg=128, ws=136)
SZ = dict(x=2359296, mem0=9216, wq=4718592, wk=4718592, wv=4718592, wo=4718592, loga=147456, aim=147456, cr=147456, ci=147456,
          logdt=1152, dsk=1152, gate=1152, out=2359296, dbg=256, ws=WS_SIZE)
def srds(a, lst):
    for n, r in lst: a(f's_load_dwordx2 s[{r}:{r+1}], s[0:1], {KA[n]}')
    for n, r in lst: a(f's_mov_b32 s{r+2}, {SZ[n]}\ns_mov_b32 s{r+3}, 0x20000')
    a('s_waitcnt lgkmcnt(0)')
    if HS[0]:
        r = dict(lst)['dbg']; a(f's_add_u32 s{r}, s{r}, 64\ns_addc_u32 s{r+1}, s{r+1}, 0\ns_mov_b32 s{r+2}, 192')
HS = [0]
def hstamps(a, regs):
    a('s_memtime s[78:79]\ns_load_dwordx2 s[98:99], s[0:1], 128\ns_waitcnt lgkmcnt(0)\ns_not_b32 s80, s68\nv_mov_b32 v12, 0\ns_mov_b64 exec, 1')
    for k, (i, r) in enumerate([(0, 80), (1, 68)] + regs): a(f'v_mov_b32 v{14+k}, s{r}\nglobal_atomic_umax v12, v{14+k}, s[98:99] offset:{4*i} sc1')
def lane(a, d): a(f'v_mbcnt_lo_u32_b32 v{d}, -1, 0\nv_mbcnt_hi_u32_b32 v{d}, -1, v{d}')
def expr(a, d, src, terms, const=0, tmp=None, st=101):
    a(f'v_mov_b32 v{d}, {const}')
    for lo, wd, mul in terms:
        a(f'v_bfe_u32 v{tmp}, v{src}, {lo}, {wd}')
        if mul & (mul-1) == 0: a(f'v_lshl_add_u32 v{d}, v{tmp}, {mul.bit_length()-1}, v{d}')
        else: a(f's_mov_b32 s{st}, {mul}\nv_mad_u32_u24 v{d}, v{tmp}, s{st}, v{d}')
```

```python
from common import *
import struct
N = [8+4*i for i in range(6)]; MA, MB, M8, X0, X1, W0, W1 = 32, 36, 40, 44, 48, 52, 56
G0, G1, G2, G3, G4 = 60, 64, 68, 72, 76
PA, PB, PC = N[0], N[2], N[4]
L_Q, L_K, L_SEL, L_PUB, L_P, L_ONE, L_W = 8192, 10240, 12288, 13312, 14336, 15360, 16384
WREG = 36864
WS, DBG, SWQ, SWK, SWV, SWO, SM0 = 's[8:11]', 's[12:15]', 16, 20, 24, 28, 32
def f2u(x): return struct.unpack('<I', struct.pack('<f', x))[0]

def plan(w):
    a_, b_ = w, 4+w; n = [c for c in range(8) if c not in (a_, b_)]
    us = [u for u in range(4) if u != w]
    Q = lambda T, c, A, buf=None: (('q', T, c), A, (G0, G1)[T], buf)
    K = lambda T, c, A, buf=None: (('k', T, c), A, (G2, G3)[T], buf)
    Vv = lambda T, c, A, buf=None: (('v', T, c), A, (W0, W1)[T], buf)
    acc = (G2, W0, W1, G1)
    O = lambda u, t, A, buf=None: (('o', u, t), A, acc[t], buf)
    s = {}
    l = [Q(0,a_,MA,PA), Q(1,a_,MA,PB), Q(0,8,M8,PC), Q(1,8,M8,X0), K(0,a_,MA,W0), K(1,a_,MA), K(0,8,M8), K(1,8,M8),
         Q(0,b_,MB), Q(1,b_,MB)]
    for T, i in ((0,0),(0,1),(0,2),(1,0),(1,1),(0,3),(0,4),(0,5),(1,2),(1,3),(1,4),(1,5)):
        l.append(Q(T, n[i], N[i], {13: X0, 14: W0, 20: X0, 21: W0}.get(len(l))))
    for T, i in ((0,8),(1,8),(0,0),(0,1),(0,2),(1,0),(0,3),(0,4),(0,5),(1,1),(1,2),(1,3),(1,4),(1,5)):
        l.append(K(T, b_ if i == 8 else n[i], MB if i == 8 else N[i], W0 if len(l) in (27, 33) else None))
    l += [Vv(0,8,M8), Vv(1,8,M8), 'sx0', 'sx1']
    for i in range(4): l += [Vv(0,n[i],N[i]), Vv(1,n[i],N[i])]
    l += [Vv(0,n[4],N[4]), Vv(0,n[5],N[5]), Vv(1,n[4],N[4]), 'sm0', 'sm1', Vv(1,n[5],N[5])]
    l += [Vv(0,a_,X0,PA), Vv(0,b_,X1), Vv(1,a_,X0,PB), Vv(1,b_,X1)]
    l += ['zx', 'px0', 'px1', 'zm', 'pm0', 'pm1']
    l += [O(w,0,M8,PC), O(w,1,M8,PA), O(w,2,M8,PB), O(w,3,M8)]
    l += [(('h',0,0), X0, G0, None), (('h',1,0), X1, G0, None)]
    oa = (MA, MB, G3)
    for t in range(4):
        for k in range(3): l.append(O(us[k], t, oa[k], {77: PC, 79: PA}.get(len(l))))
    loc = {}; nl = nr = 0
    for e in l:
        if isinstance(e, str): continue
        if e[3] is not None: loc[e[0]] = ('L', nl); nl += 1
        else: loc[e[0]] = ('R', 80+8*nr); nr += 1
    assert nl == 18 and nr == 54, (nl, nr)
    return l, loc, n, us

def init(a, w, loc):
    a('s_mul_i32 s54, s3, %d' % PHEAD)
    a(f's_add_u32 s37, s54, {WS_PART + w*2048}\ns_add_u32 s38, s54, {WS_PART + 8192 + 256*w}')
    for n in range(4): a(f's_mov_b32 s{39+n}, {WS_PART + n*8*PHEAD}')
    a(f's_mov_b32 s45, {WS_RING}\ns_lshl_b32 s54, s3, 14\ns_add_u32 s47, s54, {WS_KV + w*4096}\ns_add_u32 s58, s54, {WS_KV}')
    a(f's_lshl_b32 s54, s3, 12\ns_add_u32 s48, s54, {WS_KM + w*1024}\ns_mov_b32 s49, 400000\ns_mov_b32 s36, 0')
    sc = f2u(128**-0.5 * 1.4426950408889634)
    a(f's_mov_b32 s50, {sc}\ns_mov_b32 s51, {sc}\ns_mov_b32 s52, {(127-48)<<23}\ns_mov_b32 s53, {112<<23}\ns_lshl_b32 s57, s3, 2')
    lane(a, 8)
    if w < 2: a(f's_lshr_b32 s59, s3, 3\ns_lshl_b32 s59, s59, 11\ns_add_u32 s59, s59, {1024 if w == 0 else 0}\ns_and_b32 s60, s3, 7')
    elif w == 2: a('s_mov_b32 s59, 8192\ns_lshr_b32 s60, s3, 2\ns_and_b32 s55, s3, 3')
    if w < 3:
        red_addr(a, w, 7, 8, 9)
        a('s_and_b32 s54, s60, 1\ns_lshl_b32 s54, s54, 8\ns_lshr_b32 s61, s60, 1\ns_lshl_b32 s61, s61, 6\ns_add_u32 s54, s54, s61\ns_add_u32 s54, s54, s59')
        expr(a, 10, 8, [(1,1,512),(2,1,32),(0,1,16),(4,1,8),(5,1,4),(3,1,1<<30)], 's54', 9)
        if w == 2:
            a('s_lshr_b32 s54, s60, 2\ns_lshl_b32 s54, s54, 5\ns_bfe_u32 s61, s60, 0x10001\ns_lshl_b32 s61, s61, 9\ns_add_u32 s54, s54, s61\ns_and_b32 s61, s60, 1\ns_lshl_b32 s61, s61, 7\ns_add_u32 s54, s54, s61\ns_add_u32 s54, s54, 8192')
            expr(a, 10, 8, [(0,1,8),(1,1,256),(2,1,64),(4,1,16),(3,1,1<<30),(5,1,1<<28)], 's54', 9)
            a('v_xor_b32 v10, 0x10000000, v10')
            a('s_lshl_b32 s54, s55, 29\nv_or_b32 v10, s54, v10')
        a('v_mov_b64 v[12:13], -1\nv_mov_b64 v[14:15], -1')
        for sl in range(1):
            for n in range(4):
                a(f's_mov_b32 s54, {WS_PART + sl*PSLOT + n*8*PHEAD}\nbuffer_store_dwordx4 v[12:15], v7, {WS}, s54 offen sc1')
        for sl in range(4): a(f's_mov_b32 s54, {WS_RING + sl*RSLOT}\nbuffer_store_dword{"x2 v[12:13]" if w == 2 else " v12"}, v10, {WS}, s54 offen sc1')
        a(f'v_lshlrev_b32 v11, 4, v8\nds_write_b32 v11, v10 offset:{L_PUB + 4*w}')
    else:
        expr(a, 16, 8, [(0,2,2),(2,1,1)], 0, 9)
        a('v_and_b32 v9, 15, v8\nv_cmp_lt_u32 vcc, 7, v9\nv_cndmask_b32 v9, v9, v16, vcc\nv_mov_b32 v10, 0x3f80\nv_mov_b32 v11, 0x3f800000')
        for r in range(4):
            a(f'v_mov_b32 v{12+r}, 0\nv_cmp_eq_u32 vcc, {2*r}, v9\nv_cndmask_b32 v{12+r}, v{12+r}, v10, vcc\nv_cmp_eq_u32 vcc, {2*r+1}, v9\nv_cndmask_b32 v{12+r}, v{12+r}, v11, vcc')
        a(f'v_lshlrev_b32 v11, 4, v8\nds_write_b128 v11, v[12:15] offset:{L_SEL}')
        for r in range(4): a(f'v_mov_b32 v{16+r}, 0x3f803f80')
        a(f'ds_write_b128 v11, v[16:19] offset:{L_ONE}')
    expr(a, 0, 8, [(4,2,64)], (w&1)*16, 9); expr(a, 1, 8, [(0,4,16)], 0, 9); a('v_xor_b32 v0, v0, v1')
    expr(a, 1, 8, [(4,1,8192),(5,1,32*8192)], 4*w*8192, 9); a('v_add_u32 v0, v0, v1')
    expr(a, 4, 8, [(5,1,64)], (w&1)*128, 9); expr(a, 1, 8, [(0,5,16)], 0, 9); a('v_xor_b32 v4, v4, v1')
    expr(a, 1, 8, [(5,1,1152)], (32*(w&1) + 4*(w>>1))*1152, 9); a('v_add_u32 v4, v4, v1')
    expr(a, 7, 8, [(4,1,32)], (w&1)*64, 9); expr(a, 1, 8, [(0,3,16)], 0, 9); a('v_xor_b32 v7, v7, v1')
    expr(a, 1, 8, [(3,1,1152),(4,1,8*1152),(5,1,64*1152)], (32*(w&1) + 4*(w>>1))*1152, 9); a('v_add_u32 v7, v7, v1')
    base = [(4,2,WREG),(0,1,8)]
    expr(a, 2, 8, [(1,1,32)], (8*(w>>1) + (w&1))*16, 9); expr(a, 1, 8, [(4,1,16),(2,2,64)], 0, 9); a('v_xor_b32 v2, v2, v1')
    expr(a, 1, 8, base + [(2,2,256)], L_W, 9); a('v_add_u32 v2, v2, v1\nv_xor_b32 v3, 64, v2')
    expr(a, 5, 8, [(1,1,16),(3,1,32)], 8*w*16, 9); expr(a, 1, 8, [(2,1,64),(4,1,128)], 0, 9); a('v_xor_b32 v5, v5, v1')
    expr(a, 1, 8, base + [(2,1,512)], L_W, 9); a('v_add_u32 v5, v5, v1\nv_xor_b32 v6, 64, v5')
    expr(a, 1, 8, [(0,6,16)], L_W + WREG*w, 9)
    a('s_lshl_b32 s62, s3, 8\ns_mul_i32 s63, s3, %d' % (128*1152))
    groups = [(m, c) for m in 'qkv' for c in range(9)] + [('o', u, tp) for u in range(4) for tp in range(2)] + [('h',)]
    def dma(gi):
        g = groups[gi]
        for p in range(4):
            a(f's_mov_b32 m0, {L_W + WREG*w + (5 + gi%4)*4096 + p*1024}')
            ro = 16*(p>>1) + 2*(p&1)
            if g[0] in 'qkv': off, sb, vr, srd = (64*g[1] + ro)*8192, 62, 0, {'q':SWQ,'k':SWK,'v':SWV}[g[0]]
            elif g[0] == 'o': off, sb, vr, srd = (64*(g[1]>>1) + 8*(g[1]&1) + ro)*1152 + 512*g[2], 63, 4, SWO
            else: off, sb, vr, srd = ro*1152 + 1024, 63, 7, SWO
            a(f's_add_u32 s54, s{sb}, {off}\nbuffer_load_dwordx4 v{vr}, s[{srd}:{srd+3}], s54 offen lds')
    for gi in range(3): dma(gi)
    for gi, g in enumerate(groups):
        left = min(len(groups)-1-gi, 2)
        a(f's_waitcnt vmcnt({4*left}) lgkmcnt(0)\ns_barrier')
        if gi == 0 and w == 0:
            a(f's_getreg_b32 s64, hwreg(HW_REG_XCC_ID,0,3)\ns_lshl_b32 s54, s64, 2\ns_add_u32 s54, s54, 128\nv_mov_b32 v8, 1\ns_mov_b64 exec, 1\nbuffer_atomic_add v8, off, {DBG}, s54 sc1\ns_mov_b64 exec, -1')
        if gi+3 < len(groups): dma(gi+3)
        if g[0] == 'h':
            lane(a, 8)
            expr(a, 0, 8, [(1,1,16)], 2*w*16, 9); expr(a, 2, 8, [(3,1,32),(4,1,64)], 0, 9); a('v_xor_b32 v0, v0, v2')
            expr(a, 2, 8, base + [(2,2,128)], L_W, 9); a('v_add_u32 v0, v0, v2')
        for T in range(2):
            if g[0] in 'qkv': key, ad, ex = (g[0], T, g[1]), 2+T, 0
            elif g[0] == 'o': key, ad, ex = ('o', g[1], 2*g[2]+T), 5+T, 0
            else: key, ad, ex = ('h', T, 0), 0, 512*T
            kind, idx = loc[key]
            dst = idx if kind == 'R' else (8 if idx < 10 else 16 + 8*(idx-10))
            for p in range(4): a(f'ds_read_b64_tr_b16 {X(dst+2*p,2)}, v{ad} offset:{(5+gi%4)*4096 + p*1024 + ex}')
            if kind == 'L' and idx < 10:
                a(f'ds_write_b128 v1, v[8:11] offset:{idx*2048}\nds_write_b128 v1, v[12:15] offset:{idx*2048+1024}')
    a('s_waitcnt lgkmcnt(0)\ns_barrier')
    for idx in range(10, 18):
        r = 16 + 8*(idx-10)
        a(f'ds_write_b128 v1, {V(r,4)} offset:{idx*2048}\nds_write_b128 v1, {V(r+4,4)} offset:{idx*2048+1024}')
    lane(a, 8)
    a('v_lshlrev_b32 v0, 4, v8\nv_lshrrev_b32 v6, 4, v8\nv_xor_b32 v6, v6, v8\nv_lshlrev_b32 v6, 3, v6')
    expr(a, 2, 8, [(1,1,0xAAAA)], 0x4444, 9)
    expr(a, 4, 8, [(4,2,256),(2,2,32),(0,1,16)], 0, 9)
    expr(a, 3, 8, [(1,1,128)], 'v4', 9)
    expr(a, 5, 8, [(0,4,32),(4,2,8)], 0, 9); expr(a, 10, 8, [(2,2,8)], 0, 9); a('v_xor_b32 v5, v5, v10')
    if w < 3: red_addr(a, w, 7, 8, 9)
    expr(a, 10, 8, [(2,2,2304),(0,1,1152),(1,1,64),(4,2,16)], 0, 9)
    a('s_waitcnt lgkmcnt(0)')
    for r, ch in ((MA, w), (M8, 8), (MB, 4+w)): a(f'buffer_load_dwordx4 {V(r,4)}, v10, s[{SM0}:{SM0+3}], 0 offen offset:{ch*128}')
    L = a.lab('RSB'); E = a.lab('RSE')
    a(f'''s_mov_b32 s54, 128
{L}:
buffer_load_dwordx4 v[8:11], off, {DBG}, s54 sc1
buffer_load_dwordx4 v[12:15], off, {DBG}, s54 offset:16 sc1
s_cmp_lt_u32 s49, 1
s_cbranch_scc1 {E}
s_sub_u32 s49, s49, 1
v_add3_u32 v16, v8, v9, v10
v_add3_u32 v16, v16, v11, v12
v_add3_u32 v16, v16, v13, v14
v_add_u32 v16, v16, v15
v_cmp_gt_u32 vcc, 32, v16
s_cbranch_vccnz {L}
{E}:
s_waitcnt vmcnt(0)
v_max3_u32 v16, v8, v9, v10
v_max3_u32 v16, v16, v11, v12
v_max3_u32 v16, v16, v13, v14
v_max_u32 v16, v16, v15
v_readfirstlane_b32 s64, v16''')
    if w == 3:
        L = a.lab('RF'); E = a.lab('RFE')
        a(f'''{L}:
buffer_load_dword v7, off, {DBG}, s57 sc1
s_cmp_lt_u32 s49, 1
s_cbranch_scc1 {E}
s_sub_u32 s49, s49, 1
v_readfirstlane_b32 s54, v7
s_and_b32 s59, s54, 0xff
s_cbranch_scc0 {L}
s_and_b32 s59, s54, 0xff00
s_cbranch_scc0 {L}
{E}:
s_waitcnt vmcnt(0)''')

def red_addr(a, w, d, ln, tmp):
    a('s_lshl_b32 s54, s60, 7\ns_add_u32 s54, s54, s59')
    expr(a, d, ln, [(3,3,PHEAD),(0,3,16)], 's54', tmp)
    if w == 2: a(f's_lshl_b32 s54, s55, 29\nv_or_b32 v{d}, s54, v{d}')

def zero(b): return [f'v_mov_b64 {V(b,2)}, 0', f'v_mov_b64 {V(b+2,2)}, 0']
def ldw(buf, idx): return [f'ds_read_b128 {V(buf,4)}, v1 offset:{idx*2048}', f'ds_read_b128 {V(buf+4,4)}, v1 offset:{idx*2048+1024}']
def cvt(d, s): return f'v_cvt_pk_bf16_f32 v{d}, v{s}, v{s+1}'
def padd(b): return f'v_pk_add_f32 {V(b,2)}, {V(b,2)}, {V(b+2,2)}'
DP = 'row_mask:0xf bank_mask:0xf'
DENSE = {
 'sx0': f'v_mfma_f32_16x16x32_bf16 {V(G4,4)}, {V(X0,4)}, {V(G0,4)}, 0',
 'sx1': f'v_mfma_f32_16x16x32_bf16 {V(G4,4)}, {V(X1,4)}, {V(G1,4)}, {V(G4,4)}',
 'sm0': f'v_mfma_f32_16x16x32_bf16 {V(M8,4)}, {V(G2,4)}, {V(G0,4)}, 0',
 'sm1': f'v_mfma_f32_16x16x32_bf16 {V(M8,4)}, {V(G3,4)}, {V(G1,4)}, {V(M8,4)}',
 'zx': f'v_mfma_f32_16x16x32_bf16 {V(G3,4)}, {V(G2,4)}, {V(G1,4)}, 0',
 'zm': f'v_mfma_f32_16x16x16_bf16 {V(G3,4)}, {V(G2,2)}, {V(G0,2)}, {V(G3,4)}',
 'px0': f'v_mfma_f32_16x16x32_bf16 {V(X0,4)}, {V(MA,4)}, {V(G1,4)}, 0',
 'px1': f'v_mfma_f32_16x16x32_bf16 {V(X1,4)}, {V(MB,4)}, {V(G1,4)}, 0',
 'pm0': f'v_mfma_f32_16x16x16_bf16 {V(X0,4)}, {V(G4+2,2)}, {V(G0,2)}, {V(X0,4)}',
 'pm1': f'v_mfma_f32_16x16x16_bf16 {V(X1,4)}, {V(G4+2,2)}, {V(G0+2,2)}, {V(X1,4)}',
}
def step(a, w, mode, l, loc, n, us, opt):
    sf = ' sc1' if mode else ''
    P = f'R{w}{mode}'
    ns = {i: [] for i in range(len(l))}; vs = {i: [] for i in range(len(l))}
    def put(d, s0, lst, per=1):
        for i, x in enumerate(lst): d[s0 + i//per].append(x)
    lidx = {i: loc[e[0]][1] for i, e in enumerate(l) if not isinstance(e, str) and e[3] is not None}
    pos = lambda ch: (ch&3)*2048 + (ch>>2)*1024
    add2 = lambda b: [f'v_add_f32 v{b}, v{b}, v{b+2}', f'v_add_f32 v{b+1}, v{b+1}, v{b+3}']
    tag = lambda r: f'v_and_or_b32 v{r}, v{r}, -2, s65'
    rdn = lambda i: f'ds_read_b128 {V(N[i],4)}, v0 offset:{pos(n[i])}'
    T = N[5]
    b1, b2 = opt.get('b1', 4), opt.get('b2', 10)
    ns[1].append(f's_cbranch_vccnz {P}P2')
    ns[b1] += ['s_barrier', rdn(0)]; ns[b1+1] += [rdn(1)]; ns[b1+2] += [rdn(2)]
    wrb = f'ds_write_b128 v0, {V(MB,4)} offset:{w*2048+1024}'
    chb = [f'v_max3_u32 v{T}, v{MB}, v{MB+1}, v{MB+2}', f'v_max_u32 v{T}, v{MB+3}, v{T}', f'v_cmp_lt_u32 vcc, s66, v{T}']
    ns[5] += ['s_waitcnt vmcnt(%d)' % (3*opt.get('f2', 0)), wrb]; vs[5] += chb[:2]; vs[6] += chb[2:]
    vs[7] += [f's_cbranch_vccnz {P}PB', f'{P}B:']
    ns[b2] += ['s_barrier', rdn(3)]; ns[b2+1] += [rdn(4)]; ns[b2+2] += [rdn(5)]
    put(ns, 21, [f'buffer_load_dwordx4 {V(X0+4*j,4)}, v3, {WS}, s47 offen offset:{j*1024} sc1' for j in range(2)])
    ns[7] += ldw(X0, lidx[13]); put(ns, 8, ldw(W0, lidx[14])); put(ns, 14, ldw(X0, lidx[20]) + ldw(W0, lidx[21]))
    ns[18] += [f'buffer_load_dwordx4 {V(MA,4)}, v0, {WS}, s47 offen offset:2048 sc1']
    ns[24] += [f'buffer_load_dwordx4 {V(MB,4)}, v0, {WS}, s47 offen offset:3072 sc1']
    ns[25] += [f'buffer_store_dwordx4 {V(G4,4)}, v0, {WS}, s48 offen' + opt.get('kmf', ' sc1')]
    ns[34] += ['s_add_u32 s48, s48, %d' % opt.get('kmi', 0x20000)]; ns[35] += ['s_add_u32 s47, s47, %d' % opt.get('kvi', 0x80000)]
    ns[20] += ['s_add_u32 s45, s45, 0x4000', 's_bitset0_b32 s45, 16']; ns[42] += ['s_add_u32 s44, s45, 8192', f's_add_u32 s43, s45, {w*2048}']
    ns[31] += ['s_xor_b32 s46, s45, 0x8000']
    ns[43] += ['s_and_b32 s65, s36, 1']
    if w < 3:
        ns[30] += [f'ds_read_b32 v{G4}, v0 offset:{L_PUB + 4*w}']
        vs[29] += [f'v_mov_b64 {V(G4+2,2)}, -1']
        ns[36] += [f'buffer_store_dword{"x2" if w == 2 else ""} {V(G4+2, 2 if w == 2 else 1)}, v{G4}, {WS}, s46 offen{sf}']
    else:
        vs[12].append('v_readfirstlane_b32 s54, v7')
        put(ns, 0, ['s_add_u32 s59, s36, 2', 's_min_u32 s59, s59, 63', 's_lshl_b32 s60, s59, 3', 's_lshr_b32 s61, s59, 2', 's_lshl_b32 s59, s59, 19', 's_add_u32 s59, s59, s58'], 2)
        vs[28].append(f'v_lshlrev_b32 v{G4}, 3, v0')
        ns[15] += ['s_lshr_b32 s54, s54, s60']; ns[16] += ['s_and_b32 s54, s54, 0xff']
        ns[3] += ['s_add_u32 s62, s59, 8192']
        ns[19] += ['s_cmp_gt_u32 s54, s61', f's_cbranch_scc0 {P}FL', f'{P}FR:']
        if opt.get('touch', 1):
            ns[30] += [f'buffer_load_dword v7, v{G4}, {WS}, s59 offen sc1 ;!']
            ns[31] += [f'buffer_load_dword v7, v{G4}, {WS}, s62 offen sc1 ;!']
        ns[36] += [f'buffer_load_dword v7, off, {DBG}, s57 sc1 ;!']
    put(ns, 22, ldw(W0, lidx[27]))
    qpost = lambda b, d: [f'v_mul_f32 v{b}, s50, v{b}', f'v_mul_f32 v{b+1}, s50, v{b+1}', f'v_fmac_f32 v{b}, s50, v{b+2}', f'v_fmac_f32 v{b+1}, s50, v{b+3}', cvt(d, b)]
    q0 = qpost(G0, G0); q1 = qpost(G1, G0+1)
    put(vs, 19, q0[:4]); vs[22].append(q0[4]); vs[23] += q1[:2]; put(vs, 24, q1[2:])
    put(ns, 28, ldw(W0, lidx[33]))
    ns[27].append(f'ds_write_b64 v5, {V(G0,2)} offset:{L_Q + w*512}')
    ns[32].append('s_barrier')
    put(ns, 32, [f'ds_read_b64_tr_b16 {V(G0+2*u,2)}, v6 offset:{L_Q + u*512}' for u in range(4)])
    put(vs, 32, add2(G2)); vs[34] += zero(W0); vs[35] += zero(W1)
    vs[36] += [cvt(G2, G2)]; vs[37] += add2(G3)[:1]; vs[38] += add2(G3)[1:] + [cvt(G2+1, G3)]; ns[39] += [f'ds_write_b64 v5, {V(G2,2)} offset:{L_K + w*512}']
    put(ns, 40, [f'ds_read_b128 {V(X0+4*j,4)}, v0 offset:{w*2048 + j*1024}' for j in range(2)])
    spost = lambda b: [f'v_add_f32_dpp v{b}, v{b+2}, v{b} quad_perm:[2,3,0,1] {DP}', f'v_add_f32_dpp v{b+1}, v{b+3}, v{b+1} quad_perm:[2,3,0,1] {DP}',
                       f'v_exp_f32_dpp v{b+2}, v{b} quad_perm:[0,1,0,1] {DP}', f'v_exp_f32_dpp v{b+3}, v{b+1} quad_perm:[0,1,0,1] {DP}']
    put(vs, 41, spost(G4) + [cvt(G4+2, G4+2)])
    ns[44].append('s_barrier')
    trk = [f'ds_read_b64_tr_b16 {V(G2+2*u,2)}, v6 offset:{L_K + u*512}' for u in range(4)]
    ns[45] += trk[:1]; ns[46] += trk[1:3]; ns[47] += trk[3:]
    ns[47].append(f'ds_write_b32 v0, v{G4+2} offset:{L_P + 4*w}')
    put(ns, 48, ldw(PA, lidx[54]) + ldw(PB, lidx[56]))
    vs[52] += [f'v_mov_b32 v{G0+1}, 0', f'v_mov_b32 v{G0+2}, 0']
    ns[52].append(f'ds_read_b128 {V(G2,4)}, v0 offset:{L_ONE}')
    ns[53] += ['s_barrier', f'ds_read_b128 {V(G1,4)}, v0 offset:{L_P}']
    put(vs, 54, spost(M8)); vs[58].append(cvt(G0, M8+2))
    put(ns, 54, ldw(PC, lidx[64]) + ldw(PA, lidx[65]) + ldw(PB, lidx[66]))
    ns[48].append('s_cmp_eq_u32 s36, 63'); ns[49].append('s_waitcnt vmcnt(%d)' % (2 if w < 3 else 2 + 2*opt.get('touch', 1)))
    vs[58] += add2(W0); vs[59] += add2(W1); vs[60] += [cvt(G4+2, W0), cvt(G4+3, W1)]
    ns[61].append(f's_cbranch_scc1 {P}TAIL')
    vs[61] += [cvt(G0+3, M8+2), zero(W0)[0]]; vs[62] += zero(G2)
    if opt.get('pk', 1): mul = [f'v_pk_mul_f32 {V(X0+2*i,2)}, {V(X0+2*i,2)}, {V(G3,2)} op_sel_hi:[1,0]' for i in range(4)]
    else: mul = [f'v_mul_f32 v{X0+i}, v{X0+i}, v{G3}' for i in range(8)]
    vs[63] += [f'v_rcp_f32 v{G3}, v{G3}', f'v_subrev_u32 v{G3+2}, s52, v{G3+2}', zero(W0)[1], f'v_cmp_le_u32 vcc, s53, v{G3+2}', f'{P}RJ:'] + mul + [f's_cbranch_vccnz {P}FB'] + [cvt(M8+i, X0+2*i) for i in range(4)]
    vs[63] += [f'ds_write_b128 v4, {V(M8,4)} offset:{L_Q + (w>>1)*1024 + (w&1)*128}', 's_waitcnt lgkmcnt(1)']
    vs[64] += zero(W1); vs[65] += zero(G1); vs[66] += zero(G0)
    ns[67] += ['s_barrier'] + [f'ds_read_b128 {V(X0+4*j,4)}, v3 offset:{L_Q + j*1024}' for j in range(2)]
    ro = [f'ds_read_b128 {V(r,4)}, v4 offset:{L_Q + (u>>1)*1024 + (u&1)*128}' for r, u in zip((MA, MB, G3), us)]
    ns[67] += ro
    put(ns, 70, ldw(PC, lidx[77]) + ldw(PA, lidx[79]))
    ns[74].append(f'ds_read_b64_tr_b16 {V(G4,2)}, v6 offset:{L_K + w*512}')
    put(vs, 71, add2(G0) + [cvt(G0, G0), tag(G0), cvt(G2, G2), tag(G2), cvt(G2+1, G2+2), cvt(G2+2, W0), cvt(G2+3, W0+2), cvt(W1, W1), tag(W1)])
    vs[81].append(cvt(W1+1, W1+2))
    vs[70].append(f'v_lshrrev_b32 v{M8}, 2, v0')
    ns[75].append(f'buffer_store_dword v{G0}, v{M8}, {WS}, s38 offen{sf}')
    ns[80].append(f'buffer_store_dwordx4 {V(G2,4)}, v0, {WS}, s37 offen{sf}')
    ns[77].append('s_add_u32 s36, s36, 1')
    RB = [G0, G1, G2, G3] if w < 2 else [X0, X1, PB, PB+4]
    rld = [f'buffer_load_dwordx4 {V(RB[i],4)}, v7, {WS}, s{39+i} offen sc1 ;!' for i in range(4)]
    BUD = 's_sub_u32 s49, s49, 1\ns_cselect_b32 s49, 0, s49\ns_cselect_b32 s66, -1, -2\ns_cselect_b32 s67, 1, 0'
    if w == 2:
        hs = opt.get('hs', 78)
        for i in range(4): ns[min(81, hs+i)].append(rld[i])
    pre1 = ldw(PA, lidx[0]) + ldw(PC, lidx[2]) + ldw(W0, lidx[4]); pre2 = ldw(PB, lidx[1]) + ldw(X0, lidx[3])
    a('\n'.join(pre1 + pre2 + zero(G4)) + '\ns_mov_b32 s66, -1')
    if opt.get('prof'): a('s_memtime s[70:71]\ns_waitcnt lgkmcnt(0)\ns_mov_b32 s72, s49')
    if opt.get('drop') is not None: a('s_mov_b32 s49, 0\ns_mov_b32 s53, -1')
    if opt.get('prof'):
        for k in range(6): a(f's_mov_b32 s{90+k}, 0\ns_mov_b32 s{76+2*k}, s70')
    f1, f2 = opt.get('f1', 0), opt.get('f2', 0)
    a(f's_waitcnt vmcnt(0)\n@loop {P}\n{P}TOP:\n@vmclear')
    if f1 and w < 3: a(f's_waitcnt vmcnt({4+3*f2})')
    a('\n'.join(zero(G0) + zero(G1) + zero(G2) + [zero(G3)[0]]))
    T = G3+2
    a(f'''s_waitcnt vmcnt({2+3*f2}) lgkmcnt(0)
ds_write_b128 v0, {V(MA,4)} offset:{w*2048}
v_max3_u32 v{T}, v{MA}, v{MA+1}, v{MA+2}
s_waitcnt vmcnt({1+3*f2})
v_max3_u32 v{T}, v{MA+3}, v{M8}, v{T}
v_max3_u32 v{T+1}, v{M8+1}, v{M8+2}, v{M8+3}
v_max_u32 v{T}, v{T+1}, v{T}
v_cmp_lt_u32 vcc, s66, v{T}
{P}STEP:''')
    vs[0].append(zero(G3)[1])
    st = opt.get('st', [])
    def stamp(p):
        if p in st: a(f's_memtime s[{76+2*st.index(p)}:{77+2*st.index(p)}] ;!')
    for i, e in enumerate(l):
        if isinstance(e, str): a(DENSE[e])
        else:
            kind, idx = loc[e[0]]
            a(f'v_smfmac_f32_16x16x64_bf16 {V(e[2],4)}, {V(e[1],4)}, {X(idx if kind == "R" else e[3], 8)}, v2')
        stamp(i)
        a('\n'.join(x for x in ns[i] + vs[i] if not any(x.startswith(p) for p in opt.get('drop', []))))
    a(f'{cvt(W1+2, G1)}\n{cvt(W1+3, G1+2)}\nbuffer_store_dwordx4 {V(W1,4)}, v0, {WS}, s37 offen offset:1024{sf}\n{P}HOP:')
    stamp('hop')
    if w < 2:
        for k in range(opt.get('d1', (4, 0))[w]): a('s_nop 3')
        a('\n'.join(rld))
    if w < 3: a(f'ds_read_b128 {V(MA,4)}, v0 offset:{L_SEL}\nds_read_b32 v{M8}, v0 offset:{L_PUB + 4*w}')
    a('\n'.join(pre1 + (pre2 if w != 2 else [])))
    if w < 3:
        if w == 2: a(f's_cmp_lg_u32 s55, 0\ns_cbranch_scc1 {P}NR')
        if f1:
            for k in range(opt.get('e1', (4, 4, 0))[w]): a('s_nop 3')
            a(f'{P}R1:\n' + '\n'.join(rld))
        a(f'{P}P1:\n{BUD}\n@vmclear')
        T = M8+1
        bo = lambda d, x, y: f'v_bitop3_b32 v{d}, v{x}, v{y}, s65 bitop3:0x7e'
        for i in range(4):
            a(f's_waitcnt vmcnt({3-i+4*f1})')
            if i == 0: stamp('ld')
            o2 = (RB[i], MA) if w < 2 else (MA, RB[i])
            a(f'v_mfma_f32_16x16x32_bf16 {V(MB,4)}, {V(o2[0],4)}, {V(o2[1],4)}, ' + ('0' if i == 0 else V(MB,4)))
            if i == 1: a(bo(T, RB[0], RB[1]))
            elif i == 3: a(bo(T+1, RB[2], RB[3]))
        if w == 2 and mode:
            for i in range(4):
                for j in range(1, 4): a(f'v_bitop3_b32 v{T}, v{T}, v{RB[i]+j}, s65 bitop3:0xf6')
        a(f'v_bitop3_b32 v{T}, v{T}, v{T+1}, 1 bitop3:0xa8\nv_cmp_lt_u32 vcc, s67, v{T}')
        if opt.get('eb', 1): a(f's_cbranch_vccnz {P}R1')
        if w < 2: a(f'v_permlane32_swap_b32 v{MB}, v{MB+2}\nv_permlane32_swap_b32 v{MB+1}, v{MB+3}\n' + '\n'.join(add2(MB) + [cvt(MB, MB)]))
        else: a('\n'.join([f'v_add_f32_dpp v{MB+i}, v{MB+i}, v{MB+i} row_ror:8 {DP}' for i in range(4)] + [cvt(MB, MB), cvt(MB+1, MB+2)]))
        if not opt.get('eb', 1): a(f's_cbranch_vccnz {P}R1')
        a(f'buffer_store_dword{"x2" if w == 2 else ""} {V(MB, 2 if w == 2 else 1)}, v{M8}, {WS}, s45 offen{sf}\n{P}NR:')
        if w == 2: a('s_waitcnt vmcnt(1) lgkmcnt(0)\n' + '\n'.join(pre2))
    stamp('p1')
    a('s_barrier ;!')
    if st: a('s_memtime s[74:75] ;!')
    for k in range(opt.get('d2', 0)): a('s_nop 3')
    lda = [f'buffer_load_dwordx4 {V(MA,4)}, v0, {WS}, s43 offen sc1 ;!', f'buffer_load_dwordx4 {V(M8,4)}, v0, {WS}, s44 offen sc1 ;!', f'buffer_load_dwordx4 {V(MB,4)}, v0, {WS}, s43 offen offset:1024 sc1 ;!']
    if f2: a('\n'.join(lda[:2] + ['s_nop 3']*opt.get('d3', 2) + lda[2:] + ['s_nop 3']*opt.get('e2', 5) + [f'{P}P2:'] + lda + [BUD]))
    else: a('\n'.join([f'{P}P2:'] + lda[:2] + [BUD] + ['s_nop 3']*opt.get('d3', 2) + lda[2:]))
    a(f'@end {P}')
    if st and 'tl' in opt:
        n_ = len(st)
        a(f's_waitcnt lgkmcnt(0)\ns_sub_u32 s88, s36, {opt["tl"]}\ns_cmp_lt_u32 s88, {20//n_}\ns_cbranch_scc0 {P}TOP\ns_mul_i32 m0, s88, {n_}\ns_nop 0')
        for k in range(n_): a(f's_movreld_b32 s{16+k}, s{76+2*k}')
    elif st:
        a('s_waitcnt lgkmcnt(0)')
        for k in range(len(st)): a(f's_sub_u32 s88, s74, s{76+2*k}\ns_add_u32 s{90+k}, s{90+k}, s88\ns_mov_b32 s{76+2*k}, s74')
    a(f'''s_branch {P}TOP
@reset
{P}PB:
buffer_load_dwordx4 {V(MB,4)}, v0, {WS}, s43 offen offset:1024 sc1 ;!
{BUD}
@vmclear
s_waitcnt vmcnt({f2})
{wrb}
''' + '\n'.join(chb) + f'''
s_cbranch_vccnz {P}PB
s_waitcnt lgkmcnt(0)
s_branch {P}B''')
    if w < 3 and not f1: a(f'@reset\n{P}R1:\n' + '\n'.join(rld) + f'\ns_branch {P}P1')
    a(f'''@reset
{P}TAIL:
s_waitcnt lgkmcnt(0)
ds_read_b64_tr_b16 {V(G4,2)}, v6 offset:{L_K + w*512}
buffer_store_dwordx4 {V(G4,4)}, v0, {WS}, s48 offen sc1''')
    if opt.get('hst'): a(f's_mov_b32 s81, {mode+1}'); hstamps(a, 0, [(0,68),(13,82),(2,70),(3,78),(11,81)], w)
    elif opt.get('prof'):
        a(f'''s_memtime s[74:75]
s_waitcnt lgkmcnt(0)
s_sub_u32 s74, s74, s70
s_sub_u32 s70, s70, s68
s_sub_u32 s72, s72, s49
v_mov_b32 v8, s74
v_mov_b32 v9, s70
v_mov_b32 v10, s72
v_mov_b32 v11, {mode}
s_lshl_b32 s54, s3, 6
s_add_u32 s54, s54, {0x200000 + w*16}
buffer_store_dwordx4 v[8:11], off, {WS}, s54
s_add_u32 s54, s54, 0x1000
v_mov_b32 v12, s90
v_mov_b32 v13, s91
v_mov_b32 v14, s92
v_mov_b32 v15, s93
buffer_store_dwordx4 v[12:15], off, {WS}, s54''')
    if 'tl' in opt:
        a(f's_lshl_b32 s54, s3, 9\ns_add_u32 s54, s54, {0x210000 + w*128}')
        a(f'''s_memtime s[76:77]
s_memrealtime s[78:79]
s_mov_b32 s90, 0
s_mov_b32 s91, 0
s_mov_b32 s92, 0
s_waitcnt lgkmcnt(0)
{P}CAL:
s_memtime s[80:81]
s_memrealtime s[82:83]
s_waitcnt lgkmcnt(0)
s_sub_u32 s80, s80, s76
s_sub_u32 s82, s82, s78
s_add_u32 s90, s90, s80
s_add_u32 s91, s91, s82
s_add_u32 s92, s92, 1
s_cmp_lt_u32 s92, 256
s_cbranch_scc1 {P}CAL
v_mov_b32 v40, s76
v_mov_b32 v41, s78
v_mov_b32 v42, s90
v_mov_b32 v43, s91''')
        for k in range(20): a(f'v_mov_b32 v{20+k}, s{16+k}')
        for k in range(6): a(f'buffer_store_dwordx4 {V(20+4*k,4)}, off, {WS}, s54 offset:{16*k}')
    a('s_waitcnt vmcnt(0)\ns_endpgm')
    a(f'''@reset
{P}FB:
s_waitcnt vmcnt(0) lgkmcnt(0)
ds_write_b64 v6, {V(G4,2)} offset:{L_Q + w*512}
ds_read_b128 {V(G2,4)}, v0 offset:{L_ONE}
s_barrier''')
    for u in range(4): a(f'ds_read_b64 {V(X0+2*u,2)}, v6 offset:{L_Q + u*512}')
    t = G3
    a(f'''s_waitcnt lgkmcnt(0)
s_barrier
v_max3_f32 v{t}, v{X0}, v{X0+1}, v{X0+2}
v_max3_f32 v{t}, v{t}, v{X0+3}, v{X0+4}
v_max3_f32 v{t}, v{t}, v{X0+5}, v{X0+6}
v_max3_f32 v{t}, v{t}, v{X0+7}, v{M8}
v_max_f32 v{t}, v{t}, v{M8+1}
v_mov_b32 v{t+1}, v{t}
v_permlane16_swap_b32 v{t}, v{t+1}
v_max_f32 v{t}, v{t}, v{t+1}
v_mov_b32 v{t+1}, v{t}
v_permlane32_swap_b32 v{t}, v{t+1}
v_max_f32 v{t}, v{t}, v{t+1}''')
    rs = [X0+i for i in range(8)] + [M8, M8+1]
    for r in rs: a(f'v_sub_f32 v{r}, v{r}, v{t}')
    for r in rs: a(f'v_exp_f32_dpp v{r}, v{r} quad_perm:[0,1,0,1] {DP}')
    for u in range(4): a(cvt(G1+u, X0+2*u))
    a(cvt(G0, M8)); a(cvt(G0+3, M8))
    for e in ('zx', 'px0', 'px1', 'zm', 'pm0', 'pm1'): a(DENSE[e])
    a('\n'.join(zero(G2)) + f'\nv_rcp_f32 v{G3}, v{G3}\ns_mov_b64 vcc, 0\ns_nop 7\ns_branch {P}RJ')
    if w == 3:
        a(f'''@reset
{P}FL:
buffer_load_dword v7, off, {DBG}, s57 sc1
s_cmp_lt_u32 s49, 1
s_waitcnt vmcnt(0)
s_cbranch_scc1 {P}FR
s_sub_u32 s49, s49, 1
v_readfirstlane_b32 s54, v7
s_lshr_b32 s54, s54, s60
s_and_b32 s54, s54, 0xff
s_cmp_gt_u32 s54, s61
s_cbranch_scc1 {P}FR
s_branch {P}FL''')

def gen(opt):
    out = []
    a = Asm(); a('REC:')
    if opt.get('prof'): a('s_memtime s[68:69]')
    srds(a, [('ws',8),('dbg',12),('wq',SWQ),('wk',SWK),('wv',SWV),('wo',SWO),('mem0',SM0)])
    for w in range(1, 4): a(f's_cmp_eq_u32 s4, {w}\ns_cbranch_scc1 RECW{w}')
    out.append(a.text())
    for w in range(4):
        l, loc, n, us = plan(w)
        a = Asm(); a.uid = 100*w; a(f'RECW{w}:'); init(a, w, loc)
        if opt.get('mode') is None: a(f's_cmp_eq_u32 s64, 32\ns_cbranch_scc0 RECM{w}')
        elif opt['mode'] == 1: a(f's_branch RECM{w}')
        step(a, w, 0, l, loc, n, us, opt)
        a(f'@reset\nRECM{w}:'); step(a, w, 1, l, loc, n, us, opt)
        out.append(a.text())
        if opt.get('sim') == w:
            for t, x in a.sim(f'R{w}0TOP', f'R{w}0TAIL'): print(t, x)
    return '\n'.join(out)
```

```python
from asmlib import *
WS_PART = 0x0; PSLOT = 0x80000; PHEAD = 9344
WS_FLAG = 0x120000
WS_RING = 0x100000; RSLOT = 0x4000
WS_KV = 0x1000000
WS_Q = 0x3000000
WS_O = 0x4000000
WS_KM = 0x5000000
WS_B = 0x5900000
WS_G = 0x5C00000
WS_SIZE = 0x6000000
KA = dict(x=0, mem0=8, wq=16, wk=24, wv=32, wo=40, loga=64, aim=72, cr=80, ci=88, logdt=96, dsk=104, gate=112, out=120, dbg=128, ws=136)
SZ = dict(x=2359296, mem0=9216, wq=4718592, wk=4718592, wv=4718592, wo=4718592, loga=147456, aim=147456, cr=147456, ci=147456,
          logdt=1152, dsk=1152, gate=1152, out=2359296, dbg=256, ws=WS_SIZE)
def srds(a, lst):
    for n, r in lst: a(f's_load_dwordx2 s[{r}:{r+1}], s[0:1], {KA[n]}')
    for n, r in lst: a(f's_mov_b32 s{r+2}, {SZ[n]}\ns_mov_b32 s{r+3}, 0x20000')
    a('s_waitcnt lgkmcnt(0)')
    if HS[0]:
        r = dict(lst)['dbg']; a(f's_add_u32 s{r}, s{r}, 64\ns_addc_u32 s{r+1}, s{r+1}, 0\ns_mov_b32 s{r+2}, 192')
HS = [0]
def hstamps(a, wg, regs, w=None):
    if w: return
    L = a.lab('HS')
    a(f's_memtime s[78:79]\ns_load_dwordx2 s[98:99], s[0:1], 128\ns_lshl_b32 s80, s4, 8\ns_or_b32 s80, s80, s2\ns_cmp_eq_u32 s80, {wg}\ns_waitcnt lgkmcnt(0)\ns_cbranch_scc0 {L}\ns_sub_u32 s82, s82, s88\nv_mov_b32 v12, 0\ns_mov_b64 exec, 1')
    for k, (i, r) in enumerate(regs): a(f'v_mov_b32 v{14+k}, s{r}\nglobal_store_dword v12, v{14+k}, s[98:99] offset:{4*i} sc1')
    a(f'{L}:')
def lane(a, d): a(f'v_mbcnt_lo_u32_b32 v{d}, -1, 0\nv_mbcnt_hi_u32_b32 v{d}, -1, v{d}')
def expr(a, d, src, terms, const=0, tmp=None, st=101):
    a(f'v_mov_b32 v{d}, {const}')
    for lo, wd, mul in terms:
        a(f'v_bfe_u32 v{tmp}, v{src}, {lo}, {wd}')
        if mul & (mul-1) == 0: a(f'v_lshl_add_u32 v{d}, v{tmp}, {mul.bit_length()-1}, v{d}')
        else: a(f's_mov_b32 s{st}, {mul}\nv_mad_u32_u24 v{d}, v{tmp}, s{st}, v{d}')
```

```python
from common import *
import struct
N = [8+4*i for i in range(6)]; MA, MB, M8, X0, X1, W0, W1 = 32, 36, 40, 44, 48, 52, 56
G0, G1, G2, G3, G4 = 60, 64, 68, 72, 76
PA, PB, PC = N[0], N[2], N[4]
L_Q, L_K, L_SEL, L_PUB, L_P, L_ONE, L_W = 8192, 10240, 12288, 13312, 14336, 15360, 16384
WREG = 36864
WS, DBG, SWQ, SWK, SWV, SWO, SM0 = 's[8:11]', 's[12:15]', 16, 20, 24, 28, 32
def f2u(x): return struct.unpack('<I', struct.pack('<f', x))[0]

def plan(w):
    a_, b_ = w, 4+w; n = [c for c in range(8) if c not in (a_, b_)]
    us = [u for u in range(4) if u != w]
    Q = lambda T, c, A, buf=None: (('q', T, c), A, (G0, G1)[T], buf)
    K = lambda T, c, A, buf=None: (('k', T, c), A, (G2, G3)[T], buf)
    Vv = lambda T, c, A, buf=None: (('v', T, c), A, (W0, W1)[T], buf)
    acc = (G2, W0, W1, G1)
    O = lambda u, t, A, buf=None: (('o', u, t), A, acc[t], buf)
    s = {}
    st = {0: PA, 1: PB, 2: PC, 3: X0, 4: W0, 12: W0, 14: PC, 16: X0, 20: W0, 22: X0, 30: X0, 38: X0, 46: X0, 54: X0, 64: PC, 65: MA, 77: PC, 79: PA}
    l = []
    for c, A in ((a_, MA), (n[0], N[0]), (n[1], N[1]), (n[2], N[2]), (b_, MB), (8, M8)): l += [Q(0,c,A), Q(1,c,A), K(0,c,A), K(1,c,A)]
    for F in (Q, K):
        for T in range(2): l += [F(T, n[i], N[i]) for i in (3, 4, 5)]
    V2 = lambda c, A: [Vv(0,c,A), Vv(1,c,A)]
    l += V2(8,M8) + V2(b_,MB) + V2(n[3],N[3]) + ['sx0', 'sx1'] + V2(n[4],N[4]) + V2(n[5],N[5]) + V2(n[1],MB) + ['sm0', 'sm1'] + V2(a_,MA)
    l += [Vv(0,n[2],N[3]), Vv(0,n[0],N[0]), Vv(1,n[2],N[3]), Vv(1,n[0],N[0])]
    l += ['zx', 'px0', 'zm', 'px1', 'pm0', 'pm1']
    l += [O(w,t,M8) for t in range(4)]
    oa = (MA, MB, G3)
    for t in range(4):
        if t == 2: l += [(('h',0,0), X0, G0, None), (('h',1,0), X1, G0, None)]
        for k in range(3): l.append(O(us[k], t, oa[k]))
    for i, b in st.items(): l[i] = l[i][:3] + (b,)
    loc = {}; nl = nr = 0
    for e in l:
        if isinstance(e, str): continue
        if e[3] is not None: loc[e[0]] = ('L', nl); nl += 1
        else: loc[e[0]] = ('R', 80+8*nr); nr += 1
    assert nl == 18 and nr == 54, (nl, nr)
    return l, loc, n, us

def init(a, w, loc):
    a('s_mul_i32 s54, s3, %d' % PHEAD)
    a(f's_add_u32 s37, s54, {WS_PART + w*2048}\ns_add_u32 s38, s54, {WS_PART + 8192 + 256*w}')
    for n in range(4): a(f's_mov_b32 s{39+n}, {WS_PART + n*8*PHEAD}')
    a(f's_mov_b32 s45, {WS_RING}\ns_mov_b32 s46, {WS_RING+0x8000}\ns_lshl_b32 s54, s3, 14\ns_add_u32 s47, s54, {WS_KV + w*4096}\ns_add_u32 s58, s54, {WS_KV}')
    a(f's_lshl_b32 s54, s3, 12\ns_add_u32 s48, s54, {WS_KM + w*1024}\ns_mov_b32 s49, 400000\ns_mov_b32 s36, 0')
    sc = f2u(128**-0.5 * 1.4426950408889634)
    a(f's_mov_b32 s50, {sc}\ns_mov_b32 s51, {sc}\ns_mov_b32 s52, {(127-48)<<23}\ns_mov_b32 s53, {112<<23}\ns_lshl_b32 s57, s3, 2')
    lane(a, 8)
    if w < 2: a(f's_lshr_b32 s59, s3, 3\ns_lshl_b32 s59, s59, 11\ns_add_u32 s59, s59, {1024 if w == 0 else 0}\ns_and_b32 s60, s3, 7')
    elif w == 2: a('s_mov_b32 s59, 8192\ns_lshr_b32 s60, s3, 2\ns_and_b32 s55, s3, 3')
    if w < 3:
        red_addr(a, w, 7, 8, 9)
        a('s_and_b32 s54, s60, 1\ns_lshl_b32 s54, s54, 8\ns_lshr_b32 s61, s60, 1\ns_lshl_b32 s61, s61, 6\ns_add_u32 s54, s54, s61\ns_lshr_b32 s61, s3, 3\ns_lshl_b32 s61, s61, 10\ns_add_u32 s54, s54, s61\ns_add_u32 s54, s54, %d' % (4096 if w == 0 else 0))
        expr(a, 10, 8, [(1,1,512),(2,1,32),(0,1,16),(4,1,8),(5,1,4),(3,1,1<<30)], 's54', 9)
        if w == 2:
            a('s_lshr_b32 s54, s60, 2\ns_lshl_b32 s54, s54, 5\ns_bfe_u32 s61, s60, 0x10001\ns_lshl_b32 s61, s61, 9\ns_add_u32 s54, s54, s61\ns_and_b32 s61, s60, 1\ns_lshl_b32 s61, s61, 7\ns_add_u32 s54, s54, s61\ns_add_u32 s54, s54, 8192')
            expr(a, 10, 8, [(0,1,8),(1,1,256),(2,1,64),(4,1,16),(3,1,1<<30),(5,1,1<<28)], 's54', 9)
            a('v_xor_b32 v10, 0x10000000, v10')
            a('s_lshl_b32 s54, s55, 29\nv_or_b32 v10, s54, v10')
        a('v_mov_b64 v[12:13], -1\nv_mov_b64 v[14:15], -1')
        for sl in range(1):
            for n in range(4):
                a(f's_mov_b32 s54, {WS_PART + sl*PSLOT + n*8*PHEAD}\nbuffer_store_dwordx4 v[12:15], v7, {WS}, s54 offen sc1')
        for sl in range(4): a(f's_mov_b32 s54, {WS_RING + sl*RSLOT}\nbuffer_store_dword{"x2 v[12:13]" if w == 2 else " v12"}, v10, {WS}, s54 offen sc1')
        a(f'v_lshlrev_b32 v11, 4, v8\nds_write_b32 v11, v10 offset:{L_PUB + 4*w}')
    else:
        expr(a, 16, 8, [(0,2,2),(2,1,1)], 0, 9)
        a('v_and_b32 v9, 15, v8\nv_cmp_lt_u32 vcc, 7, v9\nv_cndmask_b32 v9, v9, v16, vcc\nv_mov_b32 v10, 0x3f80\nv_mov_b32 v11, 0x3f800000')
        for r in range(4):
            a(f'v_mov_b32 v{12+r}, 0\nv_cmp_eq_u32 vcc, {2*r}, v9\nv_cndmask_b32 v{12+r}, v{12+r}, v10, vcc\nv_cmp_eq_u32 vcc, {2*r+1}, v9\nv_cndmask_b32 v{12+r}, v{12+r}, v11, vcc')
        a(f'v_lshlrev_b32 v11, 4, v8\nds_write_b128 v11, v[12:15] offset:{L_SEL}')
        for r in range(4): a(f'v_mov_b32 v{16+r}, 0x3f803f80')
        a(f'ds_write_b128 v11, v[16:19] offset:{L_ONE}')
    expr(a, 0, 8, [(4,2,64)], (w&1)*16, 9); expr(a, 1, 8, [(0,4,16)], 0, 9); a('v_xor_b32 v0, v0, v1')
    expr(a, 1, 8, [(4,1,8192),(5,1,32*8192)], 4*w*8192, 9); a('v_add_u32 v0, v0, v1')
    expr(a, 4, 8, [(5,1,64)], (w&1)*128, 9); expr(a, 1, 8, [(0,5,16)], 0, 9); a('v_xor_b32 v4, v4, v1')
    expr(a, 1, 8, [(5,1,1152)], (32*(w&1) + 4*(w>>1))*1152, 9); a('v_add_u32 v4, v4, v1')
    expr(a, 7, 8, [(4,1,32)], (w&1)*64, 9); expr(a, 1, 8, [(0,3,16)], 0, 9); a('v_xor_b32 v7, v7, v1')
    expr(a, 1, 8, [(3,1,1152),(4,1,8*1152),(5,1,64*1152)], (32*(w&1) + 4*(w>>1))*1152, 9); a('v_add_u32 v7, v7, v1')
    base = [(4,2,WREG),(0,1,8)]
    expr(a, 2, 8, [(1,1,32)], (8*(w>>1) + (w&1))*16, 9); expr(a, 1, 8, [(4,1,16),(2,2,64)], 0, 9); a('v_xor_b32 v2, v2, v1')
    expr(a, 1, 8, base + [(2,2,256)], L_W, 9); a('v_add_u32 v2, v2, v1\nv_xor_b32 v3, 64, v2')
    expr(a, 5, 8, [(1,1,16),(3,1,32)], 8*w*16, 9); expr(a, 1, 8, [(2,1,64),(4,1,128)], 0, 9); a('v_xor_b32 v5, v5, v1')
    expr(a, 1, 8, base + [(2,1,512)], L_W, 9); a('v_add_u32 v5, v5, v1\nv_xor_b32 v6, 64, v5')
    expr(a, 1, 8, [(0,6,16)], L_W + WREG*w, 9)
    a('s_lshl_b32 s62, s3, 8\ns_mul_i32 s63, s3, %d' % (128*1152))
    groups = [(m, c) for m in 'qkv' for c in range(9)] + [('o', u, tp) for u in range(4) for tp in range(2)] + [('h',)]
    def dma(gi):
        g = groups[gi]
        for p in range(4):
            a(f's_mov_b32 m0, {L_W + WREG*w + (5 + gi%4)*4096 + p*1024}')
            ro = 16*(p>>1) + 2*(p&1)
            if g[0] in 'qkv': off, sb, vr, srd = (64*g[1] + ro)*8192, 62, 0, {'q':SWQ,'k':SWK,'v':SWV}[g[0]]
            elif g[0] == 'o': off, sb, vr, srd = (64*(g[1]>>1) + 8*(g[1]&1) + ro)*1152 + 512*g[2], 63, 4, SWO
            else: off, sb, vr, srd = ro*1152 + 1024, 63, 7, SWO
            a(f's_add_u32 s54, s{sb}, {off}\nbuffer_load_dwordx4 v{vr}, s[{srd}:{srd+3}], s54 offen lds')
    for gi in range(3): dma(gi)
    for gi, g in enumerate(groups):
        left = min(len(groups)-1-gi, 2)
        a(f's_waitcnt vmcnt({4*left}) lgkmcnt(0)\ns_barrier')
        if gi == 0 and w == 0:
            a(f's_getreg_b32 s64, hwreg(HW_REG_XCC_ID,0,3)\ns_lshl_b32 s54, s64, 2\ns_add_u32 s54, s54, 128\nv_mov_b32 v8, 1\ns_mov_b64 exec, 1\nbuffer_atomic_add v8, off, {DBG}, s54 sc1\ns_mov_b64 exec, -1')
        if gi+3 < len(groups): dma(gi+3)
        if g[0] == 'h':
            lane(a, 8)
            expr(a, 0, 8, [(1,1,16)], 2*w*16, 9); expr(a, 2, 8, [(3,1,32),(4,1,64)], 0, 9); a('v_xor_b32 v0, v0, v2')
            expr(a, 2, 8, base + [(2,2,128)], L_W, 9); a('v_add_u32 v0, v0, v2')
        for T in range(2):
            if g[0] in 'qkv': key, ad, ex = (g[0], T, g[1]), 2+T, 0
            elif g[0] == 'o': key, ad, ex = ('o', g[1], 2*g[2]+T), 5+T, 0
            else: key, ad, ex = ('h', T, 0), 0, 512*T
            kind, idx = loc[key]
            dst = idx if kind == 'R' else (8 if idx < 10 else 16 + 8*(idx-10))
            for p in range(4): a(f'ds_read_b64_tr_b16 {X(dst+2*p,2)}, v{ad} offset:{(5+gi%4)*4096 + p*1024 + ex}')
            if kind == 'L' and idx < 10:
                a(f'ds_write_b128 v1, v[8:11] offset:{idx*2048}\nds_write_b128 v1, v[12:15] offset:{idx*2048+1024}')
    a('s_waitcnt lgkmcnt(0)\ns_barrier')
    for idx in range(10, 18):
        r = 16 + 8*(idx-10)
        a(f'ds_write_b128 v1, {V(r,4)} offset:{idx*2048}\nds_write_b128 v1, {V(r+4,4)} offset:{idx*2048+1024}')
    lane(a, 8)
    a('v_lshlrev_b32 v0, 4, v8\nv_lshrrev_b32 v6, 4, v8\nv_xor_b32 v6, v6, v8\nv_lshlrev_b32 v6, 3, v6')
    expr(a, 2, 8, [(1,1,0xAAAA)], 0x4444, 9)
    expr(a, 4, 8, [(4,2,256),(2,2,32),(0,1,16)], 0, 9)
    expr(a, 3, 8, [(1,1,128)], 'v4', 9)
    expr(a, 5, 8, [(0,4,32),(4,2,8)], 0, 9); expr(a, 10, 8, [(2,2,8)], 0, 9); a('v_xor_b32 v5, v5, v10')
    if w < 3: red_addr(a, w, 7, 8, 9)
    expr(a, 10, 8, [(2,2,2304),(0,1,1152),(1,1,64),(4,2,16)], 0, 9)
    a('s_waitcnt lgkmcnt(0)')
    for r, ch in ((MA, w), (M8, 8), (MB, 4+w)): a(f'buffer_load_dwordx4 {V(r,4)}, v10, s[{SM0}:{SM0+3}], 0 offen offset:{ch*128}')
    L = a.lab('RSB'); E = a.lab('RSE')
    a(f'''s_mov_b32 s54, 128
{L}:
buffer_load_dwordx4 v[8:11], off, {DBG}, s54 sc1
buffer_load_dwordx4 v[12:15], off, {DBG}, s54 offset:16 sc1
s_cmp_lt_u32 s49, 1
s_cbranch_scc1 {E}
s_sub_u32 s49, s49, 1
v_add3_u32 v16, v8, v9, v10
v_add3_u32 v16, v16, v11, v12
v_add3_u32 v16, v16, v13, v14
v_add_u32 v16, v16, v15
v_cmp_gt_u32 vcc, 32, v16
s_cbranch_vccnz {L}
{E}:
s_waitcnt vmcnt(0)
v_max3_u32 v16, v8, v9, v10
v_max3_u32 v16, v16, v11, v12
v_max3_u32 v16, v16, v13, v14
v_max_u32 v16, v16, v15
v_readfirstlane_b32 s64, v16''')
    if w == 3:
        L = a.lab('RF'); E = a.lab('RFE')
        a(f'''{L}:
buffer_load_dword v7, off, {DBG}, s57 sc1
s_cmp_lt_u32 s49, 1
s_cbranch_scc1 {E}
s_sub_u32 s49, s49, 1
v_readfirstlane_b32 s54, v7
s_and_b32 s59, s54, 0xff
s_cbranch_scc0 {L}
s_and_b32 s59, s54, 0xff00
s_cbranch_scc0 {L}
{E}:
s_waitcnt vmcnt(0)''')

def red_addr(a, w, d, ln, tmp):
    a('s_lshl_b32 s54, s60, 7\ns_add_u32 s54, s54, s59')
    expr(a, d, ln, [(3,3,PHEAD),(0,3,16)], 's54', tmp)
    if w == 2: a(f's_lshl_b32 s54, s55, 29\nv_or_b32 v{d}, s54, v{d}')

def zero(b): return [f'v_mov_b64 {V(b,2)}, 0', f'v_mov_b64 {V(b+2,2)}, 0']
def ldw(buf, idx): return [f'ds_read_b128 {V(buf,4)}, v1 offset:{idx*2048}', f'ds_read_b128 {V(buf+4,4)}, v1 offset:{idx*2048+1024}']
def cvt(d, s): return f'v_cvt_pk_bf16_f32 v{d}, v{s}, v{s+1}'
def padd(b): return f'v_pk_add_f32 {V(b,2)}, {V(b,2)}, {V(b+2,2)}'
DP = 'row_mask:0xf bank_mask:0xf'
DENSE = {
 'sx0': f'v_mfma_f32_16x16x32_bf16 {V(G4,4)}, {V(MA,4)}, {V(G0,4)}, 0',
 'sx1': f'v_mfma_f32_16x16x32_bf16 {V(G4,4)}, {V(N[0],4)}, {V(G1,4)}, {V(G4,4)}',
 'sm0': f'v_mfma_f32_16x16x32_bf16 {V(M8,4)}, {V(G2,4)}, {V(G0,4)}, 0',
 'sm1': f'v_mfma_f32_16x16x32_bf16 {V(M8,4)}, {V(G3,4)}, {V(G1,4)}, {V(M8,4)}',
 'zx': f'v_mfma_f32_16x16x32_bf16 {V(G3,4)}, {V(G2,4)}, {V(G1,4)}, 0',
 'zm': f'v_mfma_f32_16x16x16_bf16 {V(G3,4)}, {V(G2,2)}, {V(G0,2)}, {V(G3,4)}',
 'px0': f'v_mfma_f32_16x16x32_bf16 {V(X0,4)}, {V(N[1],4)}, {V(G1,4)}, 0',
 'px1': f'v_mfma_f32_16x16x32_bf16 {V(X1,4)}, {V(N[2],4)}, {V(G1,4)}, 0',
 'pm0': f'v_mfma_f32_16x16x16_bf16 {V(X0,4)}, {V(G4+2,2)}, {V(G0,2)}, {V(X0,4)}',
 'pm1': f'v_mfma_f32_16x16x16_bf16 {V(X1,4)}, {V(G4+2,2)}, {V(G0+2,2)}, {V(X1,4)}',
}
def step(a, w, mode, l, loc, n, us, opt):
    sf = ' sc1' if mode else ''
    P = f'R{w}{mode}'
    ns = {i: [] for i in range(len(l))}; vs = {i: [] for i in range(len(l))}
    def put(d, s0, lst, per=1):
        for i, x in enumerate(lst): d[s0 + i//per].append(x)
    lidx = {i: loc[e[0]][1] for i, e in enumerate(l) if not isinstance(e, str) and e[3] is not None}
    pos = lambda ch: (ch&3)*2048 + (ch>>2)*1024
    add2 = lambda b: [f'v_add_f32 v{b}, v{b}, v{b+2}', f'v_add_f32 v{b+1}, v{b+1}, v{b+3}']
    tag = lambda r: f'v_and_or_b32 v{r}, v{r}, -2, s65'
    rdc = lambda r, c: f'ds_read_b128 {V(r,4)}, v0 offset:{pos(c)}'
    x2 = "x2" if w == 2 else ""
    b1, bw, b2 = opt.get('b1', 1), opt.get('bw', 13), opt.get('b2', 18)
    ns[b1] += ['s_barrier', rdc(N[0], n[0])]; ns[b1+1] += [rdc(N[1], n[1]), rdc(N[2], n[2])]
    T = N[3]
    wrb = f'ds_write_b128 v0, {V(MB,4)} offset:{w*2048+1024}'
    chb = [f'v_max3_u32 v{T}, v{MB}, v{MB+1}, v{MB+2}', f'v_max3_u32 v{T}, v{MB+3}, v{M8}, v{T}', f'v_max3_u32 v{T+1}, v{M8+1}, v{M8+2}, v{M8+3}', f'v_max_u32 v{T}, v{T+1}, v{T}', f'v_cmp_lt_u32 vcc, s66, v{T}']
    ns[bw] += [wrb]; vs[bw] += chb[:1]; vs[min(bw+1, 15)] += chb[1:3]; vs[15] += chb[3:] + [f's_cbranch_vccnz {P}PB', f'{P}B:']
    ns[b2] += ['s_barrier', rdc(N[3], n[3])]; ns[b2+1] += [rdc(N[4], n[4]), rdc(N[5], n[5])]
    for i, r, ad, of in ((4, MA, 3, 0), (8, N[0], 3, 1024), (12, N[1], 0, 2048), (16, N[2], 0, 3072)):
        ns[i].append(f'buffer_load_dwordx4 {V(r,4)}, v{ad}, {WS}, s47 offen offset:{of} sc1')
    for i, u in ((5, 12), (7, 14), (9, 16), (13, 20), (16, 22), (23, 30), (31, 38), (39, 46), (47, 54), (49, 64), (54, 65), (70, 77), (72, 79)): put(ns, i, ldw(l[u][3], lidx[u]))
    if w < 3:
        vs[3].append(f'v_mov_b64 {V(T,2)}, -1')
        ns[5].append(f'buffer_store_dword{x2} {V(T, 2 if w == 2 else 1)}, v{G4}, {WS}, s46 offen{sf}')
    ns[11].append(f'ds_read_b64_tr_b16 {V(G4,2)}, v6 offset:{L_K + w*512}')
    ns[opt.get('kms', 22)] += [f'buffer_store_dwordx4 {V(G4,4)}, v0, {WS}, s48 offen' + opt.get('kmf', ' sc1')]
    ns[41] += ['s_add_u32 s48, s48, %d' % opt.get('kmi', 0x20000)]; ns[25] += ['s_add_u32 s47, s47, %d' % opt.get('kvi', 0x80000)]
    ns[26] += ['s_add_u32 s45, s45, 0x4000']; ns[27] += ['s_bitset0_b32 s45, 16', 's_add_u32 s44, s45, 8192']; ns[28] += [f's_add_u32 s43, s45, {w*1024}', f's_add_u32 s63, s45, {4096 + w*1024}']
    ns[29] += ['s_xor_b32 s46, s45, 0x8000', 's_and_b32 s65, s36, 1']
    tch = opt.get('touch', 1)
    if w == 3:
        vs[3].append('v_readfirstlane_b32 s54, v7 ;!'); vs[11].append(f'v_lshlrev_b32 v7, 3, v0 ;!')
        ns[5] += ['s_lshr_b32 s54, s54, s60']; ns[6] += ['s_and_b32 s54, s54, 0xff']
        ns[9] += ['s_cmp_gt_u32 s54, s61']; ns[10] += [f's_cbranch_scc0 {P}FL', f'{P}FR:']
        if tch: ns[b2+2] += [f'buffer_load_dword v7, v7, {WS}, s59 offen sc1 ;!', f'buffer_load_dword v7, v7, {WS}, s62 offen sc1 ;!']
        ns[b2+3] += [f'buffer_load_dword v7, off, {DBG}, s57 sc1 ;!']
    put(vs, 22, zero(W0) + zero(W1))
    qpost = lambda b, d: [f'v_mul_f32 v{b}, s50, v{b}', f'v_mul_f32 v{b+1}, s50, v{b+1}', f'v_fmac_f32 v{b}, s50, v{b+2}', f'v_fmac_f32 v{b+1}, s50, v{b+3}', cvt(d, b)]
    put(vs, 28, qpost(G0, G0), 2); put(vs, 31, qpost(G1, G0+1), 2)
    vs[33].append(f'ds_write_b64 v5, {V(G0,2)} offset:{L_Q + w*512}')
    trq = [f'ds_read_b64_tr_b16 {V(G0+2*u,2)}, v6 offset:{L_Q + u*512}' for u in range(4)]
    ns[36] += ['s_barrier'] + trq[:1]; ns[37] += trq[1:3]; ns[38] += trq[3:]
    put(vs, 34, add2(G2) + [cvt(G2, G2)]); vs[37] += add2(G3); vs[38] += [cvt(G2+1, G3), f'ds_write_b64 v5, {V(G2,2)} offset:{L_K + w*512}']
    ns[35].append('s_waitcnt vmcnt(%d)' % (1 if w < 3 else 2 + 2*tch))
    ns[40].append(rdc(MB, n[1])); ns[42].append(rdc(N[3], n[2])); ns[45].append(rdc(MA, w)); ns[46].append(rdc(N[0], n[0]))
    spost = lambda b: [f'v_add_f32_dpp v{b}, v{b+2}, v{b} quad_perm:[2,3,0,1] {DP}', f'v_add_f32_dpp v{b+1}, v{b+3}, v{b+1} quad_perm:[2,3,0,1] {DP}',
                       f'v_exp_f32_dpp v{b+2}, v{b} quad_perm:[0,1,0,1] {DP}', f'v_exp_f32_dpp v{b+3}, v{b+1} quad_perm:[0,1,0,1] {DP}']
    sp = spost(G4); vs[45] += sp[:2]; put(vs, 46, sp[2:]); vs[48] += [cvt(G4+2, G4+2), f'ds_write_b32 v0, v{G4+2} offset:{L_P + 4*w}']
    trk = [f'ds_read_b64_tr_b16 {V(G2+2*u,2)}, v6 offset:{L_K + u*512}' for u in range(4)]
    ns[43] += ['s_barrier'] + trk[:1]; ns[44] += trk[1:3]; ns[45].insert(0, trk[3])
    vs[51] += [f'v_mov_b32 v{G0+1}, 0', f'v_mov_b32 v{G0+2}, 0']
    ns[51].append(f'ds_read_b128 {V(G2,4)}, v0 offset:{L_ONE}')
    ns[52] += ['s_barrier', f'ds_read_b128 {V(G1,4)}, v0 offset:{L_P}']
    sp = spost(M8); vs[53] += sp[:2]; put(vs, 54, sp[2:]); vs[56].append(cvt(G0, M8+2))
    ns[56].append('s_cmp_eq_u32 s36, 63')
    put(vs, 57, add2(W0)); vs[58].append(cvt(G4+2, W0)); vs[59] += add2(W1); vs[60] += [cvt(G4+3, W1), cvt(G0+3, M8+2)]
    ns[61].append(f's_cbranch_scc1 {P}TAIL')
    vs[61] += zero(G2); vs[62] += [f'v_subrev_u32 v{G3+2}, s52, v{G3+2}', f'v_rcp_f32 v{G3}, v{G3}']
    mul = [f'v_pk_mul_f32 {V(X0+2*i,2)}, {V(X0+2*i,2)}, {V(G3,2)} op_sel_hi:[1,0]' for i in range(4)]
    co = [cvt(M8+i, X0+2*i) for i in range(4)]
    vs[63] += [f'v_cmp_le_u32 vcc, s53, v{G3+2}'] + zero(W0) + [f'{P}RJ:'] + mul[:2] + [f's_cbranch_vccnz {P}FB'] + co[:2] + mul[2:] + co[2:]
    vs[63] += [f'ds_write_b128 v4, {V(M8,4)} offset:{L_Q + (w>>1)*1024 + (w&1)*128}', 's_waitcnt lgkmcnt(1)']
    vs[64] += zero(W1); vs[65] += zero(G1); vs[66] += zero(G0)
    ro = [f'ds_read_b128 {V(r,4)}, v4 offset:{L_Q + (u>>1)*1024 + (u&1)*128}' for r, u in zip((MA, MB, G3), us)]
    ns[opt.get('bo', 66)] += ['s_barrier'] + ro
    put(ns, 68, [f'ds_read_b128 {V(X0+4*j,4)}, v3 offset:{L_Q + j*1024}' for j in range(2)])
    put(vs, 72, [cvt(G2, G2), cvt(G2+1, G2+2), tag(G2)]); vs[75] += [cvt(G2+2, W0), cvt(G2+3, W0+2), f'buffer_store_dwordx4 {V(G2,4)}, v0, {WS}, s37 offen{sf}']
    put(vs, 77, add2(G0) + [cvt(G0, G0), tag(G0)]); vs[81] += [cvt(W1, W1), cvt(W1+1, W1+2), tag(W1)]
    vs[68].append(f'v_lshrrev_b32 v{M8}, 2, v0')
    ns[81].append(f'buffer_store_dword v{G0}, v{M8}, {WS}, s38 offen{sf}')
    if w < 3: ns[76].append(f'ds_read_b32 v{G4}, v0 offset:{L_PUB + 4*w}')
    ns[77].append('s_add_u32 s36, s36, 1')
    nx3 = ['s_add_u32 s59, s36, 2', 's_min_u32 s59, s59, 63', 's_lshl_b32 s60, s59, 3', 's_lshr_b32 s61, s59, 2', 's_lshl_b32 s59, s59, 19', 's_add_u32 s59, s59, s58', 's_add_u32 s62, s59, 8192'] if w == 3 else []
    RB = [G0, G1, G2, G3]
    rld = [f'buffer_load_dwordx4 {V(RB[i],4)}, v7, {WS}, s{39+i} offen sc1 ;!' for i in range(4)]
    BUD = 's_sub_u32 s49, s49, 1\ns_cselect_b32 s49, 0, s49\ns_cselect_b32 s66, -1, -2\ns_cselect_b32 s67, 1, 0'
    pre = ldw(PA, lidx[0]) + ldw(PB, lidx[1]) + ldw(PC, lidx[2]) + ldw(X0, lidx[3]) + ldw(W0, lidx[4])
    zs = zero(G0) + zero(G1) + zero(G2) + zero(G3)
    wra = f'ds_write_b128 v0, {V(MA,4)} offset:{w*2048}'
    poll = f'buffer_load_dwordx4 {V(MA,4)}, v0, {WS}, s43 offen sc1 ;!'
    ldb = [f'buffer_load_dwordx4 {V(MB,4)}, v0, {WS}, s63 offen sc1', f'buffer_load_dwordx4 {V(M8,4)}, v0, {WS}, s44 offen sc1']
    nop = lambda k: ['s_nop 3']*k
    lb = opt.get('lb')
    if lb is not None:
        ns[0].append('s_cmp_eq_u32 s36, 0'); ns[lb] += [f's_cbranch_scc1 {P}LB'] + ldb + [f'{P}LB:']
    spec = opt.get('spec', 0); ec = opt.get('ec')
    if ec is not None:
        T = G4+1
        ns[ec] += [f's_cbranch_scc1 {P}EW', 's_waitcnt vmcnt(0)', f'{P}EW:']
        ns[bw].insert(0, 's_waitcnt vmcnt(%d)' % sum(x.startswith('buffer_') for i in range(ec+2, bw) for x in ns[i] + vs[i]))
        c_ = [f'v_max3_u32 v{T}, v{MB}, v{MB+1}, v{MB+2} ;!', f'v_max3_u32 v{T}, v{MB+3}, v{M8}, v{T} ;!', f'v_max3_u32 v{T}, v{M8+1}, v{M8+2}, v{T} ;!', f'v_max_u32 v{T}, v{M8+3}, v{T} ;!', f'v_cmp_lt_u32 vcc, s66, v{T}']
        vs[ec] += c_[:2]; vs[ec+1] += c_[2:] + [f's_cbranch_vccnz {P}EC', f'{P}ER:']
    st = opt.get('st', [])
    def stamp(p):
        if p in st: a(f's_memtime s[{76+2*st.index(p)}:{77+2*st.index(p)}] ;!')
    a('\n'.join(pre + zs + nx3 + [wra, f'ds_read_b32 v{G4}, v0 offset:{L_PUB + 4*min(w, 2)}', 's_mov_b32 s66, -1']))
    if opt.get('prof'): a('s_memtime s[70:71]\ns_waitcnt lgkmcnt(0)\ns_mov_b32 s72, s49')
    if opt.get('drop') is not None: a('s_mov_b32 s49, 0\ns_mov_b32 s53, -1')
    if opt.get('prof'):
        for k in range(6): a(f's_mov_b32 s{90+k}, 0\ns_mov_b32 s{76+2*k}, s70')
    T = G4+1
    chk = f'v_max3_u32 v{T}, v{MA}, v{MA+1}, v{MA+2}\nv_max_u32 v{T}, v{MA+3}, v{T}\n{wra}\nv_cmp_lt_u32 vcc, s66, v{T}'
    a(f'''s_waitcnt vmcnt(0) lgkmcnt(0)
s_branch {P}STEP
@loop {P}
{P}TOP:
{poll}
{BUD}
{P}TW:
@vmclear
s_waitcnt vmcnt({opt.get('depth', 1)}) lgkmcnt(0)
{chk}
s_cbranch_vccnz {P}TOP''')
    a('\n'.join(['s_cmp_eq_u32 s36, s36'] if ec is not None else ldb if lb is None or opt.get('lb2') else []) + f'\n{P}STEP:')
    stamp('top')
    for i, e in enumerate(l):
        if isinstance(e, str): a(DENSE[e])
        else:
            kind, idx = loc[e[0]]
            a(f'v_smfmac_f32_16x16x64_bf16 {V(e[2],4)}, {V(e[1],4)}, {X(idx if kind == "R" else e[3], 8)}, v2')
        stamp(i)
        a('\n'.join(x for x in ns[i] + vs[i] if not any(x.startswith(p) for p in opt.get('drop', []))))
    sel = f'ds_read_b128 {V(M8,4)}, v0 offset:{L_SEL}'
    al = opt.get('al', 'ack0'); d1 = opt.get('d1', (0, 0, 0)); xb = opt.get('xb', 'early')
    a(f'{cvt(W1+2, G1)}\n{cvt(W1+3, G1+2)}')
    if w == 1 and al == 'pre': a('\n'.join(nop(d1[1]) + rld))
    else: a('\n'.join(nop(opt.get('bd', 0))))
    a(f'buffer_store_dwordx4 {V(W1,4)}, v0, {WS}, s37 offen offset:1024{sf}\n{P}HOP:')
    stamp('hop')
    def reduce(beh, mid=()):
        bo = lambda d, x, y: f'v_bitop3_b32 v{d}, v{x}, v{y}, s65 bitop3:0x7e'
        T = G0; T2 = G1
        for i in range(4):
            a(f's_waitcnt vmcnt({3-i+beh + (len(mid) if i else 0)})')
            if i == 0:
                stamp('ld')
                if w == 1 and xb == 'bar': a(f's_barrier ;!\n{P}P1X:')
            o2 = (RB[i], M8) if w < 2 else (M8, RB[i])
            a(f'v_mfma_f32_16x16x32_bf16 {V(MB,4)}, {V(o2[0],4)}, {V(o2[1],4)}, ' + ('0' if i == 0 else V(MB,4)))
            if i == 0: a('\n'.join(mid) + '\n@vmclear')
            if i == 1: a(bo(T, RB[0], RB[1]))
            elif i == 3: a(bo(T2, RB[2], RB[3]))
        if w == 2 and mode:
            for i in range(4):
                for j in range(1, 4): a(f'v_bitop3_b32 v{T}, v{T}, v{RB[i]+j}, s65 bitop3:0xf6')
        a(f'v_bitop3_b32 v{T}, v{T}, v{T2}, 1 bitop3:0xa8\nv_cmp_lt_u32 vcc, s67, v{T}\ns_cbranch_vccnz {P}R1')
        if w < 2: a(f'v_permlane32_swap_b32 v{MB}, v{MB+2}\nv_permlane32_swap_b32 v{MB+1}, v{MB+3}\n' + '\n'.join(add2(MB) + [cvt(MB, MB)]))
        else: a('\n'.join([f'v_add_f32_dpp v{MB+i}, v{MB+i}, v{MB+i} row_ror:8 {DP}' for i in range(4)] + [cvt(MB, MB), cvt(MB+1, MB+2)]))
        a(f'buffer_store_dword{x2} {V(MB, 2 if w == 2 else 1)}, v{G4}, {WS}, s45 offen{sf}')
        stamp('p1')
    def endst(to):
        if spec: to = a.lab(P + 'SP')
        if st: a('s_memtime s[74:75] ;!')
        if st and 'tl' in opt:
            n_ = len(st)
            a(f's_waitcnt lgkmcnt(0)\ns_sub_u32 s88, s36, {opt["tl"]}\ns_cmp_lt_u32 s88, {20//n_}\ns_cbranch_scc0 {to}\ns_mul_i32 m0, s88, {n_}\ns_nop 0')
            for k in range(n_): a(f's_movreld_b32 s{16+k}, s{76+2*k}')
        elif st:
            a('s_waitcnt lgkmcnt(0)')
            for k in range(len(st)): a(f's_sub_u32 s88, s74, s{76+2*k}\ns_add_u32 s{90+k}, s{90+k}, s88\ns_mov_b32 s{76+2*k}, s74')
        if not spec: a(f's_branch {to}'); return
        a(f'{to}:\n@reset\n' + '\n'.join([poll]*(spec-2) + nop(opt.get('d3', 0)) + [x + ' ;!' for x in ldb]) + f'\n{BUD}')
        for i in range(spec): a(f'@vmclear\ns_waitcnt vmcnt({spec+1-i}) lgkmcnt(0)\n{chk}\ns_cbranch_vccz {P}STEP')
        a(f's_branch {P}TOP')
    pf = opt.get('pf', (4, 0, 0, 0))
    def plain(k=0):
        a('s_barrier ;!'); stamp('y')
        sp_ = nop(opt.get('sp', 0)); r = pre[k:]; h = len(r)//2; z0 = opt.get('z0', 8)
        a('\n'.join(nop(opt.get('d2', 0)) + zs[:z0] + [poll] + r[:h] + zs[z0:4+z0//2] + sp_ + ([poll] if opt.get('depth', 1) > 1 else []) + r[h:] + zs[4+z0//2:] + sp_))
    if w == 1:
        if al[:3] == 'ack': a('s_waitcnt vmcnt(%s)' % (al[3:] or 2))
        if al != 'pre': a('\n'.join(nop(d1[1]) + pre[:pf[1]] + rld))
        a(f'{sel}\n{BUD}\n@vmclear\n{P}P1:'); reduce(1 if al == 'pre' else 0); plain(pf[1]); a(f'@end {P}'); endst(f'{P}TOP')
    elif w == 3:
        a('\n'.join(nx3))
        if opt.get('clk'): a(f's_memtime s[90:91]\ns_memrealtime s[92:93]\ns_lshl_b32 s94, s3, 7\ns_add_u32 s94, s94, s36\ns_lshl_b32 s94, s94, 3\ns_add_u32 s94, s94, 0x220000\ns_waitcnt lgkmcnt(0)\nv_mov_b32 v{G0}, s90\nv_mov_b32 v{G0+1}, s92\nbuffer_store_dwordx2 {V(G0,2)}, off, {WS}, s94')
        if xb == 'bar': a('s_barrier ;!')
        plain(); a(f'@end {P}'); endst(f'{P}TOP')
    elif xb == 'early':
        if w == 2: a(f's_cmp_lg_u32 s55, 0\ns_cbranch_scc1 {P}NQ')
        a(f'{sel}\n{BUD}\ns_waitcnt vmcnt(%d)' % (0 if w == 0 else opt.get('ah', 0)))
        a('\n'.join(nop(d1[w]) + pre[:pf[w]] + rld + ['@vmclear', f'{P}P1:'])); reduce(0); plain(pf[w]); a(f'@end {P}'); endst(f'{P}TOP')
    else:
        if w == 2: a(f's_cmp_lg_u32 s55, 0\ns_cbranch_scc1 {P}NQ')
        a('\n'.join([sel] + pre + [BUD]))
        if xb == 'ack': a('s_waitcnt vmcnt(%d)' % (0 if w == 0 else 1))
        if xb == 'bar': a('s_barrier ;!')
        a('\n'.join(nop(d1[w]) + rld + ['s_barrier ;!'])); stamp('y')
        a('\n'.join(nop(opt.get('d2', 0)) + [poll, '@vmclear', f'{P}P1:'])); reduce(1, [poll] if opt.get('depth', 1) > 1 else [])
        a('\n'.join(zs) + f'\n@end {P}'); endst(f'{P}TW')
    T = N[3]
    a(f'''@reset
{P}PB:
{ldb[0]} ;!
{ldb[1]} ;!
{BUD}
@vmclear
s_waitcnt vmcnt({opt.get('pbd', 0)})
''' + '\n'.join(chb) + f'''
{wrb}
s_cbranch_vccnz {P}PB
s_waitcnt lgkmcnt(0)
s_branch {P}B''')
    if ec is not None: a(f'@reset\n{P}EC:\n{ldb[0]} ;!\n{ldb[1]} ;!\ns_branch {P}ER')
    if w < 3: a(f'@reset\n{P}R1:\n' + '\n'.join(rld) + f'\n{BUD}\ns_waitcnt vmcnt(0)\ns_branch {P}P1' + ('X' if w == 1 and xb == 'bar' else ''))
    if w == 2:
        a(f'@reset\n{P}NQ:')
        if xb == 'bar': a('s_barrier ;!')
        plain(); endst(f'{P}TOP')
    a(f'''@reset
{P}TAIL:
s_waitcnt lgkmcnt(0)
ds_read_b64_tr_b16 {V(G4,2)}, v6 offset:{L_K + w*512}
buffer_store_dwordx4 {V(G4,4)}, v0, {WS}, s48 offen sc1''')
    if opt.get('hst'): a(f's_mov_b32 s81, {mode+1}'); hstamps(a, 0, [(0,68),(13,82),(2,70),(3,78),(11,81)], w)
    elif opt.get('prof'):
        a(f'''s_memtime s[74:75]
s_waitcnt lgkmcnt(0)
s_sub_u32 s74, s74, s70
s_sub_u32 s70, s70, s68
s_sub_u32 s72, s72, s49
v_mov_b32 v8, s74
v_mov_b32 v9, s70
v_mov_b32 v10, s72
v_mov_b32 v11, {mode}
s_lshl_b32 s54, s3, 6
s_add_u32 s54, s54, {0x200000 + w*16}
buffer_store_dwordx4 v[8:11], off, {WS}, s54
s_add_u32 s54, s54, 0x1000
v_mov_b32 v12, s90
v_mov_b32 v13, s91
v_mov_b32 v14, s92
v_mov_b32 v15, s93
buffer_store_dwordx4 v[12:15], off, {WS}, s54''')
    if 'tl' in opt:
        a(f's_lshl_b32 s54, s3, 9\ns_add_u32 s54, s54, {0x210000 + w*128}')
        a(f'''s_memtime s[76:77]
s_memrealtime s[78:79]
s_mov_b32 s90, 0
s_mov_b32 s91, 0
s_mov_b32 s92, 0
s_waitcnt lgkmcnt(0)
{P}CAL:
s_memtime s[80:81]
s_memrealtime s[82:83]
s_waitcnt lgkmcnt(0)
s_sub_u32 s80, s80, s76
s_sub_u32 s82, s82, s78
s_add_u32 s90, s90, s80
s_add_u32 s91, s91, s82
s_add_u32 s92, s92, 1
s_cmp_lt_u32 s92, 256
s_cbranch_scc1 {P}CAL
v_mov_b32 v40, s76
v_mov_b32 v41, s78
v_mov_b32 v42, s90
v_mov_b32 v43, s91''')
        for k in range(20): a(f'v_mov_b32 v{20+k}, s{16+k}')
        for k in range(6): a(f'buffer_store_dwordx4 {V(20+4*k,4)}, off, {WS}, s54 offset:{16*k}')
    a('s_waitcnt vmcnt(0)\ns_endpgm')
    a(f'''@reset
{P}FB:
s_waitcnt vmcnt(0) lgkmcnt(0)
ds_write_b64 v6, {V(G4,2)} offset:{L_Q + w*512}
ds_read_b128 {V(G2,4)}, v0 offset:{L_ONE}
s_barrier''')
    for u in range(4): a(f'ds_read_b64 {V(X0+2*u,2)}, v6 offset:{L_Q + u*512}')
    t = G3
    a(f'''s_waitcnt lgkmcnt(0)
s_barrier
v_max3_f32 v{t}, v{X0}, v{X0+1}, v{X0+2}
v_max3_f32 v{t}, v{t}, v{X0+3}, v{X0+4}
v_max3_f32 v{t}, v{t}, v{X0+5}, v{X0+6}
v_max3_f32 v{t}, v{t}, v{X0+7}, v{M8}
v_max_f32 v{t}, v{t}, v{M8+1}
v_mov_b32 v{t+1}, v{t}
v_permlane16_swap_b32 v{t}, v{t+1}
v_max_f32 v{t}, v{t}, v{t+1}
v_mov_b32 v{t+1}, v{t}
v_permlane32_swap_b32 v{t}, v{t+1}
v_max_f32 v{t}, v{t}, v{t+1}''')
    rs = [X0+i for i in range(8)] + [M8, M8+1]
    for r in rs: a(f'v_sub_f32 v{r}, v{r}, v{t}')
    for r in rs: a(f'v_exp_f32_dpp v{r}, v{r} quad_perm:[0,1,0,1] {DP}')
    for u in range(4): a(cvt(G1+u, X0+2*u))
    a(cvt(G0, M8)); a(cvt(G0+3, M8))
    for e in ('zx', 'px0', 'px1', 'zm', 'pm0', 'pm1'): a(DENSE[e])
    a('\n'.join(zero(G2)) + f'\nv_rcp_f32 v{G3}, v{G3}\ns_mov_b64 vcc, 0\ns_nop 7\ns_branch {P}RJ')
    if w == 3:
        a(f'''@reset
{P}FL:
buffer_load_dword v7, off, {DBG}, s57 sc1
s_cmp_lt_u32 s49, 1
s_waitcnt vmcnt(0)
s_cbranch_scc1 {P}FR
s_sub_u32 s49, s49, 1
v_readfirstlane_b32 s54, v7
s_lshr_b32 s54, s54, s60
s_and_b32 s54, s54, 0xff
s_cmp_gt_u32 s54, s61
s_cbranch_scc1 {P}FR
s_branch {P}FL''')

def gen(opt):
    out = []
    a = Asm(); a('REC:')
    if opt.get('prof'): a('s_memtime s[68:69]')
    srds(a, [('ws',8),('dbg',12),('wq',SWQ),('wk',SWK),('wv',SWV),('wo',SWO),('mem0',SM0)])
    for w in range(1, 4): a(f's_cmp_eq_u32 s4, {w}\ns_cbranch_scc1 RECW{w}')
    out.append(a.text())
    for w in range(4):
        l, loc, n, us = plan(w)
        a = Asm(); a.uid = 100*w; a(f'RECW{w}:'); init(a, w, loc)
        if opt.get('mode') is None: a(f's_cmp_eq_u32 s64, 32\ns_cbranch_scc0 RECM{w}')
        elif opt['mode'] == 1: a(f's_branch RECM{w}')
        step(a, w, 0, l, loc, n, us, opt)
        a(f'@reset\nRECM{w}:'); step(a, w, 1, l, loc, n, us, opt)
        out.append(a.text())
        if opt.get('sim') == w:
            for t, x in a.sim(f'R{w}0TOP', f'R{w}0TAIL'): print(t, x)
    return '\n'.join(out)
```

```python
from common import *
import struct, math
def f2u(x): return struct.unpack('<I', struct.pack('<f', x))[0]
WS, DBG, SX, SWO, SOUT, SG = 's[8:11]', 's[12:15]', 's[16:19]', 's[20:23]', 's[24:27]', 's[28:31]'
SLA, SAI, SCR, SCI, SDT, SDK = 32, 36, 40, 44, 76, 80
CS = 4160; CW = 8*CS; UB = 4*CW; US = 1552; UC = 4*US
TAB = 4160 + 64; PAR = 3*4160 + 64
def cvt(d, s, s2=None): return f'v_cvt_pk_bf16_f32 v{d}, v{s}, v{s+1 if s2 is None else s2}'
L2E = 1.4426950408889634
LHI = struct.unpack('<f', struct.pack('<I', f2u(L2E) & 0xffffff00))[0]; LLO = (L2E - LHI)*math.log(2)
def bexp(a, r, t):
    a(f'v_mul_f32 v{t}, {f2u(LLO)}, v{r}\nv_mul_f32 v{r}, {f2u(LHI)}, v{r}\nv_exp_f32 v{r}, v{r}\nv_fmac_f32 v{r}, v{t}, v{r}\n{cvt(r, r, r)}\nv_lshlrev_b32 v{r}, 16, v{r}')
def conv(a, opt):
    XR, U2, GA, POS, AC, T, GV = 16, 48, 64, 124, 132, 148, 180
    a('s_sub_u32 s54, s5, 5\ns_mul_i32 s54, s54, 24\ns_add_u32 s54, s54, s3\ns_lshl_b32 s55, s54, 4\ns_lshl_b32 s6, s54, 3\ns_add_u32 s6, s6, s4')
    a('v_mul_u32_u24 v1, 9216, v0')
    for i in range(8): a(f's_add_u32 s54, s55, {i*1152}\nbuffer_load_dwordx4 {V(XR+4*i,4)}, v1, {SX}, s54 offen')
    a(f's_mul_i32 s7, s4, {CW}\ns_add_u32 s56, s7, {TAB}')
    a('v_lshlrev_b32 v2, 3, v8')
    for u in range(4):
        for k in range(15):
            r = GA + 15*u + k
            a(f'v_add_u32 v{r}, {512*u + k - 7}, v2\nv_cvt_f32_i32 v{r}, v{r}\n{cvt(r, r, r)}\nv_lshlrev_b32 v{r}, 16, v{r}\nv_cvt_i32_f32 v{r}, v{r}')
            a(f'v_ashrrev_i32 v3, 2, v{r}\nv_add_u32 v3, 0x180, v3\nv_min_i32 v{r}, v{r}, v3\nv_lshl_add_u32 v{r}, v{r}, 2, s56')
    a(f'v_and_b32 v2, 15, v8\nv_cvt_f32_u32 v{POS}, v2\nv_mul_f32 v{POS+1}, 4.0, v{POS}\nv_mul_f32 v{POS+2}, 4.0, v{POS+1}\nv_add_f32 v{POS+3}, {f2u(256.)}, v{POS+2}')
    a(f'v_mul_f32 v{POS+4}, 4.0, v{POS+2}\nv_add_f32 v{POS+5}, {f2u(1536.)}, v{POS+4}\nv_add_f32 v{POS+4}, {f2u(512.)}, v{POS+4}')
    expr(a, 2, 0, [(0,5,16),(5,2,US),(7,1,2*UC)], UB, 9)
    a(f'v_mov_b64 v[12:13], 0\nv_mov_b64 v[14:15], 0\nds_write_b128 v2, v[12:15]\nds_write_b128 v2, v[12:15] offset:{UC}')
    expr(a, 1, 0, [(0,2,US),(2,6,16)], UB + 512, 9)
    a('s_mov_b32 s58, 0x05040100\ns_mov_b32 s59, 0x07060302')
    for c in range(8):
        d = U2 + 4*(c&3)
        for j in range(4): a(f'v_perm_b32 v{d+j}, v{XR+4*(6-2*j)+(c>>1)}, v{XR+4*(7-2*j)+(c>>1)}, s{58+(c&1)}')
        if c < 4: a(f'ds_write_b128 v1, {V(d,4)} offset:{c*UC}')
        if c == 3: a('s_waitcnt lgkmcnt(0)')
    expr(a, 2, 8, [(0,6,32)], 's7', 9)
    expr(a, 4, 8, [(0,4,64),(4,2,16)], 's56', 9)
    expr(a, 5, 8, [(0,6,16)], 's7', 9)
    expr(a, 6, 8, [(0,3,CS),(3,2,16)], 's7', 9); a('v_lshrrev_b32 v9, 5, v8\nv_xor_b32 v9, 1, v9\nv_lshl_add_u32 v6, v9, 4, v6')
    a(f's_mul_i32 s54, s4, {UC}\ns_add_u32 s54, s54, {UB}'); expr(a, 7, 8, [(0,5,16),(5,1,US)], 's54', 9)
    expr(a, 10, 8, [(0,5,64),(5,1,16)], 0, 9)
    expr(a, 11, 8, [(0,3,CS),(3,2,16)], 's7', 9)
    a('s_mov_b32 s60, 0\ns_barrier\n@loop CR\nCONVR:')
    a('s_lshl_b32 s54, s6, 8\ns_lshl_b32 s55, s6, 1\nv_lshlrev_b32 v9, 2, v8')
    for i, s in enumerate((SLA, SAI, SCR, SCI)): a(f'buffer_load_dword v{T+i}, v9, s[{s}:{s+3}], s54 offen')
    a(f'buffer_load_ushort v{T+4}, off, s[{SDT}:{SDT+3}], s55\nbuffer_load_ushort v{T+5}, off, s[{SDK}:{SDK+3}], s55')
    expr(a, 3, 8, [(4,2,16)], 's7', 9)
    for t in range(16): a(f'v_mov_b32 v{AC+t}, 0')
    a(f'v_lshlrev_b32 v{T+4}, 16, v{T+4}'); bexp(a, T+4, 9)
    a(f'v_lshlrev_b32 v{T+5}, 16, v{T+5}\nv_cmp_eq_u32 vcc, 0, v8\nv_cndmask_b32 v{AC}, 0, v{T+5}, vcc')
    for h in range(2):
        p = T+8+4*h
        for i in range(4): a(f'v_and_b32 v{p+i}, 0xffff0000, v{T+i}' if h else f'v_lshlrev_b32 v{p+i}, 16, v{T+i}')
        bexp(a, p, 9)
        for i in range(4): a(f'v_mul_f32 v{p+i}, v{p+i}, v{T+4}')
        a(f'v_mul_f32 v{p}, {f2u(-L2E)}, v{p}\nv_mul_f32 v{p+1}, 0.15915494, v{p+1}\nv_add_f32 v{p+2}, v{p+2}, v{p+2}\nv_add_f32 v{p+3}, v{p+3}, v{p+3}')
        a(f'ds_write_b128 v2, {V(p,4)} offset:{PAR + 16*h}')
    PR = T; E = T+4; C = T+16; SN = T+18; AA = T+24
    a(f's_waitcnt lgkmcnt(0)\nds_read_b128 {V(PR,4)}, v3 offset:{PAR}\ns_mov_b32 s61, 0\n@loop CK\nCONVK:')
    for i in range(6): a(f'v_mul_f32 v{E+2*i}, v{PR}, v{POS+i}\nv_mul_f32 v{E+2*i+1}, v{PR+1}, v{POS+i}')
    a(f'v_mov_b64 {V(C,2)}, {V(PR+2,2)}\nv_add_u32 v3, 64, v3\nds_read_b128 {V(PR,4)}, v3 offset:{PAR}')
    pend = []
    def ev(i):
        e = E+2*i; s = SN+i
        return [f'v_fract_f32 v{e+1}, v{e+1}', f'v_exp_f32 v{e}, v{e}', f'v_sin_f32 v{s}, v{e+1}', f'v_cos_f32 v{e+1}, v{e+1}', None, f'v_mul_f32 v{s}, v{s}, v{e}', f'v_mul_f32 v{e}, v{e+1}, v{e}']
    def ca(i):
        e = E+2*i; s = SN+i; d = AA+2*i
        return [f'v_mul_f32 v{d}, v{e}, v{C}', f'v_mul_f32 v{d+1}, v{e}, v{C+1}', f'v_fma_f32 v{d}, -v{s}, v{C+1}, v{d}', f'v_fma_f32 v{d+1}, -v{s}, v{C}, -v{d+1}']
    mm = lambda t: [f'v_mfma_f32_16x16x4_f32 {V(AC+4*t,4)}, v{AA+2*(t>>1)+h}, v{(E+4+2*t, SN+2+t)[h]}, {V(AC+4*t,4)}' for h in range(2)]
    for blk, t in ((ev(0)+ca(0), None), (ev(2), 0), (ev(3), 1), (ev(1)+[None]+ca(1), None), (ev(4), 2), (ev(5), 3)):
        if pend: a(pend.pop(0))
        for x in blk:
            if x is not None: a(x)
            elif pend: a(pend.pop(0))
        if t is not None: pend += mm(t)
    a('s_add_u32 s61, s61, 1\ns_cmp_lt_u32 s61, 32\n' + '\n'.join(pend) + '\ns_cbranch_scc1 CONVK\n@end CK')
    for t in range(4): a(f'ds_write_b128 v4, {V(AC+4*t,4)} offset:{1024*t}')
    a(f's_mov_b64 exec, 3\nds_write_b128 v5, v[12:15] offset:{TAB-32}\ns_mov_b64 exec, -1\ns_waitcnt lgkmcnt(0)')
    for k in range(60): a(f'ds_read_b32 v{GV+k}, v{GA+k}')
    a('s_waitcnt lgkmcnt(0)\nds_write_b128 v11, v[12:15]')
    for u in range(4):
        for c in range(8):
            d = AC + 4*((8*u+c)%8)
            for j in range(4): a(cvt(d+j, GV+15*u+c+2*j))
            a(f'ds_write_b128 v5, {V(d,4)} offset:{c*CS + 48 + 1024*u}')
        a('s_waitcnt lgkmcnt(0)')
    def rd(it):
        D_, k = it>>1, it&1; f = GV + 16*(it%3); m = 2*D_ - k
        return [f'ds_read_b128 {V(f,4)}, v6 offset:{32*m+32}', f'ds_read_b128 {V(f+4,4)}, v7 offset:{(32-D_)*16 + 2*k*US}',
                f'ds_read_b128 {V(f+8,4)}, v7 offset:{(64-D_)*16 + 2*k*US}', f'ds_read_b128 {V(f+12,4)}, v6 offset:{32*m+32+2048}']
    a('\n'.join(rd(0) + rd(1)))
    for it in range(64):
        f = GV + 16*(it%3); r = rd(it+2) if it < 62 else ['']*4
        for n, (x, y) in enumerate(((0, 4), (0, 8), (12, 4))):
            a(f'v_mfma_f32_32x32x16_bf16 {V(AC+16*n,16)}, {V(f+x,4)}, {V(f+y,4)}, ' + ('0' if it == 0 else V(AC+16*n,16)))
            a('\n'.join(r[:2] if n == 0 else r[n+1:n+2]))
    a(f's_lshl_b32 s54, s6, 12\ns_add_u32 s54, s54, {WS_B}\ns_barrier')
    for c in range(4): a(f'ds_write_b128 v1, {V(U2+4*c,4)} offset:{c*UC}')
    for i in range(16): a(f'v_add_f32 v{AC+16+i}, v{AC+16+i}, v{AC+32+i}')
    for t in range(2):
        for U in range(2):
            d = AC + 16*t + 8*U
            for j in range(4): a(cvt(d+j, d+2*j))
            a(f'v_permlane32_swap_b32 v{d}, v{d+2}\nv_permlane32_swap_b32 v{d+1}, v{d+3}\nbuffer_store_dwordx4 {V(d,4)}, v10, {WS}, s54 offen offset:{2048*t + 32*U} sc1')
    a('s_add_u32 s6, s6, 4\ns_add_u32 s60, s60, 1\ns_cmp_lt_u32 s60, 2\ns_waitcnt vmcnt(0)\ns_barrier\ns_cbranch_scc1 CONVR\n@end CR')
    a(f's_cmp_eq_u32 s4, 0\ns_cbranch_scc0 OUT\nv_mov_b32 v9, 1\ns_mov_b64 exec, 1\nbuffer_atomic_add v9, off, {DBG}, 0 offset:160 sc1\ns_mov_b64 exec, -1')

def out(a, opt):
    RG = 36864; L_G = 4*RG; L_R = L_G + 1024; L_B = L_R + 12288
    a('@reset\nOUT:')
    if opt.get('prof'): a('s_memtime s[70:71]')
    a('s_sub_u32 s54, s5, 5\ns_lshl_b32 s54, s54, 5\ns_add_u32 s57, s54, s3\ns_mul_i32 s6, s57, 43\ns_lshr_b32 s6, s6, 9\ns_mul_i32 s54, s6, 12\ns_sub_u32 s7, s57, s54')
    a(f's_mul_i32 s54, s7, 96\ns_mul_i32 s55, s4, {1024*1152}\ns_add_u32 s54, s54, s55\ns_mul_i32 s43, s4, {RG}')
    for n in range(3):
        a(f'v_add_u32 v9, {64*n}, v8\nv_mul_u32_u24 v10, 171, v9\nv_lshrrev_b32 v10, 10, v10\nv_mul_u32_u24 v11, 1056, v10\nv_lshl_add_u32 v11, v9, 4, v11\nv_add_u32 v{n}, s54, v11')
    wreg = lambda ks, t: 128 + 12*ks + 4*t
    def wdma(ks):
        for n in range(3): a(f's_add_u32 m0, s43, {(ks%12)*3072 + n*1024}\ns_mov_b32 s54, {ks*36864}\nbuffer_load_dwordx4 v{n}, {SWO}, s54 offen lds')
    expr(a, 3, 8, [(5,1,1536),(4,1,384),(2,2,96),(0,2,8)], 's43', 9)
    for ks in range(12): wdma(ks)
    for k0 in range(0, 32, 2):
        a(f's_waitcnt vmcnt({3*(min(12, 32-k0) - 2)})')
        for ks in (k0, k0+1):
            for t in range(3):
                for j in range(2): a(f'ds_read_b64_tr_b16 {X(wreg(ks,t)+2*j,2)}, v3 offset:{(ks%12)*3072 + 768*j + 32*t}')
        a('s_waitcnt lgkmcnt(0)')
        for ks in (k0+12, k0+13):
            if ks < 32: wdma(ks)
    GW, XG = 16, 52
    expr(a, 0, 8, [(0,2,16)], 0, 9); expr(a, 1, 8, [(2,4,1152)], 'v0', 9)
    a(f's_lshl_b32 s54, s4, 5\ns_add_u32 s54, s54, s6\ns_mul_i32 s55, s54, 18432')
    for n in range(4): a(f'v_mov_b32 v{12+n}, 0')
    for hf in range(2):
        for j in range(9): a(f'buffer_load_dwordx4 {V(GW+4*j,4)}, v0, {SG}, 0 offen offset:{576*hf + 64*j}')
        for n in range(4):
            x = XG + 36*(n&1)
            if n%2 == 0:
                for n2 in (n, n+1):
                    a(f's_add_u32 s54, s55, {n2*8*18432}')
                    for j in range(9): a(f'buffer_load_dwordx4 {V(XG+36*(n2&1)+4*j,4)}, v1, {SX}, s54 offen offset:{576*hf + 64*j}')
            for j in range(36): a(f'v_dot2_f32_bf16 v{12+n}, v{x+j}, v{GW+j}, v{12+n}')
    DP = 'row_mask:0xf bank_mask:0xf'; a('s_nop 2')
    for qp in ('[1,0,3,2]', '[2,3,0,1]'):
        for n in range(4): a(f'v_add_f32_dpp v{12+n}, v{12+n}, v{12+n} quad_perm:{qp} {DP}')
    for n in range(4): a(f'v_mul_f32 v{12+n}, {f2u(-L2E)}, v{12+n}\nv_exp_f32 v{12+n}, v{12+n}\nv_add_f32 v{12+n}, 1.0, v{12+n}\nv_rcp_f32 v{12+n}, v{12+n}')
    a(f's_lshl_b32 s54, s4, 8\ns_add_u32 s54, s54, {L_G}'); expr(a, 2, 8, [(2,4,4)], 's54', 9)
    for n in range(4): a(f'ds_write_b32 v2, v{12+n} offset:{64*n}')
    if opt.get('prof'): a('s_memtime s[72:73]')
    a(f'''v_lshlrev_b32 v0, 2, v8
v_mov_b32 v1, 72
v_mov_b32 v2, 0x10101010
v_cmp_gt_u32 vcc, 32, v8
v_cndmask_b32 v1, v1, v2, vcc
s_mov_b32 s49, 400000
s_mov_b32 exec_hi, 0x100''')
    if opt.get('w2', 1): a(f'''s_cmp_eq_u32 s4, 0
s_cbranch_scc0 OUTX
s_mov_b32 exec_lo, 0
OUTV:
buffer_load_dword v2, v0, {DBG}, 0 offen sc1
s_sub_u32 s49, s49, 1
s_cselect_b32 s49, 0, s49
s_cbranch_scc1 OUTX
v_cmp_gt_u32 vcc, v1, v2
s_cbranch_vccnz OUTV
s_mov_b32 exec_lo, -1''')
    a(f'''OUTW:
buffer_load_dword v2, v0, {DBG}, 0 offen sc1
s_sub_u32 s49, s49, 1
s_cselect_b32 s49, 0, s49
s_cbranch_scc1 OUTX
v_cmp_gt_u32 vcc, v1, v2
s_cbranch_vccnz OUTW
OUTX:
s_mov_b64 exec, -1
s_waitcnt vmcnt(0)
s_barrier''')
    if opt.get('prof'): a('s_memtime s[74:75]')
    a(f's_lshl_b32 s37, s6, 17\ns_lshl_b32 s54, s4, 15\ns_add_u32 s37, s37, s54\ns_add_u32 s37, s37, {WS_O}')
    a(f's_mul_i32 s54, s7, 3\ns_min_u32 s55, s4, 2\ns_add_u32 s54, s54, s55\ns_lshl_b32 s38, s54, 16\ns_lshl_b32 s56, s6, 5\ns_add_u32 s38, s38, s56\ns_add_u32 s38, s38, {WS_B}')
    a('s_lshl_b32 s39, s54, 5\ns_mul_i32 s56, s6, 18432\ns_add_u32 s39, s39, s56')
    a('v_lshlrev_b32 v0, 4, v8'); expr(a, 1, 8, [(0,6,512)], 496, 9)
    expr(a, 2, 8, [(0,2,8),(2,4,4096)], 0, 9)
    a(f's_lshl_b32 s54, s4, 9\ns_add_u32 s54, s54, {L_B}'); expr(a, 3, 8, [(0,6,8)], 's54', 9)
    expr(a, 5, 8, [(0,4,4)], L_G, 9)
    a(f's_mul_i32 s54, s4, 3072\ns_add_u32 s54, s54, {L_R}\nv_add_u32 v6, s54, v0\ns_lshl_b32 s55, s55, 10\ns_add_u32 s55, s55, {L_R}\nv_add_u32 v7, s55, v0')
    expr(a, 4, 8, [(0,4,1152),(4,2,8)], 0, 9)
    AC, BT, OB, NB = 16, 28, 32, 24
    BUD = 's_sub_u32 s49, s49, 1\ns_cselect_b32 s49, 0, s49\ns_cselect_b32 s66, -1, -2'
    a(f'''s_mov_b32 s36, 0
@loop OT
OUTT:
buffer_load_dwordx2 v[10:11], v2, {WS}, s38 offen sc1
s_barrier
ds_read_b32 v9, v5
v_add_u32 v5, 64, v5
ds_write_b64 v3, v[10:11]
s_waitcnt lgkmcnt(0)
ds_read_b64_tr_b16 v[10:11], v3
v_sub_f32 v12, 1.0, v9
v_lshlrev_b32 v{BT}, 16, v10
v_and_b32 v{BT+1}, 0xffff0000, v10
v_lshlrev_b32 v{BT+2}, 16, v11
v_and_b32 v{BT+3}, 0xffff0000, v11''')
    for i in range(4): a(f'v_mul_f32 v{BT+i}, v{BT+i}, v12')
    a(f'''OUTP:
buffer_load_dword v10, v1, {WS}, s37 offen sc1
{BUD}
v_cmp_lt_u32 vcc, s66, v10
s_cbranch_vccnz OUTP''')
    for q in range(1, 8): a(f's_add_u32 s{58+q}, s37, {4096*q}')
    ld = lambda ks: f'buffer_load_dwordx4 {V(OB+4*(ks%NB),4)}, v0, {WS}, s{58+(ks>>2) if ks >= 4 else 37} offen offset:{(ks&3)*1024} sc1'
    for ks in range(NB): a(ld(ks))
    a('v_mov_b32 v10, 0')
    for ks in range(32):
        o = OB+4*(ks%NB)
        for t in range(3):
            a(f'v_mfma_f32_16x16x32_bf16 {V(AC+4*t,4)}, {X(wreg(ks,t),4)}, {V(o,4)}, ' + ('0' if ks == 0 else V(AC+4*t,4)))
            if t == 0: a(f'v_max_u32 v10, v10, v{o}')
        if ks+NB < 32: a(ld(ks+NB))
    a('v_cmp_lt_u32 vcc, s66, v10\ns_cbranch_vccnz OUTP')
    for t in range(3): a(f'ds_write_b128 v6, {V(AC+4*t,4)} offset:{1024*t}')
    a('s_add_u32 s37, s37, 0x100000\ns_add_u32 s38, s38, 256\ns_add_u32 s36, s36, 1\ns_cmp_eq_u32 s4, 3\ns_barrier\ns_cbranch_scc1 OUTN')
    for w in range(4): a(f'ds_read_b128 {V(OB+4*w,4)}, v7 offset:{3072*w}')
    for i in range(4): a(f'v_add_f32 v{OB+i}, v{OB+i}, v{OB+4+i}')
    for i in range(4): a(f'v_add_f32 v{OB+8+i}, v{OB+8+i}, v{OB+12+i}')
    for i in range(4): a(f'v_add_f32 v{OB+i}, v{OB+i}, v{OB+8+i}')
    for i in range(4): a(f'v_fmac_f32 v{BT+i}, v{OB+i}, v9')
    a(f'{cvt(BT, BT)}\n{cvt(BT+1, BT+2)}\nbuffer_store_dwordx2 {V(BT,2)}, v4, {SOUT}, s39 offen\nOUTN:\ns_add_u32 s39, s39, {8*18432}\ns_cmp_lt_u32 s36, 16\ns_cbranch_scc1 OUTT\n@end OT')
    if opt.get('hst'): hstamps(a, 167, [(12,68),(15,82),(7,70),(8,72),(9,74),(10,78)])
    elif opt.get('prof'):
        a('s_memtime s[76:77]\ns_waitcnt lgkmcnt(0)')
        for i in range(4): a(f's_sub_u32 s{70+2*i}, s{70+2*i}, s68\nv_mov_b32 v{12+i}, s{70+2*i}')
        a(f's_lshl_b32 s54, s57, 5\ns_add_u32 s54, s54, 0x203000\nbuffer_store_dwordx4 v[12:15], off, {WS}, s54\nv_mov_b32 v16, s49\nbuffer_store_dword v16, off, {WS}, s54 offset:16')
    a('s_waitcnt vmcnt(0)\ns_endpgm')

def gen(opt):
    a = Asm(); a.uid = 2000
    a('CONV:')
    if opt.get('prof'): a('s_memtime s[68:69]')
    srds(a, [('ws',8),('dbg',12),('x',16),('wo',20),('out',24),('gate',28),('loga',SLA),('aim',SAI),('cr',SCR),('ci',SCI),('logdt',SDT),('dsk',SDK)])
    lane(a, 8)
    a('s_cmp_ge_u32 s3, 24\ns_cbranch_scc1 OUT')
    conv(a, opt); out(a, opt)
    return a.text()
```

```python
from common import *
import struct
N = [8+4*i for i in range(6)]; MA, MB, M8, X0, X1, W0, W1 = 32, 36, 40, 44, 48, 52, 56
G0, G1, G2, G3, G4 = 60, 64, 68, 72, 76
PA, PB, PC = N[0], N[2], N[4]
L_Q, L_K, L_SEL, L_PUB, L_P, L_ONE, L_W = 8192, 10240, 12288, 13312, 14336, 15360, 16384
WREG = 36864
WS, DBG, SWQ, SWK, SWV, SWO, SM0 = 's[8:11]', 's[12:15]', 16, 20, 24, 28, 32
def f2u(x): return struct.unpack('<I', struct.pack('<f', x))[0]

def plan(w):
    a_, b_ = w, 4+w; n = [c for c in range(8) if c not in (a_, b_)]
    us = [u for u in range(4) if u != w]
    Q = lambda T, c, A, buf=None: (('q', T, c), A, (G0, G1)[T], buf)
    K = lambda T, c, A, buf=None: (('k', T, c), A, (G2, G3)[T], buf)
    Vv = lambda T, c, A, buf=None: (('v', T, c), A, (W0, W1)[T], buf)
    acc = (G2, W0, W1, G1)
    O = lambda u, t, A, buf=None: (('o', u, t), A, acc[t], buf)
    s = {}
    st = {0: PA, 1: PB, 2: PC, 3: X0, 4: W0, 12: W0, 14: PC, 16: X0, 20: W0, 22: X0, 30: X0, 38: X0, 46: X0, 54: X0, 64: PC, 65: MA, 77: PC, 79: PA}
    l = []
    for c, A in ((a_, MA), (n[0], N[0]), (n[1], N[1]), (n[2], N[2]), (b_, MB), (8, M8)): l += [Q(0,c,A), Q(1,c,A), K(0,c,A), K(1,c,A)]
    for F in (Q, K):
        for T in range(2): l += [F(T, n[i], N[i]) for i in (3, 4, 5)]
    V2 = lambda c, A: [Vv(0,c,A), Vv(1,c,A)]
    l += V2(8,M8) + V2(b_,MB) + V2(n[3],N[3]) + ['sx0', 'sx1'] + V2(n[4],N[4]) + V2(n[5],N[5]) + V2(n[1],MB) + ['sm0', 'sm1'] + V2(a_,MA)
    l += [Vv(0,n[2],N[3]), Vv(0,n[0],N[0]), Vv(1,n[2],N[3]), Vv(1,n[0],N[0])]
    l += ['zx', 'px0', 'zm', 'px1', 'pm0', 'pm1']
    l += [O(w,t,M8) for t in range(4)]
    oa = (MA, MB, G3)
    for t in range(4):
        if t == 2: l += [(('h',0,0), X0, G0, None), (('h',1,0), X1, G0, None)]
        for k in range(3): l.append(O(us[k], t, oa[k]))
    for i, b in st.items(): l[i] = l[i][:3] + (b,)
    loc = {}; nl = nr = 0
    for e in l:
        if isinstance(e, str): continue
        if e[3] is not None: loc[e[0]] = ('L', nl); nl += 1
        else: loc[e[0]] = ('R', 80+8*nr); nr += 1
    assert nl == 18 and nr == 54, (nl, nr)
    return l, loc, n, us

def init(a, w, loc):
    a('s_mul_i32 s54, s3, %d' % PHEAD)
    a(f's_add_u32 s37, s54, {WS_PART + w*2048}\ns_add_u32 s38, s54, {WS_PART + 8192 + 256*w}')
    for n in range(4): a(f's_mov_b32 s{39+n}, {WS_PART + n*8*PHEAD}')
    a(f's_mov_b32 s45, {WS_RING}\ns_mov_b32 s46, {WS_RING+0x8000}\ns_lshl_b32 s54, s3, 14\ns_add_u32 s47, s54, {WS_KV + w*4096}\ns_add_u32 s58, s54, {WS_KV}')
    a(f's_lshl_b32 s54, s3, 12\ns_add_u32 s48, s54, {WS_KM + w*1024}\ns_mov_b32 s49, 400000\ns_mov_b32 s36, 0')
    sc = f2u(128**-0.5 * 1.4426950408889634)
    a(f's_mov_b32 s50, {sc}\ns_mov_b32 s51, {sc}\ns_mov_b32 s52, {(127-48)<<23}\ns_mov_b32 s53, {112<<23}\ns_lshl_b32 s57, s3, 2')
    lane(a, 8)
    if w < 2: a(f's_lshr_b32 s59, s3, 3\ns_lshl_b32 s59, s59, 11\ns_add_u32 s59, s59, {1024 if w == 0 else 0}\ns_and_b32 s60, s3, 7')
    elif w == 2: a('s_mov_b32 s59, 8192\ns_lshr_b32 s60, s3, 2\ns_and_b32 s55, s3, 3')
    if w < 3:
        red_addr(a, w, 7, 8, 9)
        a('s_and_b32 s54, s60, 1\ns_lshl_b32 s54, s54, 8\ns_lshr_b32 s61, s60, 1\ns_lshl_b32 s61, s61, 6\ns_add_u32 s54, s54, s61\ns_lshr_b32 s61, s3, 3\ns_lshl_b32 s61, s61, 10\ns_add_u32 s54, s54, s61\ns_add_u32 s54, s54, %d' % (4096 if w == 0 else 0))
        expr(a, 10, 8, [(1,1,512),(2,1,32),(0,1,16),(4,1,8),(5,1,4),(3,1,1<<30)], 's54', 9)
        if w == 2:
            a('s_lshr_b32 s54, s60, 2\ns_lshl_b32 s54, s54, 5\ns_bfe_u32 s61, s60, 0x10001\ns_lshl_b32 s61, s61, 9\ns_add_u32 s54, s54, s61\ns_and_b32 s61, s60, 1\ns_lshl_b32 s61, s61, 7\ns_add_u32 s54, s54, s61\ns_add_u32 s54, s54, 8192')
            expr(a, 10, 8, [(0,1,8),(1,1,256),(2,1,64),(4,1,16),(3,1,1<<30),(5,1,1<<28)], 's54', 9)
            a('v_xor_b32 v10, 0x10000000, v10')
            a('s_lshl_b32 s54, s55, 29\nv_or_b32 v10, s54, v10')
        a('v_mov_b64 v[12:13], -1\nv_mov_b64 v[14:15], -1')
        for sl in range(1):
            for n in range(4):
                a(f's_mov_b32 s54, {WS_PART + sl*PSLOT + n*8*PHEAD}\nbuffer_store_dwordx4 v[12:15], v7, {WS}, s54 offen sc1')
        for sl in range(4): a(f's_mov_b32 s54, {WS_RING + sl*RSLOT}\nbuffer_store_dword{"x2 v[12:13]" if w == 2 else " v12"}, v10, {WS}, s54 offen sc1')
        a(f'v_lshlrev_b32 v11, 4, v8\nds_write_b32 v11, v10 offset:{L_PUB + 4*w}')
    else:
        expr(a, 16, 8, [(0,2,2),(2,1,1)], 0, 9)
        a('v_and_b32 v9, 15, v8\nv_cmp_lt_u32 vcc, 7, v9\nv_cndmask_b32 v9, v9, v16, vcc\nv_mov_b32 v10, 0x3f80\nv_mov_b32 v11, 0x3f800000')
        for r in range(4):
            a(f'v_mov_b32 v{12+r}, 0\nv_cmp_eq_u32 vcc, {2*r}, v9\nv_cndmask_b32 v{12+r}, v{12+r}, v10, vcc\nv_cmp_eq_u32 vcc, {2*r+1}, v9\nv_cndmask_b32 v{12+r}, v{12+r}, v11, vcc')
        a(f'v_lshlrev_b32 v11, 4, v8\nds_write_b128 v11, v[12:15] offset:{L_SEL}')
        for r in range(4): a(f'v_mov_b32 v{16+r}, 0x3f803f80')
        a(f'ds_write_b128 v11, v[16:19] offset:{L_ONE}')
    expr(a, 0, 8, [(4,2,64)], (w&1)*16, 9); expr(a, 1, 8, [(0,4,16)], 0, 9); a('v_xor_b32 v0, v0, v1')
    expr(a, 1, 8, [(4,1,8192),(5,1,32*8192)], 4*w*8192, 9); a('v_add_u32 v0, v0, v1')
    expr(a, 4, 8, [(5,1,64)], (w&1)*128, 9); expr(a, 1, 8, [(0,5,16)], 0, 9); a('v_xor_b32 v4, v4, v1')
    expr(a, 1, 8, [(5,1,1152)], (32*(w&1) + 4*(w>>1))*1152, 9); a('v_add_u32 v4, v4, v1')
    expr(a, 7, 8, [(4,1,32)], (w&1)*64, 9); expr(a, 1, 8, [(0,3,16)], 0, 9); a('v_xor_b32 v7, v7, v1')
    expr(a, 1, 8, [(3,1,1152),(4,1,8*1152),(5,1,64*1152)], (32*(w&1) + 4*(w>>1))*1152, 9); a('v_add_u32 v7, v7, v1')
    base = [(4,2,WREG),(0,1,8)]
    expr(a, 2, 8, [(1,1,32)], (8*(w>>1) + (w&1))*16, 9); expr(a, 1, 8, [(4,1,16),(2,2,64)], 0, 9); a('v_xor_b32 v2, v2, v1')
    expr(a, 1, 8, base + [(2,2,256)], L_W, 9); a('v_add_u32 v2, v2, v1\nv_xor_b32 v3, 64, v2')
    expr(a, 5, 8, [(1,1,16),(3,1,32)], 8*w*16, 9); expr(a, 1, 8, [(2,1,64),(4,1,128)], 0, 9); a('v_xor_b32 v5, v5, v1')
    expr(a, 1, 8, base + [(2,1,512)], L_W, 9); a('v_add_u32 v5, v5, v1\nv_xor_b32 v6, 64, v5')
    expr(a, 1, 8, [(0,6,16)], L_W + WREG*w, 9)
    a('s_lshl_b32 s62, s3, 8\ns_mul_i32 s63, s3, %d' % (128*1152))
    groups = [(m, c) for m in 'qkv' for c in range(9)] + [('o', u, tp) for u in range(4) for tp in range(2)] + [('h',)]
    def dma(gi):
        g = groups[gi]
        for p in range(4):
            a(f's_mov_b32 m0, {L_W + WREG*w + (5 + gi%4)*4096 + p*1024}')
            ro = 16*(p>>1) + 2*(p&1)
            if g[0] in 'qkv': off, sb, vr, srd = (64*g[1] + ro)*8192, 62, 0, {'q':SWQ,'k':SWK,'v':SWV}[g[0]]
            elif g[0] == 'o': off, sb, vr, srd = (64*(g[1]>>1) + 8*(g[1]&1) + ro)*1152 + 512*g[2], 63, 4, SWO
            else: off, sb, vr, srd = ro*1152 + 1024, 63, 7, SWO
            a(f's_add_u32 s54, s{sb}, {off}\nbuffer_load_dwordx4 v{vr}, s[{srd}:{srd+3}], s54 offen lds')
    for gi in range(3): dma(gi)
    for gi, g in enumerate(groups):
        left = min(len(groups)-1-gi, 2)
        a(f's_waitcnt vmcnt({4*left}) lgkmcnt(0)\ns_barrier')
        if gi == 0 and w == 0:
            a(f's_getreg_b32 s64, hwreg(HW_REG_XCC_ID,0,3)\ns_lshl_b32 s54, s64, 2\ns_add_u32 s54, s54, 128\nv_mov_b32 v8, 1\ns_mov_b64 exec, 1\nbuffer_atomic_add v8, off, {DBG}, s54 sc1\ns_mov_b64 exec, -1')
        if gi+3 < len(groups): dma(gi+3)
        if g[0] == 'h':
            lane(a, 8)
            expr(a, 0, 8, [(1,1,16)], 2*w*16, 9); expr(a, 2, 8, [(3,1,32),(4,1,64)], 0, 9); a('v_xor_b32 v0, v0, v2')
            expr(a, 2, 8, base + [(2,2,128)], L_W, 9); a('v_add_u32 v0, v0, v2')
        for T in range(2):
            if g[0] in 'qkv': key, ad, ex = (g[0], T, g[1]), 2+T, 0
            elif g[0] == 'o': key, ad, ex = ('o', g[1], 2*g[2]+T), 5+T, 0
            else: key, ad, ex = ('h', T, 0), 0, 512*T
            kind, idx = loc[key]
            dst = idx if kind == 'R' else (8 if idx < 10 else 16 + 8*(idx-10))
            for p in range(4): a(f'ds_read_b64_tr_b16 {X(dst+2*p,2)}, v{ad} offset:{(5+gi%4)*4096 + p*1024 + ex}')
            if kind == 'L' and idx < 10:
                a(f'ds_write_b128 v1, v[8:11] offset:{idx*2048}\nds_write_b128 v1, v[12:15] offset:{idx*2048+1024}')
    a('s_waitcnt lgkmcnt(0)\ns_barrier')
    for idx in range(10, 18):
        r = 16 + 8*(idx-10)
        a(f'ds_write_b128 v1, {V(r,4)} offset:{idx*2048}\nds_write_b128 v1, {V(r+4,4)} offset:{idx*2048+1024}')
    lane(a, 8)
    a('v_lshlrev_b32 v0, 4, v8\nv_lshrrev_b32 v6, 4, v8\nv_xor_b32 v6, v6, v8\nv_lshlrev_b32 v6, 3, v6')
    expr(a, 2, 8, [(1,1,0xAAAA)], 0x4444, 9)
    expr(a, 4, 8, [(4,2,256),(2,2,32),(0,1,16)], 0, 9)
    expr(a, 3, 8, [(1,1,128)], 'v4', 9)
    expr(a, 5, 8, [(0,4,32),(4,2,8)], 0, 9); expr(a, 10, 8, [(2,2,8)], 0, 9); a('v_xor_b32 v5, v5, v10')
    if w < 3: red_addr(a, w, 7, 8, 9)
    expr(a, 10, 8, [(2,2,2304),(0,1,1152),(1,1,64),(4,2,16)], 0, 9)
    a('s_waitcnt lgkmcnt(0)')
    for r, ch in ((MA, w), (M8, 8), (MB, 4+w)): a(f'buffer_load_dwordx4 {V(r,4)}, v10, s[{SM0}:{SM0+3}], 0 offen offset:{ch*128}')
    L = a.lab('RSB'); E = a.lab('RSE')
    a(f'''s_mov_b32 s54, 128
{L}:
buffer_load_dwordx4 v[8:11], off, {DBG}, s54 sc1
buffer_load_dwordx4 v[12:15], off, {DBG}, s54 offset:16 sc1
s_cmp_lt_u32 s49, 1
s_cbranch_scc1 {E}
s_sub_u32 s49, s49, 1
v_add3_u32 v16, v8, v9, v10
v_add3_u32 v16, v16, v11, v12
v_add3_u32 v16, v16, v13, v14
v_add_u32 v16, v16, v15
v_cmp_gt_u32 vcc, 32, v16
s_cbranch_vccnz {L}
{E}:
s_waitcnt vmcnt(0)
v_max3_u32 v16, v8, v9, v10
v_max3_u32 v16, v16, v11, v12
v_max3_u32 v16, v16, v13, v14
v_max_u32 v16, v16, v15
v_readfirstlane_b32 s64, v16''')
    if w == 3:
        L = a.lab('RF'); E = a.lab('RFE')
        a(f'''{L}:
buffer_load_dword v7, off, {DBG}, s57 sc1
s_cmp_lt_u32 s49, 1
s_cbranch_scc1 {E}
s_sub_u32 s49, s49, 1
v_readfirstlane_b32 s54, v7
s_and_b32 s59, s54, 0xff
s_cbranch_scc0 {L}
s_and_b32 s59, s54, 0xff00
s_cbranch_scc0 {L}
s_and_b32 s59, s54, 0xff0000
s_cbranch_scc0 {L}
s_and_b32 s59, s54, 0xff000000
s_cbranch_scc0 {L}
{E}:
s_lshl_b32 s57, s3, 7
s_add_u32 s57, s57, {WS_FLAG}
s_waitcnt vmcnt(0)''')

def red_addr(a, w, d, ln, tmp):
    a('s_lshl_b32 s54, s60, 7\ns_add_u32 s54, s54, s59')
    expr(a, d, ln, [(3,3,PHEAD),(0,3,16)], 's54', tmp)
    if w == 2: a(f's_lshl_b32 s54, s55, 29\nv_or_b32 v{d}, s54, v{d}')

def zero(b): return [f'v_mov_b64 {V(b,2)}, 0', f'v_mov_b64 {V(b+2,2)}, 0']
def ldw(buf, idx): return [f'ds_read_b128 {V(buf,4)}, v1 offset:{idx*2048}', f'ds_read_b128 {V(buf+4,4)}, v1 offset:{idx*2048+1024}']
def cvt(d, s): return f'v_cvt_pk_bf16_f32 v{d}, v{s}, v{s+1}'
def padd(b): return f'v_pk_add_f32 {V(b,2)}, {V(b,2)}, {V(b+2,2)}'
DP = 'row_mask:0xf bank_mask:0xf'
DENSE = {
 'sx0': f'v_mfma_f32_16x16x32_bf16 {V(G4,4)}, {V(MA,4)}, {V(G0,4)}, 0',
 'sx1': f'v_mfma_f32_16x16x32_bf16 {V(G4,4)}, {V(N[0],4)}, {V(G1,4)}, {V(G4,4)}',
 'sm0': f'v_mfma_f32_16x16x32_bf16 {V(M8,4)}, {V(G2,4)}, {V(G0,4)}, 0',
 'sm1': f'v_mfma_f32_16x16x32_bf16 {V(M8,4)}, {V(G3,4)}, {V(G1,4)}, {V(M8,4)}',
 'zx': f'v_mfma_f32_16x16x32_bf16 {V(G3,4)}, {V(G2,4)}, {V(G1,4)}, 0',
 'zm': f'v_mfma_f32_16x16x16_bf16 {V(G3,4)}, {V(G2,2)}, {V(G0,2)}, {V(G3,4)}',
 'px0': f'v_mfma_f32_16x16x32_bf16 {V(X0,4)}, {V(N[1],4)}, {V(G1,4)}, 0',
 'px1': f'v_mfma_f32_16x16x32_bf16 {V(X1,4)}, {V(N[2],4)}, {V(G1,4)}, 0',
 'pm0': f'v_mfma_f32_16x16x16_bf16 {V(X0,4)}, {V(G4+2,2)}, {V(G0,2)}, {V(X0,4)}',
 'pm1': f'v_mfma_f32_16x16x16_bf16 {V(X1,4)}, {V(G4+2,2)}, {V(G0+2,2)}, {V(X1,4)}',
}
def step(a, w, mode, l, loc, n, us, opt):
    sf = ' sc1' if mode else ''
    P = f'R{w}{mode}'
    ns = {i: [] for i in range(len(l))}; vs = {i: [] for i in range(len(l))}
    def put(d, s0, lst, per=1):
        for i, x in enumerate(lst): d[s0 + i//per].append(x)
    lidx = {i: loc[e[0]][1] for i, e in enumerate(l) if not isinstance(e, str) and e[3] is not None}
    pos = lambda ch: (ch&3)*2048 + (ch>>2)*1024
    add2 = lambda b: [f'v_add_f32 v{b}, v{b}, v{b+2}', f'v_add_f32 v{b+1}, v{b+1}, v{b+3}']
    tag = lambda r: f'v_and_or_b32 v{r}, v{r}, -2, s65'
    rdc = lambda r, c: f'ds_read_b128 {V(r,4)}, v0 offset:{pos(c)}'
    x2 = "x2" if w == 2 else ""
    b1, bw, b2 = opt.get('b1', 1), opt.get('bw', 13), opt.get('b2', 18)
    ns[b1] += ['s_barrier', rdc(N[0], n[0])]; ns[b1+1] += [rdc(N[1], n[1]), rdc(N[2], n[2])]
    T = N[3]
    wrb = f'ds_write_b128 v0, {V(MB,4)} offset:{w*2048+1024}'
    chb = [f'v_max3_u32 v{T}, v{MB}, v{MB+1}, v{MB+2}', f'v_max3_u32 v{T}, v{MB+3}, v{M8}, v{T}', f'v_max3_u32 v{T+1}, v{M8+1}, v{M8+2}, v{M8+3}', f'v_max_u32 v{T}, v{T+1}, v{T}', f'v_cmp_lt_u32 vcc, s66, v{T}']
    ns[bw] += [wrb]; vs[bw] += chb[:1]; vs[min(bw+1, 15)] += chb[1:3]; vs[15] += chb[3:] + [f's_cbranch_vccnz {P}PB', f'{P}B:']
    ns[b2] += ['s_barrier', rdc(N[3], n[3])]; ns[b2+1] += [rdc(N[4], n[4]), rdc(N[5], n[5])]
    for i, r, ad, of in ((4, MA, 3, 0), (8, N[0], 3, 1024), (12, N[1], 0, 2048), (16, N[2], 0, 3072)):
        ns[i].append(f'buffer_load_dwordx4 {V(r,4)}, v{ad}, {WS}, s47 offen offset:{of} sc1')
    for i, u in ((5, 12), (7, 14), (9, 16), (13, 20), (16, 22), (23, 30), (31, 38), (39, 46), (47, 54), (49, 64), (54, 65), (70, 77), (72, 79)): put(ns, i, ldw(l[u][3], lidx[u]))
    if w < 3:
        vs[3].append(f'v_mov_b64 {V(T,2)}, -1')
        ns[5].append(f'buffer_store_dword{x2} {V(T, 2 if w == 2 else 1)}, v{G4}, {WS}, s46 offen{sf}')
    ns[11].append(f'ds_read_b64_tr_b16 {V(G4,2)}, v6 offset:{L_K + w*512}')
    ns[opt.get('kms', 22)] += [f'buffer_store_dwordx4 {V(G4,4)}, v0, {WS}, s48 offen' + opt.get('kmf', ' sc1')]
    ns[41] += ['s_add_u32 s48, s48, %d' % opt.get('kmi', 0x20000)]; ns[25] += ['s_add_u32 s47, s47, %d' % opt.get('kvi', 0x80000)]
    ns[26] += ['s_add_u32 s45, s45, 0x4000']; ns[27] += ['s_bitset0_b32 s45, 16', 's_add_u32 s44, s45, 8192']; ns[28] += [f's_add_u32 s43, s45, {w*1024}', f's_add_u32 s63, s45, {4096 + w*1024}']
    ns[29] += ['s_xor_b32 s46, s45, 0x8000', 's_and_b32 s65, s36, 1']
    tch = opt.get('touch', 1)
    if w == 3:
        vs[3].append('v_readfirstlane_b32 s54, v7 ;!'); vs[11].append(f'v_lshlrev_b32 v7, 3, v0 ;!')
        ns[5] += ['s_lshr_b32 s54, s54, s60']; ns[6] += ['s_and_b32 s54, s54, 0xff']
        ns[9] += ['s_cmp_gt_u32 s54, s61']; ns[10] += [f's_cbranch_scc0 {P}FL']*(1-opt.get('nofl', 0)) + [f'{P}FR:']
        if tch: ns[b2+2] += [f'buffer_load_dword v7, v7, {WS}, s59 offen sc1 ;!', f'buffer_load_dword v7, v7, {WS}, s62 offen sc1 ;!']
        ns[b2+3] += [f'buffer_load_dword v7, off, {WS}, s57 sc1 ;!']
    put(vs, 22, zero(W0) + zero(W1))
    qpost = lambda b, d: [f'v_mul_f32 v{b}, s50, v{b}', f'v_mul_f32 v{b+1}, s50, v{b+1}', f'v_fmac_f32 v{b}, s50, v{b+2}', f'v_fmac_f32 v{b+1}, s50, v{b+3}', cvt(d, b)]
    put(vs, 28, qpost(G0, G0), 2); put(vs, 31, qpost(G1, G0+1), 2)
    vs[33].append(f'ds_write_b64 v5, {V(G0,2)} offset:{L_Q + w*512}')
    trq = [f'ds_read_b64_tr_b16 {V(G0+2*u,2)}, v6 offset:{L_Q + u*512}' for u in range(4)]
    ns[36] += ['s_barrier'] + trq[:1]; ns[37] += trq[1:3]; ns[38] += trq[3:]
    put(vs, 34, add2(G2) + [cvt(G2, G2)]); vs[37] += add2(G3); vs[38] += [cvt(G2+1, G3), f'ds_write_b64 v5, {V(G2,2)} offset:{L_K + w*512}']
    ns[35].append('s_waitcnt vmcnt(%d)' % (1 if w < 3 else 2 + 2*tch))
    ns[40].append(rdc(MB, n[1])); ns[42].append(rdc(N[3], n[2])); ns[45].append(rdc(MA, w)); ns[46].append(rdc(N[0], n[0]))
    spost = lambda b: [f'v_add_f32_dpp v{b}, v{b+2}, v{b} quad_perm:[2,3,0,1] {DP}', f'v_add_f32_dpp v{b+1}, v{b+3}, v{b+1} quad_perm:[2,3,0,1] {DP}',
                       f'v_exp_f32_dpp v{b+2}, v{b} quad_perm:[0,1,0,1] {DP}', f'v_exp_f32_dpp v{b+3}, v{b+1} quad_perm:[0,1,0,1] {DP}']
    sp = spost(G4); vs[45] += sp[:2]; put(vs, 46, sp[2:]); vs[48] += [cvt(G4+2, G4+2), f'ds_write_b32 v0, v{G4+2} offset:{L_P + 4*w}']
    trk = [f'ds_read_b64_tr_b16 {V(G2+2*u,2)}, v6 offset:{L_K + u*512}' for u in range(4)]
    ns[43] += ['s_barrier'] + trk[:1]; ns[44] += trk[1:3]; ns[45].insert(0, trk[3])
    vs[51] += [f'v_mov_b32 v{G0+1}, 0', f'v_mov_b32 v{G0+2}, 0']
    ns[51].append(f'ds_read_b128 {V(G2,4)}, v0 offset:{L_ONE}')
    ns[52] += ['s_barrier', f'ds_read_b128 {V(G1,4)}, v0 offset:{L_P}']
    sp = spost(M8); vs[53] += sp[:2]; put(vs, 54, sp[2:]); vs[56].append(cvt(G0, M8+2))
    ns[56].append('s_cmp_eq_u32 s36, 63')
    put(vs, 57, add2(W0)); vs[58].append(cvt(G4+2, W0)); vs[59] += add2(W1); vs[60] += [cvt(G4+3, W1), cvt(G0+3, M8+2)]
    ns[61].append(f's_cbranch_scc1 {P}TAIL')
    vs[61] += zero(G2); vs[62] += [f'v_subrev_u32 v{G3+2}, s52, v{G3+2}', f'v_rcp_f32 v{G3}, v{G3}']
    mul = [f'v_pk_mul_f32 {V(X0+2*i,2)}, {V(X0+2*i,2)}, {V(G3,2)} op_sel_hi:[1,0]' for i in range(4)]
    co = [cvt(M8+i, X0+2*i) for i in range(4)]
    vs[63] += [f'v_cmp_le_u32 vcc, s53, v{G3+2}'] + zero(W0) + [f'{P}RJ:'] + mul[:2] + [f's_cbranch_vccnz {P}FB'] + co[:2] + mul[2:] + co[2:]
    vs[63] += [f'ds_write_b128 v4, {V(M8,4)} offset:{L_Q + (w>>1)*1024 + (w&1)*128}', 's_waitcnt lgkmcnt(1)']
    vs[64] += zero(W1); vs[65] += zero(G1); vs[66] += zero(G0)
    ro = [f'ds_read_b128 {V(r,4)}, v4 offset:{L_Q + (u>>1)*1024 + (u&1)*128}' for r, u in zip((MA, MB, G3), us)]
    ns[opt.get('bo', 66)] += ['s_barrier'] + ro
    put(ns, 68, [f'ds_read_b128 {V(X0+4*j,4)}, v3 offset:{L_Q + j*1024}' for j in range(2)])
    put(vs, 72, [cvt(G2, G2), cvt(G2+1, G2+2), tag(G2)]); vs[75] += [cvt(G2+2, W0), cvt(G2+3, W0+2), f'buffer_store_dwordx4 {V(G2,4)}, v0, {WS}, s37 offen{sf}']
    put(vs, 77, add2(G0) + [cvt(G0, G0), tag(G0)]); vs[81] += [cvt(W1, W1), cvt(W1+1, W1+2), tag(W1)]
    vs[68].append(f'v_lshrrev_b32 v{M8}, 2, v0')
    ns[81].append(f'buffer_store_dword v{G0}, v{M8}, {WS}, s38 offen{sf}')
    if w < 3: ns[76].append(f'ds_read_b32 v{G4}, v0 offset:{L_PUB + 4*w}')
    ns[77].append('s_add_u32 s36, s36, 1')
    nx3 = ['s_add_u32 s59, s36, 2', 's_min_u32 s59, s59, 63', 's_lshl_b32 s60, s59, 3', 's_lshr_b32 s61, s59, 2', 's_lshl_b32 s59, s59, 19', 's_add_u32 s59, s59, s58', 's_add_u32 s62, s59, 8192'] if w == 3 else []
    RB = [G0, G1, G2, G3]
    rld = [f'buffer_load_dwordx4 {V(RB[i],4)}, v7, {WS}, s{39+i} offen sc1 ;!' for i in range(4)]
    BUD = 's_sub_u32 s49, s49, 1\ns_cselect_b32 s49, 0, s49\ns_cselect_b32 s66, -1, -2\ns_cselect_b32 s67, 1, 0'
    pre = ldw(PA, lidx[0]) + ldw(PB, lidx[1]) + ldw(PC, lidx[2]) + ldw(X0, lidx[3]) + ldw(W0, lidx[4])
    zs = zero(G0) + zero(G1) + zero(G2) + zero(G3)
    wra = f'ds_write_b128 v0, {V(MA,4)} offset:{w*2048}'
    poll = f'buffer_load_dwordx4 {V(MA,4)}, v0, {WS}, s43 offen sc1 ;!'
    ldb = [f'buffer_load_dwordx4 {V(MB,4)}, v0, {WS}, s63 offen sc1', f'buffer_load_dwordx4 {V(M8,4)}, v0, {WS}, s44 offen sc1']
    nop = lambda k: ['s_nop 3']*k
    lb = opt.get('lb')
    if lb is not None:
        ns[0].append('s_cmp_eq_u32 s36, 0'); ns[lb] += [f's_cbranch_scc1 {P}LB'] + ldb + [f'{P}LB:']
    spec = opt.get('spec', 0); ec = opt.get('ec')
    if ec is not None:
        T = G4+1
        ns[ec] += [f's_cbranch_scc1 {P}EW', 's_waitcnt vmcnt(0)', f'{P}EW:']
        ns[bw].insert(0, 's_waitcnt vmcnt(%d)' % sum(x.startswith('buffer_') for i in range(ec+2, bw) for x in ns[i] + vs[i]))
        c_ = [f'v_max3_u32 v{T}, v{MB}, v{MB+1}, v{MB+2} ;!', f'v_max3_u32 v{T}, v{MB+3}, v{M8}, v{T} ;!', f'v_max3_u32 v{T}, v{M8+1}, v{M8+2}, v{T} ;!', f'v_max_u32 v{T}, v{M8+3}, v{T} ;!', f'v_cmp_lt_u32 vcc, s66, v{T}']
        vs[ec] += c_[:2]; vs[ec+1] += c_[2:] + [f's_cbranch_vccnz {P}EC', f'{P}ER:']
    st = opt.get('st', [])
    def stamp(p):
        if p in st: a(f's_memtime s[{76+2*st.index(p)}:{77+2*st.index(p)}] ;!')
    a('\n'.join(pre + zs + nx3 + [wra, f'ds_read_b32 v{G4}, v0 offset:{L_PUB + 4*min(w, 2)}', 's_mov_b32 s66, -1']))
    if opt.get('prof'): a('s_memtime s[70:71]\ns_waitcnt lgkmcnt(0)\ns_mov_b32 s72, s49')
    if opt.get('drop') is not None: a('s_mov_b32 s49, 0\ns_mov_b32 s53, -1')
    if opt.get('prof'):
        for k in range(6): a(f's_mov_b32 s{90+k}, 0\ns_mov_b32 s{76+2*k}, s70')
    T = G4+1
    chk = f'v_max3_u32 v{T}, v{MA}, v{MA+1}, v{MA+2}\nv_max_u32 v{T}, v{MA+3}, v{T}\n{wra}\nv_cmp_lt_u32 vcc, s66, v{T}'
    a('s_waitcnt vmcnt(0) lgkmcnt(0)')
    if w < 3 and not mode and opt.get('rr', 1):
        a(f'v_mov_b64 {V(G4+2,2)}, -1')
        for sl in range(4): a(f's_mov_b32 s54, {WS_RING + sl*RSLOT}\nbuffer_store_dword{x2} {V(G4+2, 2 if w == 2 else 1)}, v{G4}, {WS}, s54 offen')
    if w == 3 and opt.get('rr', 1):
        a(f'v_lshlrev_b32 v{G4+2}, 3, v0\ns_add_u32 s54, s58, 0x80000\ns_add_u32 s55, s58, 0x82000\nbuffer_load_dword v{G4+3}, v{G4+2}, {WS}, s54 offen sc1 ;!\nbuffer_load_dword v{G4+3}, v{G4+2}, {WS}, s55 offen sc1 ;!')
    a(f'''s_branch {P}STEP
@loop {P}
{P}TOP:
{poll}
{BUD}
{P}TW:
@vmclear
s_waitcnt vmcnt({opt.get('depth', 1)}) lgkmcnt(0)
{chk}
s_cbranch_vccnz {P}TOP''')
    a('\n'.join(['s_cmp_eq_u32 s36, s36'] if ec is not None else ldb if lb is None or opt.get('lb2') else []) + f'\n{P}STEP:')
    stamp('top')
    for i, e in enumerate(l):
        if isinstance(e, str): a(DENSE[e])
        else:
            kind, idx = loc[e[0]]
            a(f'v_smfmac_f32_16x16x64_bf16 {V(e[2],4)}, {V(e[1],4)}, {X(idx if kind == "R" else e[3], 8)}, v2')
        stamp(i)
        a('\n'.join(x for x in ns[i] + vs[i] if not any(x.startswith(p) for p in opt.get('drop', []))))
    sel = f'ds_read_b128 {V(M8,4)}, v0 offset:{L_SEL}'
    al = opt.get('al', 'ack0'); d1 = opt.get('d1', (0, 0, 0)); xb = opt.get('xb', 'early')
    a(f'{cvt(W1+2, G1)}\n{cvt(W1+3, G1+2)}')
    if w == 1 and al == 'pre': a('\n'.join(nop(d1[1]) + rld))
    else: a('\n'.join(nop(opt.get('bd', 0))))
    a(f'buffer_store_dwordx4 {V(W1,4)}, v0, {WS}, s37 offen offset:1024{sf}\n{P}HOP:')
    stamp('hop')
    def reduce(beh, mid=()):
        bo = lambda d, x, y: f'v_bitop3_b32 v{d}, v{x}, v{y}, s65 bitop3:0x7e'
        T = G0; T2 = G1
        for i in range(4):
            a(f's_waitcnt vmcnt({3-i+beh + (len(mid) if i else 0)})')
            if i == 0:
                stamp('ld')
                if w == 1 and xb == 'bar': a(f's_barrier ;!\n{P}P1X:')
            o2 = (RB[i], M8) if w < 2 else (M8, RB[i])
            a(f'v_mfma_f32_16x16x32_bf16 {V(MB,4)}, {V(o2[0],4)}, {V(o2[1],4)}, ' + ('0' if i == 0 else V(MB,4)))
            if i == 0: a('\n'.join(mid) + '\n@vmclear')
            if i == 1: a(bo(T, RB[0], RB[1]))
            elif i == 3: a(bo(T2, RB[2], RB[3]))
        if w == 2 and mode:
            for i in range(4):
                for j in range(1, 4): a(f'v_bitop3_b32 v{T}, v{T}, v{RB[i]+j}, s65 bitop3:0xf6')
        a(f'v_bitop3_b32 v{T}, v{T}, v{T2}, 1 bitop3:0xa8\nv_cmp_lt_u32 vcc, s67, v{T}\ns_cbranch_vccnz {P}R1')
        if w < 2: a(f'v_permlane32_swap_b32 v{MB}, v{MB+2}\nv_permlane32_swap_b32 v{MB+1}, v{MB+3}\n' + '\n'.join(add2(MB) + [cvt(MB, MB)]))
        else: a('\n'.join([f'v_add_f32_dpp v{MB+i}, v{MB+i}, v{MB+i} row_ror:8 {DP}' for i in range(4)] + [cvt(MB, MB), cvt(MB+1, MB+2)]))
        a(f'buffer_store_dword{x2} {V(MB, 2 if w == 2 else 1)}, v{G4}, {WS}, s45 offen{sf}')
        stamp('p1')
    def endst(to):
        if spec: to = a.lab(P + 'SP')
        if st: a('s_memtime s[74:75] ;!')
        if st and 'tl' in opt:
            n_ = len(st)
            a(f's_waitcnt lgkmcnt(0)\ns_sub_u32 s88, s36, {opt["tl"]}\ns_cmp_lt_u32 s88, {20//n_}\ns_cbranch_scc0 {to}\ns_mul_i32 m0, s88, {n_}\ns_nop 0')
            for k in range(n_): a(f's_movreld_b32 s{16+k}, s{76+2*k}')
        elif st:
            a('s_waitcnt lgkmcnt(0)')
            for k in range(len(st)): a(f's_sub_u32 s88, s74, s{76+2*k}\ns_add_u32 s{90+k}, s{90+k}, s88\ns_mov_b32 s{76+2*k}, s74')
        if not spec: a(f's_branch {to}'); return
        a(f'{to}:\n@reset\n' + '\n'.join([poll]*(spec-2) + nop(opt.get('d3', 0)) + [x + ' ;!' for x in ldb]) + f'\n{BUD}')
        for i in range(spec): a(f'@vmclear\ns_waitcnt vmcnt({spec+1-i}) lgkmcnt(0)\n{chk}\ns_cbranch_vccz {P}STEP')
        a(f's_branch {P}TOP')
    pf = opt.get('pf', (4, 0, 0, 0))
    def plain(k=0):
        a('s_barrier ;!'); stamp('y')
        sp_ = nop(opt.get('sp', 0)); r = pre[k:]; h = len(r)//2; z0 = opt.get('z0', 8)
        a('\n'.join(nop(opt.get('d2', 0)) + zs[:z0] + [poll] + r[:h] + zs[z0:4+z0//2] + sp_ + ([poll] if opt.get('depth', 1) > 1 else []) + r[h:] + zs[4+z0//2:] + sp_))
    if w == 1:
        if al[:3] == 'ack': a('s_waitcnt vmcnt(%s)' % (al[3:] or 2))
        if al != 'pre': a('\n'.join(nop(d1[1]) + pre[:pf[1]] + rld))
        a(f'{sel}\n{BUD}\n@vmclear\n{P}P1:'); reduce(1 if al == 'pre' else 0); plain(pf[1]); a(f'@end {P}'); endst(f'{P}TOP')
    elif w == 3:
        a('\n'.join(nx3))
        if opt.get('clk'): a(f's_memtime s[90:91]\ns_memrealtime s[92:93]\ns_lshl_b32 s94, s3, 7\ns_add_u32 s94, s94, s36\ns_lshl_b32 s94, s94, 3\ns_add_u32 s94, s94, 0x220000\ns_waitcnt lgkmcnt(0)\nv_mov_b32 v{G0}, s90\nv_mov_b32 v{G0+1}, s92\nbuffer_store_dwordx2 {V(G0,2)}, off, {WS}, s94')
        if xb == 'bar': a('s_barrier ;!')
        plain(); a(f'@end {P}'); endst(f'{P}TOP')
    elif xb == 'early':
        if w == 2: a(f's_cmp_lg_u32 s55, 0\ns_cbranch_scc1 {P}NQ')
        a(f'{sel}\n{BUD}\ns_waitcnt vmcnt(%d)' % (0 if w == 0 else opt.get('ah', 0)))
        a('\n'.join(nop(d1[w]) + pre[:pf[w]] + rld + ['@vmclear', f'{P}P1:'])); reduce(0); plain(pf[w]); a(f'@end {P}'); endst(f'{P}TOP')
    else:
        if w == 2: a(f's_cmp_lg_u32 s55, 0\ns_cbranch_scc1 {P}NQ')
        a('\n'.join([sel] + pre + [BUD]))
        if xb == 'ack': a('s_waitcnt vmcnt(%d)' % (0 if w == 0 else 1))
        if xb == 'bar': a('s_barrier ;!')
        a('\n'.join(nop(d1[w]) + rld + ['s_barrier ;!'])); stamp('y')
        a('\n'.join(nop(opt.get('d2', 0)) + [poll, '@vmclear', f'{P}P1:'])); reduce(1, [poll] if opt.get('depth', 1) > 1 else [])
        a('\n'.join(zs) + f'\n@end {P}'); endst(f'{P}TW')
    T = N[3]
    a(f'''@reset
{P}PB:
{ldb[0]} ;!
{ldb[1]} ;!
{BUD}
@vmclear
s_waitcnt vmcnt({opt.get('pbd', 0)})
''' + '\n'.join(chb) + f'''
{wrb}
s_cbranch_vccnz {P}PB
s_waitcnt lgkmcnt(0)
s_branch {P}B''')
    if ec is not None: a(f'@reset\n{P}EC:\n{ldb[0]} ;!\n{ldb[1]} ;!\ns_branch {P}ER')
    if w < 3: a(f'@reset\n{P}R1:\n' + '\n'.join(rld) + f'\n{BUD}\ns_waitcnt vmcnt(0)\ns_branch {P}P1' + ('X' if w == 1 and xb == 'bar' else ''))
    if w == 2:
        a(f'@reset\n{P}NQ:')
        if xb == 'bar': a('s_barrier ;!')
        plain(); endst(f'{P}TOP')
    a(f'''@reset
{P}TAIL:
s_waitcnt lgkmcnt(0)
ds_read_b64_tr_b16 {V(G4,2)}, v6 offset:{L_K + w*512}
buffer_store_dwordx4 {V(G4,4)}, v0, {WS}, s48 offen sc1''')
    if opt.get('hst'): a(f's_mov_b32 s81, {mode+1}'); hstamps(a, 0, [(0,68),(13,82),(2,70),(3,78),(11,81)], w)
    elif opt.get('prof'):
        a(f'''s_memtime s[74:75]
s_waitcnt lgkmcnt(0)
s_sub_u32 s74, s74, s70
s_sub_u32 s70, s70, s68
s_sub_u32 s72, s72, s49
v_mov_b32 v8, s74
v_mov_b32 v9, s70
v_mov_b32 v10, s72
v_mov_b32 v11, {mode}
s_lshl_b32 s54, s3, 6
s_add_u32 s54, s54, {0x200000 + w*16}
buffer_store_dwordx4 v[8:11], off, {WS}, s54
s_add_u32 s54, s54, 0x1000
v_mov_b32 v12, s90
v_mov_b32 v13, s91
v_mov_b32 v14, s92
v_mov_b32 v15, s93
buffer_store_dwordx4 v[12:15], off, {WS}, s54''')
    if 'tl' in opt:
        a(f's_lshl_b32 s54, s3, 9\ns_add_u32 s54, s54, {0x210000 + w*128}')
        a(f'''s_memtime s[76:77]
s_memrealtime s[78:79]
s_mov_b32 s90, 0
s_mov_b32 s91, 0
s_mov_b32 s92, 0
s_waitcnt lgkmcnt(0)
{P}CAL:
s_memtime s[80:81]
s_memrealtime s[82:83]
s_waitcnt lgkmcnt(0)
s_sub_u32 s80, s80, s76
s_sub_u32 s82, s82, s78
s_add_u32 s90, s90, s80
s_add_u32 s91, s91, s82
s_add_u32 s92, s92, 1
s_cmp_lt_u32 s92, 256
s_cbranch_scc1 {P}CAL
v_mov_b32 v40, s76
v_mov_b32 v41, s78
v_mov_b32 v42, s90
v_mov_b32 v43, s91''')
        for k in range(20): a(f'v_mov_b32 v{20+k}, s{16+k}')
        for k in range(6): a(f'buffer_store_dwordx4 {V(20+4*k,4)}, off, {WS}, s54 offset:{16*k}')
    a('s_waitcnt vmcnt(0)\ns_endpgm')
    a(f'''@reset
{P}FB:
s_waitcnt vmcnt(0) lgkmcnt(0)
ds_write_b64 v6, {V(G4,2)} offset:{L_Q + w*512}
ds_read_b128 {V(G2,4)}, v0 offset:{L_ONE}
s_barrier''')
    for u in range(4): a(f'ds_read_b64 {V(X0+2*u,2)}, v6 offset:{L_Q + u*512}')
    t = G3
    a(f'''s_waitcnt lgkmcnt(0)
s_barrier
v_max3_f32 v{t}, v{X0}, v{X0+1}, v{X0+2}
v_max3_f32 v{t}, v{t}, v{X0+3}, v{X0+4}
v_max3_f32 v{t}, v{t}, v{X0+5}, v{X0+6}
v_max3_f32 v{t}, v{t}, v{X0+7}, v{M8}
v_max_f32 v{t}, v{t}, v{M8+1}
v_mov_b32 v{t+1}, v{t}
v_permlane16_swap_b32 v{t}, v{t+1}
v_max_f32 v{t}, v{t}, v{t+1}
v_mov_b32 v{t+1}, v{t}
v_permlane32_swap_b32 v{t}, v{t+1}
v_max_f32 v{t}, v{t}, v{t+1}''')
    rs = [X0+i for i in range(8)] + [M8, M8+1]
    for r in rs: a(f'v_sub_f32 v{r}, v{r}, v{t}')
    for r in rs: a(f'v_exp_f32_dpp v{r}, v{r} quad_perm:[0,1,0,1] {DP}')
    for u in range(4): a(cvt(G1+u, X0+2*u))
    a(cvt(G0, M8)); a(cvt(G0+3, M8))
    for e in ('zx', 'px0', 'px1', 'zm', 'pm0', 'pm1'): a(DENSE[e])
    a('\n'.join(zero(G2)) + f'\nv_rcp_f32 v{G3}, v{G3}\ns_mov_b64 vcc, 0\ns_nop 7\ns_branch {P}RJ')
    if w == 3:
        a(f'''@reset
{P}FL:
buffer_load_dword v7, off, {WS}, s57 sc1
s_cmp_lt_u32 s49, 1
s_waitcnt vmcnt(0)
s_cbranch_scc1 {P}FR
s_sub_u32 s49, s49, 1
v_readfirstlane_b32 s54, v7
s_lshr_b32 s54, s54, s60
s_and_b32 s54, s54, 0xff
s_cmp_gt_u32 s54, s61
s_cbranch_scc1 {P}FR
s_branch {P}FL''')

def gen(opt):
    out = []
    a = Asm(); a('REC:')
    if opt.get('prof'): a('s_memtime s[68:69]')
    srds(a, [('ws',8),('dbg',12),('wq',SWQ),('wk',SWK),('wv',SWV),('wo',SWO),('mem0',SM0)])
    for w in range(1, 4): a(f's_cmp_eq_u32 s4, {w}\ns_cbranch_scc1 RECW{w}')
    out.append(a.text())
    for w in range(4):
        l, loc, n, us = plan(w)
        a = Asm(); a.uid = 100*w; a(f'RECW{w}:'); init(a, w, loc)
        if opt.get('mode') is None: a(f's_cmp_eq_u32 s64, 32\ns_cbranch_scc0 RECM{w}')
        elif opt['mode'] == 1: a(f's_branch RECM{w}')
        step(a, w, 0, l, loc, n, us, opt)
        a(f'@reset\nRECM{w}:'); step(a, w, 1, l, loc, n, us, opt)
        out.append(a.text())
        if opt.get('sim') == w:
            for t, x in a.sim(f'R{w}0TOP', f'R{w}0TAIL'): print(t, x)
    return '\n'.join(out)
```

```python
from common import *
import struct
N = [8+4*i for i in range(6)]; MA, MB, M8, X0, X1, W0, W1 = 32, 36, 40, 44, 48, 52, 56
G0, G1, G2, G3, G4 = 60, 64, 68, 72, 76
PA, PB, PC = N[0], N[2], N[4]
L_Q, L_K, L_SEL, L_PUB, L_P, L_ONE, L_W = 8192, 10240, 12288, 13312, 14336, 15360, 16384
WREG = 36864
WS, DBG, SWQ, SWK, SWV, SWO, SM0 = 's[8:11]', 's[12:15]', 16, 20, 24, 28, 32
def f2u(x): return struct.unpack('<I', struct.pack('<f', x))[0]

def plan(w, opt):
    a_, b_ = w, 4+w; n = [c for c in range(8) if c not in (a_, b_)]
    us = [u for u in range(4) if u != w]
    Q = lambda T, c, A, buf=None: (('q', T, c), A, (G0, G1)[T], buf)
    K = lambda T, c, A, buf=None: (('k', T, c), A, (G2, G3)[T], buf)
    Vv = lambda T, c, A, buf=None: (('v', T, c), A, (W0, W1)[T], buf)
    acc = (G2, W0, W1, G1)
    O = lambda u, t, A, buf=None: (('o', u, t), A, acc[t], buf)
    s = {}
    sx, sm = opt.get('sx', 45), opt.get('sm', 55)
    st = {0: PA, 1: PB, 2: PC, 3: X0, 9: PC, 16: PC, 23: PC, 64: PC, 77: PC, 79: PA, 81: PB}
    for u in opt.get('xs', (11, 19, 27, 34, 41, 48, 54)): st[u] = X0
    l = []
    for c, A in ((a_, MA), (n[0], N[0]), (n[1], N[1]), (n[2], N[2])): l += [Q(0,c,A), Q(1,c,A), K(0,c,A), K(1,c,A), Vv(0,c,A), Vv(1,c,A)]
    B5 = [(b_, MB), (8, M8), (n[3], N[3]), (n[4], N[4]), (n[5], N[5])]
    l += [Q(T, *B5[i]) for T, i in ((0,0),(1,0),(0,1),(1,1),(0,2),(0,3),(0,4),(1,2),(1,3),(1,4))]
    l += [K(T, *B5[i]) for T in range(2) for i in range(5)]
    l += [Vv(T, *B5[i]) for T, i in ((0,0),(1,0),(0,1),(1,1),(0,2),(1,2),(0,3),(0,4),(1,3),(1,4))]
    l[sx:sx] = ['sx0', 'sx1']; l[sm:sm] = ['sm0', 'sm1']
    l += ['zx', 'px0', 'zm', 'px1', 'pm0', 'pm1'] if opt.get('zm', 60) == 60 else ['zx', 'px0', 'px1', 'zm', 'pm0', 'pm1']
    l += [O(w,t,M8) for t in range(4)]
    oa = (MA, MB, G3)
    for t in range(4):
        if t == 2: l += [(('h',0,0), X0, G0, None), (('h',1,0), X1, G0, None)]
        for k in range(3): l.append(O(us[k], t, oa[k]))
    for i, b in st.items(): l[i] = l[i][:3] + (b,)
    loc = {}; nl = nr = 0
    for e in l:
        if isinstance(e, str): continue
        if e[3] is not None: loc[e[0]] = ('L', nl); nl += 1
        else: loc[e[0]] = ('R', 80+8*nr); nr += 1
    assert nl == 18 and nr == 54, (nl, nr)
    return l, loc, n, us

def init(a, w, loc):
    a('s_mul_i32 s54, s3, %d' % PHEAD)
    a(f's_add_u32 s37, s54, {WS_PART + w*2048}\ns_add_u32 s38, s54, {WS_PART + 8192 + 256*w}')
    for n in range(4): a(f's_mov_b32 s{39+n}, {WS_PART + n*8*PHEAD}')
    a(f's_mov_b32 s45, {WS_RING}\ns_mov_b32 s46, {WS_RING+0x8000}\ns_lshl_b32 s54, s3, 14\ns_add_u32 s47, s54, {WS_KV + w*4096}\ns_add_u32 s58, s54, {WS_KV}')
    a(f's_lshl_b32 s54, s3, 12\ns_add_u32 s48, s54, {WS_KM + w*1024}\ns_mov_b32 s49, 400000\ns_mov_b32 s36, 0')
    sc = f2u(128**-0.5 * 1.4426950408889634)
    a(f's_mov_b32 s50, {sc}\ns_mov_b32 s51, {sc}\ns_mov_b32 s52, {(127-48)<<23}\ns_mov_b32 s53, {112<<23}\ns_lshl_b32 s57, s3, 2')
    lane(a, 8)
    if w < 2: a(f's_lshr_b32 s59, s3, 3\ns_lshl_b32 s59, s59, 11\ns_add_u32 s59, s59, {1024 if w == 0 else 0}\ns_and_b32 s60, s3, 7')
    elif w == 2: a('s_mov_b32 s59, 8192\ns_lshr_b32 s60, s3, 2\ns_and_b32 s55, s3, 3')
    if w < 3:
        red_addr(a, w, 7, 8, 9)
        a('s_and_b32 s54, s60, 1\ns_lshl_b32 s54, s54, 8\ns_lshr_b32 s61, s60, 1\ns_lshl_b32 s61, s61, 6\ns_add_u32 s54, s54, s61\ns_lshr_b32 s61, s3, 3\ns_lshl_b32 s61, s61, 10\ns_add_u32 s54, s54, s61\ns_add_u32 s54, s54, %d' % (4096 if w == 0 else 0))
        expr(a, 10, 8, [(1,1,512),(2,1,32),(0,1,16),(4,1,8),(5,1,4),(3,1,1<<30)], 's54', 9)
        if w == 2:
            a('s_lshr_b32 s54, s60, 2\ns_lshl_b32 s54, s54, 5\ns_bfe_u32 s61, s60, 0x10001\ns_lshl_b32 s61, s61, 9\ns_add_u32 s54, s54, s61\ns_and_b32 s61, s60, 1\ns_lshl_b32 s61, s61, 7\ns_add_u32 s54, s54, s61\ns_add_u32 s54, s54, 8192')
            expr(a, 10, 8, [(0,1,8),(1,1,256),(2,1,64),(4,1,16),(3,1,1<<30),(5,1,1<<28)], 's54', 9)
            a('v_xor_b32 v10, 0x10000000, v10')
            a('s_lshl_b32 s54, s55, 29\nv_or_b32 v10, s54, v10')
        a('v_mov_b64 v[12:13], -1\nv_mov_b64 v[14:15], -1')
        for sl in range(1):
            for n in range(4):
                a(f's_mov_b32 s54, {WS_PART + sl*PSLOT + n*8*PHEAD}\nbuffer_store_dwordx4 v[12:15], v7, {WS}, s54 offen sc1')
        for sl in range(4): a(f's_mov_b32 s54, {WS_RING + sl*RSLOT}\nbuffer_store_dword{"x2 v[12:13]" if w == 2 else " v12"}, v10, {WS}, s54 offen sc1')
        a(f'v_lshlrev_b32 v11, 4, v8\nds_write_b32 v11, v10 offset:{L_PUB + 4*w}')
        if w == 1: a(f's_add_u32 s57, s57, {WS_FLAG + 0x2000}\ns_and_b32 s58, s3, 3\ns_lshl_b32 s58, s58, 8\ns_add_u32 s58, s58, {WS_FLAG + 0x2000}\nv_and_b32 v11, 0x300, v11\nbuffer_store_dword v12, v11, {WS}, s57 offen sc1')
    else:
        expr(a, 16, 8, [(0,2,2),(2,1,1)], 0, 9)
        a('v_and_b32 v9, 15, v8\nv_cmp_lt_u32 vcc, 7, v9\nv_cndmask_b32 v9, v9, v16, vcc\nv_mov_b32 v10, 0x3f80\nv_mov_b32 v11, 0x3f800000')
        for r in range(4):
            a(f'v_mov_b32 v{12+r}, 0\nv_cmp_eq_u32 vcc, {2*r}, v9\nv_cndmask_b32 v{12+r}, v{12+r}, v10, vcc\nv_cmp_eq_u32 vcc, {2*r+1}, v9\nv_cndmask_b32 v{12+r}, v{12+r}, v11, vcc')
        a(f'v_lshlrev_b32 v11, 4, v8\nds_write_b128 v11, v[12:15] offset:{L_SEL}')
        for r in range(4): a(f'v_mov_b32 v{16+r}, 0x3f803f80')
        a(f'ds_write_b128 v11, v[16:19] offset:{L_ONE}')
    expr(a, 0, 8, [(4,2,64)], (w&1)*16, 9); expr(a, 1, 8, [(0,4,16)], 0, 9); a('v_xor_b32 v0, v0, v1')
    expr(a, 1, 8, [(4,1,8192),(5,1,32*8192)], 4*w*8192, 9); a('v_add_u32 v0, v0, v1')
    expr(a, 4, 8, [(5,1,64)], (w&1)*128, 9); expr(a, 1, 8, [(0,5,16)], 0, 9); a('v_xor_b32 v4, v4, v1')
    expr(a, 1, 8, [(5,1,1152)], (32*(w&1) + 4*(w>>1))*1152, 9); a('v_add_u32 v4, v4, v1')
    expr(a, 7, 8, [(4,1,32)], (w&1)*64, 9); expr(a, 1, 8, [(0,3,16)], 0, 9); a('v_xor_b32 v7, v7, v1')
    expr(a, 1, 8, [(3,1,1152),(4,1,8*1152),(5,1,64*1152)], (32*(w&1) + 4*(w>>1))*1152, 9); a('v_add_u32 v7, v7, v1')
    base = [(4,2,WREG),(0,1,8)]
    expr(a, 2, 8, [(1,1,32)], (8*(w>>1) + (w&1))*16, 9); expr(a, 1, 8, [(4,1,16),(2,2,64)], 0, 9); a('v_xor_b32 v2, v2, v1')
    expr(a, 1, 8, base + [(2,2,256)], L_W, 9); a('v_add_u32 v2, v2, v1\nv_xor_b32 v3, 64, v2')
    expr(a, 5, 8, [(1,1,16),(3,1,32)], 8*w*16, 9); expr(a, 1, 8, [(2,1,64),(4,1,128)], 0, 9); a('v_xor_b32 v5, v5, v1')
    expr(a, 1, 8, base + [(2,1,512)], L_W, 9); a('v_add_u32 v5, v5, v1\nv_xor_b32 v6, 64, v5')
    expr(a, 1, 8, [(0,6,16)], L_W + WREG*w, 9)
    a('s_lshl_b32 s62, s3, 8\ns_mul_i32 s63, s3, %d' % (128*1152))
    groups = [(m, c) for m in 'qkv' for c in range(9)] + [('o', u, tp) for u in range(4) for tp in range(2)] + [('h',)]
    def dma(gi):
        g = groups[gi]
        for p in range(4):
            a(f's_mov_b32 m0, {L_W + WREG*w + (5 + gi%4)*4096 + p*1024}')
            ro = 16*(p>>1) + 2*(p&1)
            if g[0] in 'qkv': off, sb, vr, srd = (64*g[1] + ro)*8192, 62, 0, {'q':SWQ,'k':SWK,'v':SWV}[g[0]]
            elif g[0] == 'o': off, sb, vr, srd = (64*(g[1]>>1) + 8*(g[1]&1) + ro)*1152 + 512*g[2], 63, 4, SWO
            else: off, sb, vr, srd = ro*1152 + 1024, 63, 7, SWO
            a(f's_add_u32 s54, s{sb}, {off}\nbuffer_load_dwordx4 v{vr}, s[{srd}:{srd+3}], s54 offen lds')
    for gi in range(3): dma(gi)
    for gi, g in enumerate(groups):
        left = min(len(groups)-1-gi, 2)
        a(f's_waitcnt vmcnt({4*left}) lgkmcnt(0)\ns_barrier')
        if gi == 0 and w == 0:
            a(f's_getreg_b32 s64, hwreg(HW_REG_XCC_ID,0,3)\ns_lshl_b32 s54, s64, 2\ns_add_u32 s54, s54, 128\nv_mov_b32 v8, 1\ns_mov_b64 exec, 1\nbuffer_atomic_add v8, off, {DBG}, s54 sc1\ns_mov_b64 exec, -1')
        if gi+3 < len(groups): dma(gi+3)
        if g[0] == 'h':
            lane(a, 8)
            expr(a, 0, 8, [(1,1,16)], 2*w*16, 9); expr(a, 2, 8, [(3,1,32),(4,1,64)], 0, 9); a('v_xor_b32 v0, v0, v2')
            expr(a, 2, 8, base + [(2,2,128)], L_W, 9); a('v_add_u32 v0, v0, v2')
        for T in range(2):
            if g[0] in 'qkv': key, ad, ex = (g[0], T, g[1]), 2+T, 0
            elif g[0] == 'o': key, ad, ex = ('o', g[1], 2*g[2]+T), 5+T, 0
            else: key, ad, ex = ('h', T, 0), 0, 512*T
            kind, idx = loc[key]
            dst = idx if kind == 'R' else (8 if idx < 10 else 16 + 8*(idx-10))
            for p in range(4): a(f'ds_read_b64_tr_b16 {X(dst+2*p,2)}, v{ad} offset:{(5+gi%4)*4096 + p*1024 + ex}')
            if kind == 'L' and idx < 10:
                a(f'ds_write_b128 v1, v[8:11] offset:{idx*2048}\nds_write_b128 v1, v[12:15] offset:{idx*2048+1024}')
    a('s_waitcnt lgkmcnt(0)\ns_barrier')
    for idx in range(10, 18):
        r = 16 + 8*(idx-10)
        a(f'ds_write_b128 v1, {V(r,4)} offset:{idx*2048}\nds_write_b128 v1, {V(r+4,4)} offset:{idx*2048+1024}')
    lane(a, 8)
    a('v_lshlrev_b32 v0, 4, v8\nv_lshrrev_b32 v6, 4, v8\nv_xor_b32 v6, v6, v8\nv_lshlrev_b32 v6, 3, v6')
    expr(a, 2, 8, [(1,1,0xAAAA)], 0x4444, 9)
    expr(a, 4, 8, [(4,2,256),(2,2,32),(0,1,16)], 0, 9)
    expr(a, 3, 8, [(1,1,128)], 'v4', 9)
    expr(a, 5, 8, [(0,4,32),(4,2,8)], 0, 9); expr(a, 10, 8, [(2,2,8)], 0, 9); a('v_xor_b32 v5, v5, v10')
    if w < 3: red_addr(a, w, 7, 8, 9)
    expr(a, 10, 8, [(2,2,2304),(0,1,1152),(1,1,64),(4,2,16)], 0, 9)
    a('s_waitcnt lgkmcnt(0)')
    for r, ch in ((MA, w), (M8, 8), (MB, 4+w)): a(f'buffer_load_dwordx4 {V(r,4)}, v10, s[{SM0}:{SM0+3}], 0 offen offset:{ch*128}')
    L = a.lab('RSB'); E = a.lab('RSE')
    a(f'''s_mov_b32 s54, 128
{L}:
buffer_load_dwordx4 v[8:11], off, {DBG}, s54 sc1
buffer_load_dwordx4 v[12:15], off, {DBG}, s54 offset:16 sc1
s_cmp_lt_u32 s49, 1
s_cbranch_scc1 {E}
s_sub_u32 s49, s49, 1
v_add3_u32 v16, v8, v9, v10
v_add3_u32 v16, v16, v11, v12
v_add3_u32 v16, v16, v13, v14
v_add_u32 v16, v16, v15
v_cmp_gt_u32 vcc, 32, v16
s_cbranch_vccnz {L}
{E}:
s_waitcnt vmcnt(0)
v_max3_u32 v16, v8, v9, v10
v_max3_u32 v16, v16, v11, v12
v_max3_u32 v16, v16, v13, v14
v_max_u32 v16, v16, v15
v_readfirstlane_b32 s64, v16''')
    if w == 3:
        L = a.lab('RF'); E = a.lab('RFE')
        a(f'''{L}:
buffer_load_dword v7, off, {DBG}, s57 sc1
s_cmp_lt_u32 s49, 1
s_cbranch_scc1 {E}
s_sub_u32 s49, s49, 1
v_readfirstlane_b32 s54, v7
s_and_b32 s59, s54, 0xff
s_cbranch_scc0 {L}
s_and_b32 s59, s54, 0xff00
s_cbranch_scc0 {L}
s_and_b32 s59, s54, 0xff0000
s_cbranch_scc0 {L}
s_and_b32 s59, s54, 0xff000000
s_cbranch_scc0 {L}
{E}:
s_lshl_b32 s57, s3, 7
s_add_u32 s57, s57, {WS_FLAG}
s_waitcnt vmcnt(0)''')

def red_addr(a, w, d, ln, tmp):
    a('s_lshl_b32 s54, s60, 7\ns_add_u32 s54, s54, s59')
    expr(a, d, ln, [(3,3,PHEAD),(0,3,16)], 's54', tmp)
    if w == 2: a(f's_lshl_b32 s54, s55, 29\nv_or_b32 v{d}, s54, v{d}')

def zero(b): return [f'v_mov_b64 {V(b,2)}, 0', f'v_mov_b64 {V(b+2,2)}, 0']
def ldw(buf, idx): return [f'ds_read_b128 {V(buf,4)}, v1 offset:{idx*2048}', f'ds_read_b128 {V(buf+4,4)}, v1 offset:{idx*2048+1024}']
def cvt(d, s): return f'v_cvt_pk_bf16_f32 v{d}, v{s}, v{s+1}'
def padd(b): return f'v_pk_add_f32 {V(b,2)}, {V(b,2)}, {V(b+2,2)}'
DP = 'row_mask:0xf bank_mask:0xf'
DENSE = {
 'sx0': f'v_mfma_f32_16x16x32_bf16 {V(G4,4)}, {V(MA,4)}, {V(G0,4)}, 0',
 'sx1': f'v_mfma_f32_16x16x32_bf16 {V(G4,4)}, {V(N[0],4)}, {V(G1,4)}, {V(G4,4)}',
 'sm0': f'v_mfma_f32_16x16x32_bf16 {V(M8,4)}, {V(G2,4)}, {V(G0,4)}, 0',
 'sm1': f'v_mfma_f32_16x16x32_bf16 {V(M8,4)}, {V(G3,4)}, {V(G1,4)}, {V(M8,4)}',
 'zx': f'v_mfma_f32_16x16x32_bf16 {V(G3,4)}, {V(MB,4)}, {V(N[0],4)}, 0',
 'zm': f'v_mfma_f32_16x16x16_bf16 {V(G3,4)}, {V(MB,2)}, {V(MA,2)}, {V(G3,4)}',
 'px0': f'v_mfma_f32_16x16x32_bf16 {V(X0,4)}, {V(N[1],4)}, {V(N[0],4)}, 0',
 'px1': f'v_mfma_f32_16x16x32_bf16 {V(X1,4)}, {V(N[2],4)}, {V(N[0],4)}, 0',
 'pm0': f'v_mfma_f32_16x16x16_bf16 {V(X0,4)}, {V(G4+2,2)}, {V(MA,2)}, {V(X0,4)}',
 'pm1': f'v_mfma_f32_16x16x16_bf16 {V(X1,4)}, {V(G4+2,2)}, {V(MA+2,2)}, {V(X1,4)}',
}
def step(a, w, mode, l, loc, n, us, opt):
    sf = ' sc1' if mode else ''
    P = f'R{w}{mode}'
    ns = {i: [] for i in range(len(l))}; vs = {i: [] for i in range(len(l))}
    def put(d, s0, lst, per=1):
        for i, x in enumerate(lst): d[s0 + i//per].append(x)
    lidx = {i: loc[e[0]][1] for i, e in enumerate(l) if not isinstance(e, str) and e[3] is not None}
    pos = lambda ch: (ch&3)*2048 + (ch>>2)*1024
    add2 = lambda b: [f'v_add_f32 v{b}, v{b}, v{b+2}', f'v_add_f32 v{b+1}, v{b+1}, v{b+3}']
    tag = lambda r: f'v_and_or_b32 v{r}, v{r}, -2, s65'
    rdc = lambda r, c: f'ds_read_b128 {V(r,4)}, v0 offset:{pos(c)}'
    x2 = "x2" if w == 2 else ""
    g = opt.get
    b1, bw, cw, b2, bq, bk, bp, sx, sm, zm = g('b1', 1), g('bw', 19), g('cw', 21), g('b2', 24), g('bq', 41), g('bk', 51), g('bp', 55), g('sx', 45), g('sm', 55), g('zm', 60)
    last = lambda key: max(i for i, e in enumerate(l) if not isinstance(e, str) and e[0][:len(key)] == key)
    ns[b1] += ['s_barrier', rdc(N[0], n[0])]; ns[b1+1] += [rdc(N[1], n[1]), rdc(N[2], n[2])]
    T = N[3]
    wrb = f'ds_write_b128 v0, {V(MB,4)} offset:{w*2048+1024}'
    chb = [f'v_max3_u32 v{T}, v{MB}, v{MB+1}, v{MB+2}', f'v_max3_u32 v{T}, v{MB+3}, v{M8}, v{T}', f'v_max3_u32 v{T+1}, v{M8+1}, v{M8+2}, v{M8+3}', f'v_max_u32 v{T}, v{T+1}, v{T}', f'v_cmp_lt_u32 vcc, s66, v{T}']
    for i, r, ad, of in ((6, MA, 3, 0), (12, N[0], 3, 1024), (18, N[1], 0, 2048), (24, N[2], 0, 3072)):
        ns[i].append(f'buffer_load_dwordx4 {V(r,4)}, v{ad}, {WS}, s47 offen offset:{of} sc1')
    ns[bw] += [wrb]; vs[bw] += chb[:1]; vs[cw] += chb[1:3]; vs[cw+1] += chb[3:]; vs[min(cw+2, 23)] += [f's_cbranch_vccnz {P}PB', f'{P}B:']
    ns[b2] += ['s_barrier', rdc(N[3], n[3])]; ns[max(b2+1, 24)] += [rdc(N[4], n[4]), rdc(N[5], n[5])]
    prev = {}
    for u in sorted(lidx):
        bf = l[u][3]
        if u > 3: put(ns, g('ls', {}).get(u, {64: 58, 77: 70, 79: 72, 81: 74}.get(u, prev[bf] + 1)), ldw(bf, lidx[u]))
        prev[bf] = u
    if w < 3:
        vs[3].append(f'v_mov_b64 {V(T,2)}, -1')
        ns[7].append(f'buffer_store_dword{x2} {V(T, 2 if w == 2 else 1)}, v{G4}, {WS}, s46 offen{sf}')
    ns[14].append(f'ds_read_b64_tr_b16 {V(G4,2)}, v6 offset:{L_K + w*512}')
    ns[g('kms', 30) + g('kst', 2)*w] += [f'buffer_store_dwordx4 {V(G4,4)}, v0, {WS}, s48 offen' + opt.get('kmf', ' sc1')]
    ns[47] += ['s_add_u32 s48, s48, %d' % opt.get('kmi', 0x20000)]; ns[26] += ['s_add_u32 s47, s47, %d' % opt.get('kvi', 0x80000)]
    ns[27] += ['s_add_u32 s45, s45, 0x4000']; ns[31] += ['s_bitset0_b32 s45, 16', 's_add_u32 s44, s45, 8192']; ns[33] += [f's_add_u32 s43, s45, {w*1024}', f's_add_u32 s63, s45, {4096 + w*1024}']
    ns[38] += ['s_xor_b32 s46, s45, 0x8000', 's_and_b32 s65, s36, 1']
    tch = opt.get('touch', 1)
    if w == 3:
        vs[3].append('v_readfirstlane_b32 s54, v7 ;!'); vs[13].append(f'v_lshlrev_b32 v7, 3, v0 ;!')
        ns[6] += ['s_lshr_b32 s54, s54, s60']; ns[7] += ['s_and_b32 s54, s54, 0xff']
        ns[8] += ['s_cmp_gt_u32 s54, s61']; ns[9] += [f's_cbranch_scc0 {P}FL']*(1-opt.get('nofl', 0)) + [f'{P}FR:']
        ts = g('ts', 26)
        if tch: put(ns, ts, [f'buffer_load_dword v7, v7, {WS}, s59 offen sc1 ;!', f'buffer_load_dword v7, v7, {WS}, s62 offen sc1 ;!'])
        ns[ts+4] += [f'buffer_load_dword v7, off, {WS}, s57 sc1 ;!']
    qpost = lambda b, d: [f'v_mul_f32 v{b}, s50, v{b}', f'v_mul_f32 v{b+1}, s50, v{b+1}', f'v_fmac_f32 v{b}, s50, v{b+2}', f'v_fmac_f32 v{b+1}, s50, v{b+3}', cvt(d, b)]
    put(vs, 32, qpost(G0, G0), 2); put(vs, 35, qpost(G1, G0+1) + [f'ds_write_b64 v5, {V(G0,2)} offset:{L_Q + w*512}'], g('qp', 3))
    trq = [f'ds_read_b64_tr_b16 {V(G0+2*u,2)}, v6 offset:{L_Q + u*512}' for u in range(4)]
    ns[bq] = ['s_barrier'] + trq[:2] + ns[bq]; ns[bq+1] = trq[2:] + ns[bq+1]
    k0, k1 = last(('k', 0)), last(('k', 1))
    put(vs, k0+2, add2(G2) + [cvt(G2, G2)]); put(vs, k1+2, add2(G3) + [cvt(G2+1, G3), f'ds_write_b64 v5, {V(G2,2)} offset:{L_K + w*512}'], g('kp', 2))
    spost = lambda b: [f'v_add_f32_dpp v{b}, v{b+2}, v{b} quad_perm:[2,3,0,1] {DP}', f'v_add_f32_dpp v{b+1}, v{b+3}, v{b+1} quad_perm:[2,3,0,1] {DP}',
                       f'v_exp_f32_dpp v{b+2}, v{b} quad_perm:[0,1,0,1] {DP}', f'v_exp_f32_dpp v{b+3}, v{b+1} quad_perm:[0,1,0,1] {DP}']
    put(vs, sx+3, spost(G4) + [cvt(G4+2, G4+2), f'ds_write_b32 v0, v{G4+2} offset:{L_P + 4*w}'], 2)
    trk = [f'ds_read_b64_tr_b16 {V(G2+2*u,2)}, v6 offset:{L_K + u*512}' for u in range(4)]
    ns[bk] = ['s_barrier'] + trk[:2] + ns[bk]; ns[bk+1] = trk[2:] + ns[bk+1]
    put(vs, sx+6, [f'v_mov_b32 v{MA+1}, 0', f'v_mov_b32 v{MA+2}, 0'])
    ns[last(('v', 1, 4+w))+1].append(f'ds_read_b128 {V(MB,4)}, v0 offset:{L_ONE}')
    ns[bp] = ['s_barrier']*(bp != bk) + ns[bp] + [f'ds_read_b128 {V(N[0],4)}, v0 offset:{L_P}']
    put(vs, sm+g('mo', 2), spost(M8) + [cvt(MA, M8+2), cvt(MA+3, M8+2)], 2)
    ns[56].append('s_cmp_eq_u32 s36, 63')
    v0_, v1_ = last(('v', 0)), last(('v', 1))
    put(vs, v0_+g('vo', 2), add2(W0) + [cvt(G4+2, W0)], 2); put(vs, v1_+2, add2(W1) + [cvt(G4+3, W1)], 2)
    ns[61].append(f's_cbranch_scc1 {P}TAIL')
    vs[61] += zero(G2); vs[zm+2] += [f'v_rcp_f32 v{G3}, v{G3}', f'v_subrev_u32 v{G3+2}, s52, v{G3+2}']
    mul = [f'v_pk_mul_f32 {V(X0+2*i,2)}, {V(X0+2*i,2)}, {V(G3,2)} op_sel_hi:[1,0]' for i in range(4)]
    co = [cvt(M8+i, X0+2*i) for i in range(4)]
    if zm == 61: vs[62] += zero(W0)
    vs[63] += [f'v_cmp_le_u32 vcc, s53, v{G3+2}'] + zero(W0)*(zm == 60) + [f'{P}RJ:'] + mul[:2] + [f's_cbranch_vccnz {P}FB'] + co[:2] + mul[2:] + co[2:]
    vs[63] += [f'ds_write_b128 v4, {V(M8,4)} offset:{L_Q + (w>>1)*1024 + (w&1)*128}', 's_waitcnt lgkmcnt(1)']
    vs[64] += zero(W1); vs[65] += zero(G1); vs[66] += zero(G0)
    ro = [f'ds_read_b128 {V(r,4)}, v4 offset:{L_Q + (u>>1)*1024 + (u&1)*128}' for r, u in zip((MA, MB, G3), us)]
    ns[opt.get('bo', 66)] += ['s_barrier'] + ro
    put(ns, 68, [f'ds_read_b128 {V(X0+4*j,4)}, v3 offset:{L_Q + j*1024}' for j in range(2)])
    put(vs, 72, [cvt(G2, G2), cvt(G2+1, G2+2), tag(G2)]); vs[75] += [cvt(G2+2, W0), cvt(G2+3, W0+2)]
    (vs[75] if g('ast') is None else ns[76 + g('ast')*w]).append(f'buffer_store_dwordx4 {V(G2,4)}, v0, {WS}, s37 offen{sf}')
    put(vs, 77, add2(G0) + [cvt(M8+1, G0), tag(M8+1)]); vs[81] += [cvt(W1, W1), cvt(W1+1, W1+2), tag(W1)]
    vs[68].append(f'v_lshrrev_b32 v{M8}, 2, v0')
    hold = opt.get('hold', 0)
    sth = f'buffer_store_dword v{M8+1}, v{M8}, {WS}, s38 offen{sf}'; stb = f'buffer_store_dwordx4 {V(W1,4)}, v0, {WS}, s37 offen offset:1024{sf}'
    if not hold & 1: ns[81].append(sth)
    hs = [stb]*(hold>>1) + [sth]*(hold&1); XB = '\n'.join(['s_barrier ;!'] + hs)
    if w < 3: ns[76].append(f'ds_read_b32 v{G4}, v0 offset:{L_PUB + 4*w}')
    ns[77].append('s_add_u32 s36, s36, 1')
    nx3 = ['s_add_u32 s59, s36, 2', 's_min_u32 s59, s59, 63', 's_lshl_b32 s60, s59, 3', 's_lshr_b32 s61, s59, 2', 's_lshl_b32 s59, s59, 19', 's_add_u32 s59, s59, s58', 's_add_u32 s62, s59, 8192'] if w == 3 else []
    RB = [G0, G1, G2, G3]
    rld = [f'buffer_load_dwordx4 {V(RB[i],4)}, v7, {WS}, s{39+i} offen sc1 ;!' for i in range(4)]
    BUD = 's_sub_u32 s49, s49, 1\ns_cselect_b32 s49, 0, s49\ns_cselect_b32 s66, -1, -2\ns_cselect_b32 s67, 1, 0'
    pre = ldw(PA, lidx[0]) + ldw(PB, lidx[1]) + ldw(PC, lidx[2]) + ldw(X0, lidx[3])
    zs = zero(G0) + zero(G1) + zero(G2) + zero(G3) + zero(W0) + zero(W1)
    wra = f'ds_write_b128 v0, {V(MA,4)} offset:{w*2048}'
    poll = f'buffer_load_dwordx4 {V(MA,4)}, v0, {WS}, s43 offen sc1 ;!'
    ldb = [f'buffer_load_dwordx4 {V(MB,4)}, v0, {WS}, s63 offen sc1', f'buffer_load_dwordx4 {V(M8,4)}, v0, {WS}, s44 offen sc1']
    nop = lambda k: ['s_nop 3']*k
    lb = opt.get('lb')
    if lb is not None:
        ns[0].append('s_cmp_eq_u32 s36, 0'); ns[lb] += [f's_cbranch_scc1 {P}LB'] + ldb + [f'{P}LB:']
    fs = opt.get('fs'); F = N[3]
    fpoll = f'buffer_load_ushort v{F+3}, v{F+2}, {WS}, s58 offen sc1 ;!'
    if fs is not None and w == 1:
        ns[30] += ['s_add_u32 s59, s36, 1', 's_mul_i32 s60, s59, 0x10001']
        vs[67] += [f'v_lshrrev_b32 v{F+2}, 3, v0']; vs[64] += [f'v_mov_b32 v{F}, s60']; vs[65] += [f'v_and_b32 v{F+1}, 0x300, v0']
        ns[fs] += [f'buffer_store_dword v{F}, v{F+1}, {WS}, s57 offen{sf}']
        for i in opt.get('fp', (69, 72, 75, 78)): ns[i] += [fpoll]
    spec = opt.get('spec', 0); ec = opt.get('ec')
    if ec is not None:
        T = G4+1
        ns[ec] += [f's_cbranch_scc1 {P}EW', 's_waitcnt vmcnt(0)', f'{P}EW:']
        ns[bw].insert(0, 's_waitcnt vmcnt(%d)' % sum(x.startswith('buffer_') for i in range(ec+2, bw) for x in ns[i] + vs[i]))
        c_ = [f'v_max3_u32 v{T}, v{MB}, v{MB+1}, v{MB+2} ;!', f'v_max3_u32 v{T}, v{MB+3}, v{M8}, v{T} ;!', f'v_max3_u32 v{T}, v{M8+1}, v{M8+2}, v{T} ;!', f'v_max_u32 v{T}, v{M8+3}, v{T} ;!', f'v_cmp_lt_u32 vcc, s66, v{T}']
        vs[ec] += c_[:2]; vs[ec+1] += c_[2:] + [f's_cbranch_vccnz {P}EC', f'{P}ER:']
    st = opt.get('st', [])
    def stamp(p):
        if p in st: a(f's_memtime s[{76+2*st.index(p)}:{77+2*st.index(p)}] ;!')
    if bp != bk:
        fl = [x for i in range(bk) for x in ns[i] + vs[i]]; kw = max(i for i, x in enumerate(fl) if x.startswith('ds_write_b64'))
        ns[bk][0:1] = ['s_waitcnt lgkmcnt(%d)' % sum(x.startswith('ds_') for x in fl[kw+1:]), 's_barrier ;!']
    a('\n'.join(pre + zs + nx3 + [wra, f'ds_read_b32 v{G4}, v0 offset:{L_PUB + 4*min(w, 2)}', 's_mov_b32 s66, -1']))
    if opt.get('prof'): a('s_memtime s[70:71]\ns_waitcnt lgkmcnt(0)\ns_mov_b32 s72, s49')
    if opt.get('drop') is not None: a('s_mov_b32 s49, 0\ns_mov_b32 s53, -1')
    if opt.get('prof'):
        for k in range(6): a(f's_mov_b32 s{90+k}, 0\ns_mov_b32 s{76+2*k}, s70')
    T = G4+1
    chk = f'v_max3_u32 v{T}, v{MA}, v{MA+1}, v{MA+2}\nv_max_u32 v{T}, v{MA+3}, v{T}\n{wra}\nv_cmp_lt_u32 vcc, s66, v{T}'
    a('s_waitcnt vmcnt(0) lgkmcnt(0)')
    if w < 3 and not mode and opt.get('rr', 1):
        a(f'v_mov_b64 {V(G4+2,2)}, -1')
        for sl in range(4): a(f's_mov_b32 s54, {WS_RING + sl*RSLOT}\nbuffer_store_dword{x2} {V(G4+2, 2 if w == 2 else 1)}, v{G4}, {WS}, s54 offen')
    if w == 3 and opt.get('rr', 1):
        a(f'v_lshlrev_b32 v{G4+2}, 3, v0\ns_add_u32 s54, s58, 0x80000\ns_add_u32 s55, s58, 0x82000\nbuffer_load_dword v{G4+3}, v{G4+2}, {WS}, s54 offen sc1 ;!\nbuffer_load_dword v{G4+3}, v{G4+2}, {WS}, s55 offen sc1 ;!')
    a(f'''s_branch {P}STEP
@loop {P}
{P}TOP:
{poll}
{BUD}
{P}TW:
@vmclear
s_waitcnt vmcnt({opt.get('depth', 1)}) lgkmcnt(0)
{chk}
s_cbranch_vccnz {P}TOP''')
    a('\n'.join(['s_cmp_eq_u32 s36, s36'] if ec is not None else ldb if lb is None or opt.get('lb2') else []) + f'\n{P}STEP:')
    stamp('top')
    for i, e in enumerate(l):
        if isinstance(e, str): a(DENSE[e])
        else:
            kind, idx = loc[e[0]]
            a(f'v_smfmac_f32_16x16x64_bf16 {V(e[2],4)}, {V(e[1],4)}, {X(idx if kind == "R" else e[3], 8)}, v2')
        if i != 1: stamp(i)
        a('\n'.join(x for x in ns[i] + vs[i] if not any(x.startswith(p) for p in opt.get('drop', []))))
        if i == 1: stamp(i)
    sel = f'ds_read_b128 {V(M8,4)}, v0 offset:{L_SEL}'
    al = opt.get('al', 'ack0'); d1 = opt.get('d1', (0, 0, 0)); xb = opt.get('xb', 'early')
    a(f'{cvt(W1+2, G1)}\n{cvt(W1+3, G1+2)}')
    if w == 1 and al == 'pre': a('\n'.join(nop(d1[1]) + rld))
    else: a('\n'.join(nop(opt.get('bd', 0))))
    a(('' if hold & 2 else stb) + f'\n{P}HOP:')
    stamp('hop')
    def reduce(beh, mid=()):
        bo = lambda d, x, y: f'v_bitop3_b32 v{d}, v{x}, v{y}, s65 bitop3:0x7e'
        T = G0; T2 = G1
        for i in range(4):
            a(f's_waitcnt vmcnt({3-i+beh + (len(mid) if i else 0)})')
            if i == 0:
                stamp('ld')
                if w == 1 and xb == 'bar': a(f's_barrier ;!\n{P}P1X:')
            o2 = (RB[i], M8) if w < 2 else (M8, RB[i])
            a(f'v_mfma_f32_16x16x32_bf16 {V(MB,4)}, {V(o2[0],4)}, {V(o2[1],4)}, ' + ('0' if i == 0 else V(MB,4)))
            if i == 0: a('\n'.join(mid) + '\n@vmclear')
            if i == 1: a(bo(T, RB[0], RB[1]))
            elif i == 3: a(bo(T2, RB[2], RB[3]))
        if w == 2 and mode:
            for i in range(4):
                for j in range(1, 4): a(f'v_bitop3_b32 v{T}, v{T}, v{RB[i]+j}, s65 bitop3:0xf6')
        a(f'v_bitop3_b32 v{T}, v{T}, v{T2}, 1 bitop3:0xa8\nv_cmp_lt_u32 vcc, s67, v{T}\ns_cbranch_vccnz {P}R1')
        if w < 2: a(f'v_permlane32_swap_b32 v{MB}, v{MB+2}\nv_permlane32_swap_b32 v{MB+1}, v{MB+3}\n' + '\n'.join(add2(MB) + [cvt(MB, MB)]))
        else: a('\n'.join([f'v_add_f32_dpp v{MB+i}, v{MB+i}, v{MB+i} row_ror:8 {DP}' for i in range(4)] + [cvt(MB, MB), cvt(MB+1, MB+2)]))
        a(f'buffer_store_dword{x2} {V(MB, 2 if w == 2 else 1)}, v{G4}, {WS}, s45 offen{sf}')
        stamp('p1')
    def endst(to):
        if spec: to = a.lab(P + 'SP')
        if st: a('s_memtime s[74:75] ;!')
        if st and 'tl' in opt:
            n_ = len(st)
            a(f's_waitcnt lgkmcnt(0)\ns_sub_u32 s88, s36, {opt["tl"]}\ns_cmp_lt_u32 s88, {20//n_}\ns_cbranch_scc0 {to}\ns_mul_i32 m0, s88, {n_}\ns_nop 0')
            for k in range(n_): a(f's_movreld_b32 s{16+k}, s{76+2*k}')
        elif st:
            a('s_waitcnt lgkmcnt(0)')
            for k in range(len(st)): a(f's_sub_u32 s88, s74, s{76+2*k}\ns_add_u32 s{90+k}, s{90+k}, s88\ns_mov_b32 s{76+2*k}, s74')
        if not spec: a(f's_branch {to}'); return
        a(f'{to}:\n@reset\n' + '\n'.join([poll]*(spec-2) + nop(opt.get('d3', 0)) + [x + ' ;!' for x in ldb]) + f'\n{BUD}')
        for i in range(spec): a(f'@vmclear\ns_waitcnt vmcnt({spec+1-i}) lgkmcnt(0)\n{chk}\ns_cbranch_vccz {P}STEP')
        a(f's_branch {P}TOP')
    xf = opt.get('xf', 0)
    pf = opt.get('pf', (4, 0, 0, 0))
    def plain(k=0):
        a('s_barrier ;!'); stamp('y')
        sp_ = nop(opt.get('sp', 0)); r = pre[k:]; h = len(r)//2; z0 = opt.get('z0', 8)
        a('\n'.join(nop(opt.get('d2', 0)) + zs[:z0] + [poll] + r[:h] + zs[z0:6+z0//2] + sp_ + ([poll] if opt.get('depth', 1) > 1 else []) + r[h:] + zs[6+z0//2:] + sp_))
    if w == 1:
        if fs is not None:
            a(f'{P}F1:\nv_cmp_ne_u32 vcc, s59, v{F+3} ;!\ns_cbranch_vccz {P}F2\n{fpoll}\ns_sub_u32 s49, s49, 1\ns_cselect_b32 s49, 0, s49\ns_waitcnt vmcnt(8)\ns_cbranch_scc0 {P}F1\n{P}F2:')
            stamp('f')
        if al[:3] == 'ack': a('s_waitcnt vmcnt(%s)' % (al[3:] or 2))
        if al != 'pre': a('\n'.join(nop(d1[1]) + pre[:pf[1]] + rld))
        if xf: a(XB)
        a(f'{sel}\n{BUD}\n@vmclear\n{P}P1:'); reduce(1 if al == 'pre' else len(hs)); plain(pf[1]); a(f'@end {P}'); endst(f'{P}TOP')
    elif w == 3:
        a('\n'.join(nx3))
        if opt.get('clk'): a(f's_memtime s[90:91]\ns_memrealtime s[92:93]\ns_lshl_b32 s94, s3, 7\ns_add_u32 s94, s94, s36\ns_lshl_b32 s94, s94, 3\ns_add_u32 s94, s94, 0x220000\ns_waitcnt lgkmcnt(0)\nv_mov_b32 v{G0}, s90\nv_mov_b32 v{G0+1}, s92\nbuffer_store_dwordx2 {V(G0,2)}, off, {WS}, s94')
        if xb == 'bar' or xf: a(XB)
        plain(); a(f'@end {P}'); endst(f'{P}TOP')
    elif xb == 'early':
        if w == 2: a(f's_cmp_lg_u32 s55, 0\ns_cbranch_scc1 {P}NQ')
        if hold: a(XB)
        a(f'{sel}\n{BUD}\ns_waitcnt vmcnt(%d)' % (63 if xf == 2 else 0 if w == 0 else opt.get('ah', 0)))
        if xf and not hold: a(XB)
        a('\n'.join(nop(d1[w]) + pre[:pf[w]] + rld + ['@vmclear', f'{P}P1:'])); reduce(0); plain(pf[w]); a(f'@end {P}'); endst(f'{P}TOP')
    else:
        if w == 2: a(f's_cmp_lg_u32 s55, 0\ns_cbranch_scc1 {P}NQ')
        if hold: a(XB)
        a('\n'.join([sel] + pre[pf[w]:] + [BUD]))
        if xb == 'ack': a('s_waitcnt vmcnt(%d)' % (0 if w == 0 else opt.get('ah', 0)))
        if (xb == 'bar' or xf) and not hold: a('s_barrier ;!')
        a('\n'.join(nop(d1[w]) + pre[:pf[w]] + rld + ['s_barrier ;!'])); stamp('y')
        a('\n'.join(nop(opt.get('d2', 0)) + [poll, '@vmclear', f'{P}P1:'])); reduce(1, [poll] if opt.get('depth', 1) > 1 else [])
        a('\n'.join(zs) + f'\n@end {P}'); endst(f'{P}TW')
    T = N[3]
    a(f'''@reset
{P}PB:
{ldb[0]} ;!
{ldb[1]} ;!
{BUD}
@vmclear
s_waitcnt vmcnt({opt.get('pbd', 0)})
''' + '\n'.join(chb) + f'''
{wrb}
s_cbranch_vccnz {P}PB
s_waitcnt lgkmcnt(0)
s_branch {P}B''')
    if ec is not None: a(f'@reset\n{P}EC:\n{ldb[0]} ;!\n{ldb[1]} ;!\ns_branch {P}ER')
    if w < 3: a(f'@reset\n{P}R1:\n' + '\n'.join(rld) + f'\n{BUD}\ns_waitcnt vmcnt(0)\ns_branch {P}P1' + ('X' if w == 1 and xb == 'bar' else ''))
    if w == 2:
        a(f'@reset\n{P}NQ:')
        if xb == 'bar' or xf: a(XB)
        plain(); endst(f'{P}TOP')
    a(f'''@reset
{P}TAIL:
s_waitcnt lgkmcnt(0)
ds_read_b64_tr_b16 {V(G4,2)}, v6 offset:{L_K + w*512}
buffer_store_dwordx4 {V(G4,4)}, v0, {WS}, s48 offen sc1''')
    if opt.get('hst'): a(f's_mov_b32 s81, {mode+1}'); hstamps(a, 0, [(0,68),(13,82),(2,70),(3,78),(11,81)], w)
    elif opt.get('prof'):
        a(f'''s_memtime s[74:75]
s_waitcnt lgkmcnt(0)
s_sub_u32 s74, s74, s70
s_sub_u32 s70, s70, s68
s_sub_u32 s72, s72, s49
v_mov_b32 v8, s74
v_mov_b32 v9, s70
v_mov_b32 v10, s72
v_mov_b32 v11, {mode}
s_lshl_b32 s54, s3, 6
s_add_u32 s54, s54, {0x200000 + w*16}
buffer_store_dwordx4 v[8:11], off, {WS}, s54
s_add_u32 s54, s54, 0x1000
v_mov_b32 v12, s90
v_mov_b32 v13, s91
v_mov_b32 v14, s92
v_mov_b32 v15, s93
buffer_store_dwordx4 v[12:15], off, {WS}, s54''')
    if 'tl' in opt:
        a(f's_lshl_b32 s54, s3, 9\ns_add_u32 s54, s54, {0x210000 + w*128}')
        a(f'''s_memtime s[76:77]
s_memrealtime s[78:79]
s_mov_b32 s90, 0
s_mov_b32 s91, 0
s_mov_b32 s92, 0
s_waitcnt lgkmcnt(0)
{P}CAL:
s_memtime s[80:81]
s_memrealtime s[82:83]
s_waitcnt lgkmcnt(0)
s_sub_u32 s80, s80, s76
s_sub_u32 s82, s82, s78
s_add_u32 s90, s90, s80
s_add_u32 s91, s91, s82
s_add_u32 s92, s92, 1
s_cmp_lt_u32 s92, 256
s_cbranch_scc1 {P}CAL
v_mov_b32 v40, s76
v_mov_b32 v41, s78
v_mov_b32 v42, s90
v_mov_b32 v43, s91''')
        for k in range(20): a(f'v_mov_b32 v{20+k}, s{16+k}')
        for k in range(6): a(f'buffer_store_dwordx4 {V(20+4*k,4)}, off, {WS}, s54 offset:{16*k}')
    a('s_waitcnt vmcnt(0)\ns_endpgm')
    a(f'''@reset
{P}FB:
s_waitcnt vmcnt(0) lgkmcnt(0)
ds_write_b64 v6, {V(G4,2)} offset:{L_Q + w*512}
s_barrier''')
    for u in range(4): a(f'ds_read_b64 {V(X0+2*u,2)}, v6 offset:{L_Q + u*512}')
    t = G3
    a(f'''s_waitcnt lgkmcnt(0)
s_barrier
v_max3_f32 v{t}, v{X0}, v{X0+1}, v{X0+2}
v_max3_f32 v{t}, v{t}, v{X0+3}, v{X0+4}
v_max3_f32 v{t}, v{t}, v{X0+5}, v{X0+6}
v_max3_f32 v{t}, v{t}, v{X0+7}, v{M8}
v_max_f32 v{t}, v{t}, v{M8+1}
v_mov_b32 v{t+1}, v{t}
v_permlane16_swap_b32 v{t}, v{t+1}
v_max_f32 v{t}, v{t}, v{t+1}
v_mov_b32 v{t+1}, v{t}
v_permlane32_swap_b32 v{t}, v{t+1}
v_max_f32 v{t}, v{t}, v{t+1}''')
    rs = [X0+i for i in range(8)] + [M8, M8+1]
    for r in rs: a(f'v_sub_f32 v{r}, v{r}, v{t}')
    for r in rs: a(f'v_exp_f32_dpp v{r}, v{r} quad_perm:[0,1,0,1] {DP}')
    for u in range(4): a(cvt(N[0]+u, X0+2*u))
    a(cvt(MA, M8)); a(cvt(MA+3, M8))
    for e in ('zx', 'px0', 'px1', 'zm', 'pm0', 'pm1'): a(DENSE[e])
    a(f'v_rcp_f32 v{G3}, v{G3}\ns_mov_b64 vcc, 0\ns_nop 7\ns_branch {P}RJ')
    if w == 3:
        a(f'''@reset
{P}FL:
buffer_load_dword v7, off, {WS}, s57 sc1
s_cmp_lt_u32 s49, 1
s_waitcnt vmcnt(0)
s_cbranch_scc1 {P}FR
s_sub_u32 s49, s49, 1
v_readfirstlane_b32 s54, v7
s_lshr_b32 s54, s54, s60
s_and_b32 s54, s54, 0xff
s_cmp_gt_u32 s54, s61
s_cbranch_scc1 {P}FR
s_branch {P}FL''')

def gen(opt):
    out = []
    a = Asm(); a('REC:')
    if opt.get('prof'): a('s_memtime s[68:69]')
    srds(a, [('ws',8),('dbg',12),('wq',SWQ),('wk',SWK),('wv',SWV),('wo',SWO),('mem0',SM0)])
    for w in range(1, 4): a(f's_cmp_eq_u32 s4, {w}\ns_cbranch_scc1 RECW{w}')
    out.append(a.text())
    for w in range(4):
        l, loc, n, us = plan(w, opt)
        a = Asm(); a.uid = 100*w; a(f'RECW{w}:'); init(a, w, loc)
        if opt.get('mode') is None: a(f's_cmp_eq_u32 s64, 32\ns_cbranch_scc0 RECM{w}')
        elif opt['mode'] == 1: a(f's_branch RECM{w}')
        step(a, w, 0, l, loc, n, us, opt)
        a(f'@reset\nRECM{w}:'); step(a, w, 1, l, loc, n, us, opt)
        out.append(a.text())
        if opt.get('sim') == w:
            for t, x in a.sim(f'R{w}0TOP', f'R{w}0TAIL'): print(t, x)
    return '\n'.join(out)
```

```python
from common import *
import struct
def f2u(x): return struct.unpack('<I', struct.pack('<f', x))[0]
WS, DBG, SX = 's[8:11]', 's[12:15]', 's[28:31]'
AQ, AK, AV, XF = 16, 32, 48, 64
NS = 30; RING = 36864
def cvt(d, s): return f'v_cvt_pk_bf16_f32 v{d}, v{s}, v{s+1}'
def bases(a):
    a(f'''s_lshl_b32 s54, s7, 5
s_add_u32 s54, s54, s6
s_lshl_b32 s37, s54, 14
s_add_u32 s37, s37, {WS_KV}
s_lshl_b32 s38, s54, 13
s_add_u32 s38, s38, {WS_Q}
s_lshl_b32 s39, s54, 12
s_add_u32 s39, s39, {WS_KM + 32*4096}
s_lshl_b32 s40, s7, 1
s_and_b32 s55, s4, 1
s_add_u32 s40, s40, s55
s_lshl_b32 s40, s40, 5
s_add_u32 s40, s40, s6
s_lshl_b32 s40, s40, 12
s_lshr_b32 s55, s4, 1
s_lshl_b32 s55, s55, 11
s_add_u32 s40, s40, s55
s_add_u32 s40, s40, {WS_O}
s_mov_b32 s36, 0''')
def nxt(a): a('s_add_u32 s37, s37, 0x200000\ns_add_u32 s38, s38, 0x100000\ns_add_u32 s39, s39, 0x80000\ns_add_u32 s40, s40, 0x100000\ns_add_u32 s36, s36, 1')
def xdma(n): return [f's_add_u32 m0, s42, {n*2048}', f's_add_u32 s54, s41, {n*64}', f'buffer_load_dwordx4 v2, {SX}, s54 offen lds']
def gen(opt):
    a = Asm(); a.uid = 1000
    a('ATT:')
    if opt.get('prof'): a('s_memtime s[68:69]')
    srds(a, [('ws',8),('dbg',12),('wq',16),('wk',20),('wv',24),('x',28)])
    a('s_sub_u32 s54, s5, 1\ns_lshl_b32 s54, s54, 5\ns_add_u32 s57, s54, s3\ns_lshr_b32 s6, s57, 2\ns_and_b32 s7, s57, 3\ns_lshl_b32 s59, s6, 7\ns_add_u32 s59, s59, s7\ns_add_u32 s59, s59, %d' % WS_FLAG)
    lane(a, 8)
    expr(a, 2, 8, [(0,2,16)], 0, 9); expr(a, 3, 8, [(4,2,16)], 0, 9); a('v_xor_b32 v2, v2, v3'); expr(a, 2, 8, [(2,4,1152)], 'v2', 9)
    a('''s_and_b32 s54, s4, 1
s_lshr_b32 s55, s4, 1
s_mul_i32 s41, s54, 18432
s_mul_i32 s56, s55, 576
s_add_u32 s41, s41, s56
s_mul_i32 s56, s7, 36864
s_add_u32 s41, s41, s56
s_lshl_b32 s42, s54, 10
s_mul_i32 s56, s55, 18432
s_add_u32 s42, s42, s56''')
    for n in range(9): a('\n'.join(xdma(n)))
    a('s_add_u32 s41, s41, 147456\ns_xor_b32 s42, s42, 0x10000')
    a(f's_lshl_b32 s54, s6, 8\ns_lshl_b32 s55, s4, 6\ns_add_u32 s54, s54, s55\ns_mul_i32 s43, s4, {NS*1024}\ns_add_u32 s43, s43, {RING}')
    expr(a, 0, 8, [(2,4,8192),(0,2,16)], 's54', 9)
    expr(a, 1, 8, [(5,1,512),(2,2,64),(4,1,32),(0,2,8)], 's43', 9)
    order = [(m, ks) for m in (1, 2, 0) for ks in range(36)]
    wreg = lambda m, ks: 80 + 4*(36*m + ks)
    def wdma(i):
        m, ks = order[i]
        a(f's_add_u32 m0, s43, {(i%NS)*1024}\ns_mov_b32 s54, {ks*131072}\nbuffer_load_dwordx4 v0, s[{16+4*m}:{19+4*m}], s54 offen lds')
    for i in range(NS): wdma(i)
    bases(a)
    expr(a, 3, 8, [(5,1,16)], 0, 9); expr(a, 4, 8, [(2,2,16)], 0, 9); a('v_xor_b32 v3, v3, v4'); expr(a, 3, 8, [(0,5,64)], 'v3', 9); a('v_xor_b32 v4, 32, v3')
    a('s_lshr_b32 s54, s4, 1\ns_and_b32 s55, s4, 1\ns_lshl_b32 s56, s54, 10\ns_lshl_b32 s58, s55, 7\ns_add_u32 s56, s56, s58')
    expr(a, 5, 8, [(0,1,16),(1,1,4096),(2,1,32),(3,1,8192),(4,1,64),(5,1,256)], 's56', 9)
    a('s_lshl_b32 s56, s54, 13\ns_lshl_b32 s58, s55, 10\ns_add_u32 s56, s56, s58\ns_add_u32 s56, s56, 2048')
    expr(a, 6, 8, [(0,3,16),(3,1,4096),(4,1,128),(5,1,256)], 's56', 9)
    a('v_lshlrev_b32 v7, 4, v8\ns_lshl_b32 s54, s4, 11\nv_add_u32 v10, s54, v7\ns_lshl_b32 s54, s4, 10\nv_add_u32 v11, s54, v7')
    a('v_mov_b64 v[12:13], -1\nv_mov_b64 v[14:15], -1')
    G = 6
    for i0 in range(0, 108, G):
        a(f's_waitcnt vmcnt({min(NS, 108-i0) - G})')
        for i in range(i0, i0+G):
            r = wreg(*order[i])
            for j in range(2): a(f'ds_read_b64_tr_b16 {X(r+2*j,2)}, v1 offset:{(i%NS)*1024 + 256*j}')
        a('s_waitcnt lgkmcnt(0)')
        for i in range(i0+NS, min(108, i0+NS+G)): wdma(i)
    a('s_barrier')
    if opt.get('prof'): a('s_memtime s[70:71]')
    xr = lambda ks: f'ds_read_b128 {V(XF+4*(ks%4),4)}, v{3+(ks&1)} offset:{(ks>>1)*2048}'
    a('@loop A1\nATT1:')
    for ks in range(3): a(xr(ks))
    for ks in range(36):
        x = V(XF+4*(ks%4), 4); c = lambda r: '0' if ks == 0 else V(r, 16)
        a(f'v_mfma_f32_32x32x16_bf16 {V(AK,16)}, {X(wreg(1,ks),4)}, {x}, {c(AK)}')
        if ks+3 < 36: a(xr(ks+3))
        if ks == 12: a(f's_waitcnt vmcnt(0)\ns_barrier ;!\nv_mov_b32 v9, s36\ns_cmp_eq_u32 s4, 0\ns_cbranch_scc0 ATTNF\nbuffer_store_byte v9, off, {WS}, s59 sc1\ns_cmp_eq_u32 s36, 1\ns_cbranch_scc0 ATTNF\nbuffer_store_byte v9, off, {DBG}, s57 sc1\nATTNF:')
        a(f'v_mfma_f32_32x32x16_bf16 {V(AV,16)}, {x}, {X(wreg(2,ks),4)}, {c(AV)}')
        if 13 <= ks < 22: a('\n'.join(xdma(ks-13)))
        a(f'v_mfma_f32_32x32x16_bf16 {V(AQ,16)}, {X(wreg(0,ks),4)}, {x}, {c(AQ)}')
    a('v_xor_b32 v3, 0x10000, v3\nv_xor_b32 v4, 0x10000, v4\ns_add_u32 s41, s41, 147456\ns_min_u32 s41, s41, 2341440\ns_xor_b32 s42, s42, 0x10000\ns_waitcnt vmcnt(0)\ns_barrier')
    a(f'buffer_store_dwordx4 v[12:15], v11, {WS}, s39 offen sc1\nbuffer_store_dwordx4 v[12:15], v7, {WS}, s40 offen sc1\nbuffer_store_dwordx4 v[12:15], v7, {WS}, s40 offen offset:1024 sc1')
    for r, ad, sb, st in ((AK, 5, 37, 512), (AV, 6, 37, 512), (AQ, 10, 38, 1024)):
        for U in range(2):
            for i in range(4): a(cvt(r+8*U+i, r+8*U+2*i))
            a(f'buffer_store_dwordx4 {V(r+8*U,4)}, v{ad}, {WS}, s{sb} offen offset:{U*st} sc1')
    nxt(a)
    a('s_cmp_lt_u32 s36, 16\ns_cbranch_scc1 ATT1\n@end A1')
    a(f's_waitcnt vmcnt(0)\ns_barrier\nv_mov_b32 v9, s36\ns_cmp_eq_u32 s4, 0\ns_cbranch_scc0 ATTNG\nbuffer_store_byte v9, off, {WS}, s59 sc1\nbuffer_store_byte v9, off, {DBG}, s57 sc1\nATTNG:')
    if opt.get('prof'): a('s_memtime s[72:73]')
    Q, K, Vv, KM, MK, S_, SM, P, Z, O, ONE = 16, 32, 64, 80, 96, 104, 112, 120, 128, 132, 148
    bases(a)
    a('s_and_b32 s54, s4, 1\ns_lshl_b32 s55, s54, 8\ns_lshl_b32 s54, s54, 4\ns_lshr_b32 s56, s4, 1\ns_lshl_b32 s56, s56, 13\ns_add_u32 s56, s56, 2048')
    expr(a, 0, 8, [(0,4,16),(4,2,512)], 's55', 9)
    expr(a, 1, 8, [(0,1,16),(1,1,4096),(2,1,32),(3,1,64),(4,2,256)], 0, 9); a('v_add_u32 v2, 0x2000, v1\nv_add_u32 v3, s56, v7\nv_add_u32 v4, 0x1000, v3\nv_add_u32 v5, 0x1000, v0')
    expr(a, 10, 8, [(0,4,1)], 's54', 9); expr(a, 11, 8, [(4,1,4),(5,1,16)], 0, 9); a(f'v_sub_u32 v10, v10, v11\nv_mov_b32 v11, {f2u(-1e30)}')
    for kt in range(2):
        for r in range(4): a(f'v_cmp_gt_i32 vcc, {8*kt+r}, v10\nv_cndmask_b32 v{MK+4*kt+r}, 0, v11, vcc')
    for i in range(4): a(f'v_mov_b32 v{ONE+i}, 0x3f803f80')
    a(f'v_mov_b32 v{P+5}, 0\nv_mov_b32 v{P+6}, 0\ns_mov_b32 s50, {f2u(128**-0.5 * 1.4426950408889634)}\ns_mov_b32 s49, 400000')
    a('@loop A2\nATT2:')
    for wa in range(4): a(f'buffer_load_dwordx4 {V(Q+4*wa,4)}, v{(0,5)[wa>>1]}, {WS}, s38 offen offset:{(wa&1)*2048} sc1')
    for kt in range(2):
        for wa in range(4): a(f'buffer_load_dwordx4 {V(K+16*kt+4*wa,4)}, v{1+kt}, {WS}, s37 offen offset:{(wa>>1)*1024 + (wa&1)*128} sc1')
    for w in range(2):
        for T in range(2): a(f'buffer_load_dwordx4 {V(Vv+8*w+4*T,4)}, v{3+w}, {WS}, s37 offen offset:{T*1024} sc1')
    for wa in range(4):
        for kt in range(2): a(f'v_mfma_f32_16x16x32_bf16 {V(S_+4*kt,4)}, {V(K+16*kt+4*wa,4)}, {V(Q+4*wa,4)}, {V((MK if wa == 0 else S_)+4*kt,4)}')
    a(f'v_max3_f32 v10, v{S_}, v{S_+1}, v{S_+2}\nv_max3_f32 v10, v10, v{S_+3}, v{S_+4}\nv_max3_f32 v10, v10, v{S_+5}, v{S_+6}\nv_max_f32 v10, v10, v{S_+7}\ns_waitcnt vmcnt(0)')
    if opt.get('lp', 3) & 1: a(f'''s_cmp_eq_u32 s4, 0
s_cbranch_scc0 ATT2B
s_cmp_ge_u32 s39, {WS_KM + 64*0x20000}
s_cselect_b32 s54, 0x20000, 0
s_sub_u32 s54, s39, s54
ATT2L:
buffer_load_dword v9, off, {WS}, s54 offset:{opt.get('lpo', 3072)} sc1
s_sub_u32 s49, s49, 1
s_cselect_b32 s49, 0, s49
s_cselect_b32 s66, -1, -2
v_cmp_lt_u32 vcc, s66, v9
s_cbranch_vccnz ATT2L
ATT2B:
s_barrier''')
    a('ATT2P:')
    for w in range(4): a(f'buffer_load_dwordx4 {V(KM+4*w,4)}, v7, {WS}, s39 offen offset:{w*1024} sc1')
    a(f'''s_sub_u32 s49, s49, 1
s_cselect_b32 s49, 0, s49
s_cselect_b32 s66, -1, -2
v_max3_u32 v9, v{KM}, v{KM+4}, v{KM+8}
v_max_u32 v9, v9, v{KM+12}
v_cmp_lt_u32 vcc, s66, v9
v_swap_b32 v{KM+2}, v{KM+4}
v_swap_b32 v{KM+3}, v{KM+5}
v_swap_b32 v{KM+10}, v{KM+12}
v_swap_b32 v{KM+11}, v{KM+13}
s_cbranch_vccnz ATT2P''')
    for wa in range(4): a(f'v_mfma_f32_16x16x32_bf16 {V(SM+4*(wa&1),4)}, {V(KM+8*(wa>>1),4)}, {V(Q+4*wa,4)}, ' + ('0' if wa < 2 else V(SM+4*(wa&1),4)))
    a(f's_cmp_lt_u32 s4, 2\ns_cbranch_scc1 ATT2E\nv_mov_b64 {V(KM+4,2)}, {V(KM+12,2)}\nv_mov_b64 {V(KM+6,2)}, {V(KM+14,2)}\nATT2E:')
    a(f'''v_add_f32 v{SM}, v{SM}, v{SM+6}
v_add_f32 v{SM+1}, v{SM+1}, v{SM+7}
v_max3_f32 v10, v10, v{SM}, v{SM+1}
v_mov_b32 v11, v10
v_permlane16_swap_b32 v10, v11
v_max_f32 v10, v10, v11
v_mov_b32 v11, v10
v_permlane32_swap_b32 v10, v11
v_max_f32 v10, v10, v11
v_mul_f32 v10, s50, v10''')
    for r in range(S_, S_+10): a(f'v_fma_f32 v{r}, v{r}, s50, -v10')
    for r in range(S_, S_+10): a(f'v_exp_f32 v{r}, v{r}')
    for i in range(4): a(cvt(P+i, S_+2*i))
    a(cvt(P+4, SM)); a(cvt(P+7, SM))
    a(f'v_mfma_f32_16x16x32_bf16 {V(Z,4)}, {V(ONE,4)}, {V(P,4)}, 0')
    for T in range(2):
        for w in range(2): a(f'v_mfma_f32_16x16x32_bf16 {V(O+8*T+4*w,4)}, {V(Vv+8*w+4*T,4)}, {V(P,4)}, 0')
        if T == 0: a(f'v_mfma_f32_16x16x16_bf16 {V(Z,4)}, {V(ONE,2)}, {V(P+4,2)}, {V(Z,4)}')
    for T in range(2):
        for w in range(2): a(f'v_mfma_f32_16x16x16_bf16 {V(O+8*T+4*w,4)}, {V(KM+4+2*w,2)}, {V(P+4+2*T,2)}, {V(O+8*T+4*w,4)}')
        if T == 0: a(f'v_rcp_f32 v{Z}, v{Z}')
    for T in range(2):
        for i in range(8): a(f'v_mul_f32 v{O+8*T+i}, v{O+8*T+i}, v{Z}')
        for i in range(4): a(cvt(O+8*T+i, O+8*T+2*i))
        a(f'buffer_store_dwordx4 {V(O+8*T,4)}, v7, {WS}, s40 offen offset:{T*1024} sc1')
    nxt(a)
    a('s_cmp_lt_u32 s36, 16\ns_cbranch_scc1 ATT2\n@end A2')
    if opt.get('hst') == 1: hstamps(a, 252, [(1,68),(14,82),(4,70),(5,72),(6,78)])
    elif opt.get('prof'):
        a(f'''s_memtime s[74:75]
s_waitcnt lgkmcnt(0)
s_sub_u32 s70, s70, s68
s_sub_u32 s72, s72, s68
s_sub_u32 s74, s74, s68
v_mov_b32 v12, s70
v_mov_b32 v13, s72
v_mov_b32 v14, s74
v_mov_b32 v15, s49
s_lshl_b32 s54, s57, 4
s_add_u32 s54, s54, 0x202000
buffer_store_dwordx4 v[12:15], off, {WS}, s54''')
    a('s_waitcnt vmcnt(0)\ns_endpgm')
    return a.text()
```

```python
from common import *
import struct, math
def f2u(x): return struct.unpack('<I', struct.pack('<f', x))[0]
WS, DBG, SX, SWO, SOUT, SG = 's[8:11]', 's[12:15]', 's[16:19]', 's[20:23]', 's[24:27]', 's[28:31]'
SLA, SAI, SCR, SCI, SDT, SDK = 32, 36, 40, 44, 76, 80
CS = 4160; CW = 8*CS; UB = 4*CW; US = 1552; UC = 4*US
TAB = 4160 + 64; PAR = 3*4160 + 64
def cvt(d, s, s2=None): return f'v_cvt_pk_bf16_f32 v{d}, v{s}, v{s+1 if s2 is None else s2}'
L2E = 1.4426950408889634
LHI = struct.unpack('<f', struct.pack('<I', f2u(L2E) & 0xffffff00))[0]; LLO = (L2E - LHI)*math.log(2)
def bexp(a, r, t):
    a(f'v_mul_f32 v{t}, {f2u(LLO)}, v{r}\nv_mul_f32 v{r}, {f2u(LHI)}, v{r}\nv_exp_f32 v{r}, v{r}\nv_fmac_f32 v{r}, v{t}, v{r}\n{cvt(r, r, r)}\nv_lshlrev_b32 v{r}, 16, v{r}')
def conv(a, opt):
    XR, U2, GA, POS, AC, T, GV = 16, 48, 64, 124, 132, 148, 180
    a('s_sub_u32 s54, s5, 5\ns_mul_i32 s54, s54, 24\ns_add_u32 s54, s54, s3\ns_lshl_b32 s55, s54, 4\ns_lshl_b32 s6, s54, 3\ns_add_u32 s6, s6, s4')
    a('v_mul_u32_u24 v1, 9216, v0')
    for i in range(8): a(f's_add_u32 s54, s55, {i*1152}\nbuffer_load_dwordx4 {V(XR+4*i,4)}, v1, {SX}, s54 offen')
    a(f's_mul_i32 s7, s4, {CW}\ns_add_u32 s56, s7, {TAB}')
    a('v_lshlrev_b32 v2, 3, v8')
    for u in range(4):
        for k in range(15):
            r = GA + 15*u + k
            a(f'v_add_u32 v{r}, {512*u + k - 7}, v2\nv_cvt_f32_i32 v{r}, v{r}\n{cvt(r, r, r)}\nv_lshlrev_b32 v{r}, 16, v{r}\nv_cvt_i32_f32 v{r}, v{r}')
            a(f'v_ashrrev_i32 v3, 2, v{r}\nv_add_u32 v3, 0x180, v3\nv_min_i32 v{r}, v{r}, v3\nv_lshl_add_u32 v{r}, v{r}, 2, s56')
    a(f'v_and_b32 v2, 15, v8\nv_cvt_f32_u32 v{POS}, v2\nv_mul_f32 v{POS+1}, 4.0, v{POS}\nv_mul_f32 v{POS+2}, 4.0, v{POS+1}\nv_add_f32 v{POS+3}, {f2u(256.)}, v{POS+2}')
    a(f'v_mul_f32 v{POS+4}, 4.0, v{POS+2}\nv_add_f32 v{POS+5}, {f2u(1536.)}, v{POS+4}\nv_add_f32 v{POS+4}, {f2u(512.)}, v{POS+4}')
    expr(a, 2, 0, [(0,5,16),(5,2,US),(7,1,2*UC)], UB, 9)
    a(f'v_mov_b64 v[12:13], 0\nv_mov_b64 v[14:15], 0\nds_write_b128 v2, v[12:15]\nds_write_b128 v2, v[12:15] offset:{UC}')
    expr(a, 1, 0, [(0,2,US),(2,6,16)], UB + 512, 9)
    a('s_mov_b32 s58, 0x05040100\ns_mov_b32 s59, 0x07060302')
    for c in range(8):
        d = U2 + 4*(c&3)
        for j in range(4): a(f'v_perm_b32 v{d+j}, v{XR+4*(6-2*j)+(c>>1)}, v{XR+4*(7-2*j)+(c>>1)}, s{58+(c&1)}')
        if c < 4: a(f'ds_write_b128 v1, {V(d,4)} offset:{c*UC}')
        if c == 3: a('s_waitcnt lgkmcnt(0)')
    expr(a, 2, 8, [(0,6,32)], 's7', 9)
    expr(a, 4, 8, [(0,4,64),(4,2,16)], 's56', 9)
    expr(a, 5, 8, [(0,6,16)], 's7', 9)
    expr(a, 6, 8, [(0,3,CS),(3,2,16)], 's7', 9); a('v_lshrrev_b32 v9, 5, v8\nv_xor_b32 v9, 1, v9\nv_lshl_add_u32 v6, v9, 4, v6')
    a(f's_mul_i32 s54, s4, {UC}\ns_add_u32 s54, s54, {UB}'); expr(a, 7, 8, [(0,5,16),(5,1,US)], 's54', 9)
    expr(a, 10, 8, [(0,5,64),(5,1,16)], 0, 9)
    expr(a, 11, 8, [(0,3,CS),(3,2,16)], 's7', 9)
    a('s_mov_b32 s60, 0\ns_barrier\n@loop CR\nCONVR:')
    a('s_lshl_b32 s54, s6, 8\ns_lshl_b32 s55, s6, 1\nv_lshlrev_b32 v9, 2, v8')
    for i, s in enumerate((SLA, SAI, SCR, SCI)): a(f'buffer_load_dword v{T+i}, v9, s[{s}:{s+3}], s54 offen')
    a(f'buffer_load_ushort v{T+4}, off, s[{SDT}:{SDT+3}], s55\nbuffer_load_ushort v{T+5}, off, s[{SDK}:{SDK+3}], s55')
    expr(a, 3, 8, [(4,2,16)], 's7', 9)
    for t in range(16): a(f'v_mov_b32 v{AC+t}, 0')
    a(f'v_lshlrev_b32 v{T+4}, 16, v{T+4}'); bexp(a, T+4, 9)
    a(f'v_lshlrev_b32 v{T+5}, 16, v{T+5}\nv_cmp_eq_u32 vcc, 0, v8\nv_cndmask_b32 v{AC}, 0, v{T+5}, vcc')
    for h in range(2):
        p = T+8+4*h
        for i in range(4): a(f'v_and_b32 v{p+i}, 0xffff0000, v{T+i}' if h else f'v_lshlrev_b32 v{p+i}, 16, v{T+i}')
        bexp(a, p, 9)
        for i in range(4): a(f'v_mul_f32 v{p+i}, v{p+i}, v{T+4}')
        a(f'v_mul_f32 v{p}, {f2u(-L2E)}, v{p}\nv_mul_f32 v{p+1}, 0.15915494, v{p+1}\nv_add_f32 v{p+2}, v{p+2}, v{p+2}\nv_add_f32 v{p+3}, v{p+3}, v{p+3}')
        a(f'ds_write_b128 v2, {V(p,4)} offset:{PAR + 16*h}')
    PR = T; E = T+4; C = T+16; SN = T+18; AA = T+24
    a(f's_waitcnt lgkmcnt(0)\nds_read_b128 {V(PR,4)}, v3 offset:{PAR}\ns_mov_b32 s61, 0\n@loop CK\nCONVK:')
    for i in range(6): a(f'v_mul_f32 v{E+2*i}, v{PR}, v{POS+i}\nv_mul_f32 v{E+2*i+1}, v{PR+1}, v{POS+i}')
    a(f'v_mov_b64 {V(C,2)}, {V(PR+2,2)}\nv_add_u32 v3, 64, v3\nds_read_b128 {V(PR,4)}, v3 offset:{PAR}')
    pend = []
    def ev(i):
        e = E+2*i; s = SN+i
        return [f'v_fract_f32 v{e+1}, v{e+1}', f'v_exp_f32 v{e}, v{e}', f'v_sin_f32 v{s}, v{e+1}', f'v_cos_f32 v{e+1}, v{e+1}', None, f'v_mul_f32 v{s}, v{s}, v{e}', f'v_mul_f32 v{e}, v{e+1}, v{e}']
    def ca(i):
        e = E+2*i; s = SN+i; d = AA+2*i
        return [f'v_mul_f32 v{d}, v{e}, v{C}', f'v_mul_f32 v{d+1}, v{e}, v{C+1}', f'v_fma_f32 v{d}, -v{s}, v{C+1}, v{d}', f'v_fma_f32 v{d+1}, -v{s}, v{C}, -v{d+1}']
    mm = lambda t: [f'v_mfma_f32_16x16x4_f32 {V(AC+4*t,4)}, v{AA+2*(t>>1)+h}, v{(E+4+2*t, SN+2+t)[h]}, {V(AC+4*t,4)}' for h in range(2)]
    for blk, t in ((ev(0)+ca(0), None), (ev(2), 0), (ev(3), 1), (ev(1)+[None]+ca(1), None), (ev(4), 2), (ev(5), 3)):
        if pend: a(pend.pop(0))
        for x in blk:
            if x is not None: a(x)
            elif pend: a(pend.pop(0))
        if t is not None: pend += mm(t)
    a('s_add_u32 s61, s61, 1\ns_cmp_lt_u32 s61, 32\n' + '\n'.join(pend) + '\ns_cbranch_scc1 CONVK\n@end CK')
    for t in range(4): a(f'ds_write_b128 v4, {V(AC+4*t,4)} offset:{1024*t}')
    a(f's_mov_b64 exec, 3\nds_write_b128 v5, v[12:15] offset:{TAB-32}\ns_mov_b64 exec, -1\ns_waitcnt lgkmcnt(0)')
    for k in range(60): a(f'ds_read_b32 v{GV+k}, v{GA+k}')
    a('s_waitcnt lgkmcnt(0)\nds_write_b128 v11, v[12:15]')
    for u in range(4):
        for c in range(8):
            d = AC + 4*((8*u+c)%8)
            for j in range(4): a(cvt(d+j, GV+15*u+c+2*j))
            a(f'ds_write_b128 v5, {V(d,4)} offset:{c*CS + 48 + 1024*u}')
        a('s_waitcnt lgkmcnt(0)')
    def rd(it):
        D_, k = it>>1, it&1; f = GV + 16*(it%3); m = 2*D_ - k
        return [f'ds_read_b128 {V(f,4)}, v6 offset:{32*m+32}', f'ds_read_b128 {V(f+4,4)}, v7 offset:{(32-D_)*16 + 2*k*US}',
                f'ds_read_b128 {V(f+8,4)}, v7 offset:{(64-D_)*16 + 2*k*US}', f'ds_read_b128 {V(f+12,4)}, v6 offset:{32*m+32+2048}']
    a('\n'.join(rd(0) + rd(1)))
    for it in range(64):
        f = GV + 16*(it%3); r = rd(it+2) if it < 62 else ['']*4
        for n, (x, y) in enumerate(((0, 4), (0, 8), (12, 4))):
            a(f'v_mfma_f32_32x32x16_bf16 {V(AC+16*n,16)}, {V(f+x,4)}, {V(f+y,4)}, ' + ('0' if it == 0 else V(AC+16*n,16)))
            a('\n'.join(r[:2] if n == 0 else r[n+1:n+2]))
    a(f's_lshl_b32 s54, s6, 12\ns_add_u32 s54, s54, {WS_B}\ns_barrier')
    for c in range(4): a(f'ds_write_b128 v1, {V(U2+4*c,4)} offset:{c*UC}')
    for i in range(16): a(f'v_add_f32 v{AC+16+i}, v{AC+16+i}, v{AC+32+i}')
    for t in range(2):
        for U in range(2):
            d = AC + 16*t + 8*U
            for j in range(4): a(cvt(d+j, d+2*j))
            a(f'v_permlane32_swap_b32 v{d}, v{d+2}\nv_permlane32_swap_b32 v{d+1}, v{d+3}\nbuffer_store_dwordx4 {V(d,4)}, v10, {WS}, s54 offen offset:{2048*t + 32*U} sc1')
    a('s_add_u32 s6, s6, 4\ns_add_u32 s60, s60, 1\ns_cmp_lt_u32 s60, 2\ns_waitcnt vmcnt(0)\ns_barrier\ns_cbranch_scc1 CONVR\n@end CR')
    a(f's_cmp_eq_u32 s4, 0\ns_cbranch_scc0 OUT\nv_mov_b32 v9, 1\ns_mov_b64 exec, 1\nbuffer_atomic_add v9, off, {DBG}, 0 offset:160 sc1\ns_mov_b64 exec, -1')

def out(a, opt):
    RG = 36864; L_G = 4*RG; L_R = L_G + 1024; L_B = L_R + 12288
    a('@reset\nOUT:')
    if opt.get('prof'): a('s_memtime s[70:71]')
    a('s_sub_u32 s54, s5, 5\ns_lshl_b32 s54, s54, 5\ns_add_u32 s57, s54, s3\ns_mul_i32 s6, s57, 43\ns_lshr_b32 s6, s6, 9\ns_mul_i32 s54, s6, 12\ns_sub_u32 s7, s57, s54')
    a(f's_mul_i32 s54, s7, 96\ns_mul_i32 s55, s4, {1024*1152}\ns_add_u32 s54, s54, s55\ns_mul_i32 s43, s4, {RG}')
    for n in range(3):
        a(f'v_add_u32 v9, {64*n}, v8\nv_mul_u32_u24 v10, 171, v9\nv_lshrrev_b32 v10, 10, v10\nv_mul_u32_u24 v11, 1056, v10\nv_lshl_add_u32 v11, v9, 4, v11\nv_add_u32 v{n}, s54, v11')
    wreg = lambda ks, t: 128 + 12*ks + 4*t
    def wdma(ks):
        for n in range(3): a(f's_add_u32 m0, s43, {(ks%12)*3072 + n*1024}\ns_mov_b32 s54, {ks*36864}\nbuffer_load_dwordx4 v{n}, {SWO}, s54 offen lds')
    expr(a, 3, 8, [(5,1,1536),(4,1,384),(2,2,96),(0,2,8)], 's43', 9)
    for ks in range(12): wdma(ks)
    for k0 in range(0, 32, 2):
        a(f's_waitcnt vmcnt({3*(min(12, 32-k0) - 2)})')
        for ks in (k0, k0+1):
            for t in range(3):
                for j in range(2): a(f'ds_read_b64_tr_b16 {X(wreg(ks,t)+2*j,2)}, v3 offset:{(ks%12)*3072 + 768*j + 32*t}')
        a('s_waitcnt lgkmcnt(0)')
        for ks in (k0+12, k0+13):
            if ks < 32: wdma(ks)
    GW, XG = 16, 52
    expr(a, 0, 8, [(0,2,16)], 0, 9); expr(a, 1, 8, [(2,4,1152)], 'v0', 9)
    a(f's_lshl_b32 s54, s4, 5\ns_add_u32 s54, s54, s6\ns_mul_i32 s55, s54, 18432')
    for n in range(4): a(f'v_mov_b32 v{12+n}, 0')
    for hf in range(2):
        for j in range(9): a(f'buffer_load_dwordx4 {V(GW+4*j,4)}, v0, {SG}, 0 offen offset:{576*hf + 64*j}')
        for n in range(4):
            x = XG + 36*(n&1)
            if n%2 == 0:
                for n2 in (n, n+1):
                    a(f's_add_u32 s54, s55, {n2*8*18432}')
                    for j in range(9): a(f'buffer_load_dwordx4 {V(XG+36*(n2&1)+4*j,4)}, v1, {SX}, s54 offen offset:{576*hf + 64*j}')
            for j in range(36): a(f'v_dot2_f32_bf16 v{12+n}, v{x+j}, v{GW+j}, v{12+n}')
    DP = 'row_mask:0xf bank_mask:0xf'; a('s_nop 2')
    for qp in ('[1,0,3,2]', '[2,3,0,1]'):
        for n in range(4): a(f'v_add_f32_dpp v{12+n}, v{12+n}, v{12+n} quad_perm:{qp} {DP}')
    for n in range(4): a(f'v_mul_f32 v{12+n}, {f2u(-L2E)}, v{12+n}\nv_exp_f32 v{12+n}, v{12+n}\nv_add_f32 v{12+n}, 1.0, v{12+n}\nv_rcp_f32 v{12+n}, v{12+n}')
    a(f's_lshl_b32 s54, s4, 8\ns_add_u32 s54, s54, {L_G}'); expr(a, 2, 8, [(2,4,4)], 's54', 9)
    for n in range(4): a(f'ds_write_b32 v2, v{12+n} offset:{64*n}')
    if opt.get('prof'): a('s_memtime s[72:73]')
    a(f'''v_lshlrev_b32 v0, 2, v8
v_mov_b32 v1, 72
v_mov_b32 v2, 0x10101010
v_cmp_gt_u32 vcc, 32, v8
v_cndmask_b32 v1, v1, v2, vcc
s_mov_b32 s49, 400000
s_mov_b32 exec_hi, 0x100''')
    if opt.get('w2', 1): a(f'''s_cmp_eq_u32 s4, 0
s_cbranch_scc0 OUTX
s_mov_b32 exec_lo, 0
OUTV:
buffer_load_dword v2, v0, {DBG}, 0 offen sc1
s_sub_u32 s49, s49, 1
s_cselect_b32 s49, 0, s49
s_cbranch_scc1 OUTX
v_cmp_gt_u32 vcc, v1, v2
s_cbranch_vccnz OUTV
s_mov_b32 exec_lo, -1''')
    a(f'''OUTW:
buffer_load_dword v2, v0, {DBG}, 0 offen sc1
s_sub_u32 s49, s49, 1
s_cselect_b32 s49, 0, s49
s_cbranch_scc1 OUTX
v_cmp_gt_u32 vcc, v1, v2
s_cbranch_vccnz OUTW
OUTX:
s_mov_b64 exec, -1
s_waitcnt vmcnt(0)
s_barrier''')
    if opt.get('prof'): a('s_memtime s[74:75]')
    a(f's_lshl_b32 s37, s6, 17\ns_lshl_b32 s54, s4, 15\ns_add_u32 s37, s37, s54\ns_add_u32 s37, s37, {WS_O}')
    a(f's_mul_i32 s54, s7, 3\ns_min_u32 s55, s4, 2\ns_add_u32 s54, s54, s55\ns_lshl_b32 s38, s54, 16\ns_lshl_b32 s56, s6, 5\ns_add_u32 s38, s38, s56\ns_add_u32 s38, s38, {WS_B}')
    a('s_lshl_b32 s39, s54, 5\ns_mul_i32 s56, s6, 18432\ns_add_u32 s39, s39, s56')
    a('v_lshlrev_b32 v0, 4, v8'); expr(a, 1, 8, [(0,6,512)], 496, 9)
    expr(a, 2, 8, [(0,2,8),(2,4,4096)], 0, 9)
    a(f's_lshl_b32 s54, s4, 9\ns_add_u32 s54, s54, {L_B}'); expr(a, 3, 8, [(0,6,8)], 's54', 9)
    expr(a, 5, 8, [(0,4,4)], L_G, 9)
    a(f's_mul_i32 s54, s4, 3072\ns_add_u32 s54, s54, {L_R}\nv_add_u32 v6, s54, v0\ns_lshl_b32 s55, s55, 10\ns_add_u32 s55, s55, {L_R}\nv_add_u32 v7, s55, v0')
    expr(a, 4, 8, [(0,4,1152),(4,2,8)], 0, 9)
    AC, BT, OB, NB = 16, 28, 32, 24
    BUD = 's_sub_u32 s49, s49, 1\ns_cselect_b32 s49, 0, s49\ns_cselect_b32 s66, -1, -2'
    a(f'''s_mov_b32 s36, 0
@loop OT
OUTT:
buffer_load_dwordx2 v[10:11], v2, {WS}, s38 offen sc1''')
    if opt.get('lp', 3) & 2: a(f'''s_cmp_eq_u32 s4, 3
s_cbranch_scc0 OUTB
s_cmp_ge_u32 s37, {WS_O + 63*0x40000}
s_cselect_b32 s54, 0x40000, 0
s_sub_u32 s54, s37, s54
OUTL:
buffer_load_dword v12, off, {WS}, s54 offset:496 sc1
{BUD}
v_cmp_lt_u32 vcc, s66, v12
s_cbranch_vccnz OUTL
OUTB:''')
    a(f'''s_waitcnt vmcnt(0)
s_barrier
ds_read_b32 v9, v5
v_add_u32 v5, 64, v5
ds_write_b64 v3, v[10:11]
s_waitcnt lgkmcnt(0)
ds_read_b64_tr_b16 v[10:11], v3
v_sub_f32 v12, 1.0, v9
v_lshlrev_b32 v{BT}, 16, v10
v_and_b32 v{BT+1}, 0xffff0000, v10
v_lshlrev_b32 v{BT+2}, 16, v11
v_and_b32 v{BT+3}, 0xffff0000, v11''')
    for i in range(4): a(f'v_mul_f32 v{BT+i}, v{BT+i}, v12')
    a(f'''OUTP:
buffer_load_dword v10, v1, {WS}, s37 offen sc1
{BUD}
v_cmp_lt_u32 vcc, s66, v10
s_cbranch_vccnz OUTP''')
    for q in range(1, 8): a(f's_add_u32 s{58+q}, s37, {4096*q}')
    ld = lambda ks: f'buffer_load_dwordx4 {V(OB+4*(ks%NB),4)}, v0, {WS}, s{58+(ks>>2) if ks >= 4 else 37} offen offset:{(ks&3)*1024} sc1'
    for ks in range(NB): a(ld(ks))
    a('v_mov_b32 v10, 0')
    for ks in range(32):
        o = OB+4*(ks%NB)
        for t in range(3):
            a(f'v_mfma_f32_16x16x32_bf16 {V(AC+4*t,4)}, {X(wreg(ks,t),4)}, {V(o,4)}, ' + ('0' if ks == 0 else V(AC+4*t,4)))
            if t == 0: a(f'v_max_u32 v10, v10, v{o}')
        if ks+NB < 32: a(ld(ks+NB))
    a('v_cmp_lt_u32 vcc, s66, v10\ns_cbranch_vccnz OUTP')
    for t in range(3): a(f'ds_write_b128 v6, {V(AC+4*t,4)} offset:{1024*t}')
    a('s_add_u32 s37, s37, 0x100000\ns_add_u32 s38, s38, 256\ns_add_u32 s36, s36, 1\ns_cmp_eq_u32 s4, 3\ns_barrier\ns_cbranch_scc1 OUTN')
    for w in range(4): a(f'ds_read_b128 {V(OB+4*w,4)}, v7 offset:{3072*w}')
    for i in range(4): a(f'v_add_f32 v{OB+i}, v{OB+i}, v{OB+4+i}')
    for i in range(4): a(f'v_add_f32 v{OB+8+i}, v{OB+8+i}, v{OB+12+i}')
    for i in range(4): a(f'v_add_f32 v{OB+i}, v{OB+i}, v{OB+8+i}')
    for i in range(4): a(f'v_fmac_f32 v{BT+i}, v{OB+i}, v9')
    a(f'{cvt(BT, BT)}\n{cvt(BT+1, BT+2)}\nbuffer_store_dwordx2 {V(BT,2)}, v4, {SOUT}, s39 offen\nOUTN:\ns_add_u32 s39, s39, {8*18432}\ns_cmp_lt_u32 s36, 16\ns_cbranch_scc1 OUTT\n@end OT')
    if opt.get('hst') == 1: hstamps(a, 167, [(12,68),(15,82),(7,70),(8,72),(9,74),(10,78)])
    elif opt.get('prof'):
        a('s_memtime s[76:77]\ns_waitcnt lgkmcnt(0)')
        for i in range(4): a(f's_sub_u32 s{70+2*i}, s{70+2*i}, s68\nv_mov_b32 v{12+i}, s{70+2*i}')
        a(f's_lshl_b32 s54, s57, 5\ns_add_u32 s54, s54, 0x203000\nbuffer_store_dwordx4 v[12:15], off, {WS}, s54\nv_mov_b32 v16, s49\nbuffer_store_dword v16, off, {WS}, s54 offset:16')
    a('s_waitcnt vmcnt(0)\ns_endpgm')

def gen(opt):
    a = Asm(); a.uid = 2000
    a('CONV:')
    if opt.get('prof'): a('s_memtime s[68:69]')
    srds(a, [('ws',8),('dbg',12),('x',16),('wo',20),('out',24),('gate',28),('loga',SLA),('aim',SAI),('cr',SCR),('ci',SCI),('logdt',SDT),('dsk',SDK)])
    lane(a, 8)
    a('s_cmp_ge_u32 s3, 24\ns_cbranch_scc1 OUT')
    conv(a, opt); out(a, opt)
    return a.text()
```

```python
from common import *
import struct
N = [8+4*i for i in range(6)]; MA, MB, M8, X0, X1, W0, W1 = 32, 36, 40, 44, 48, 52, 56
G0, G1, G2, G3, G4 = 60, 64, 68, 72, 76
PA, PB, PC = N[0], N[2], N[4]
L_Q, L_K, L_SEL, L_PUB, L_P, L_ONE, L_W = 8192, 10240, 12288, 13312, 14336, 15360, 16384
WREG = 36864
WS, DBG, SWQ, SWK, SWV, SWO, SM0 = 's[8:11]', 's[12:15]', 16, 20, 24, 28, 32
def f2u(x): return struct.unpack('<I', struct.pack('<f', x))[0]

def plan(w, opt):
    a_, b_ = w, 4+w; n = [c for c in range(8) if c not in (a_, b_)]
    us = [u for u in range(4) if u != w]
    Q = lambda T, c, A, buf=None: (('q', T, c), A, (G0, G1)[T], buf)
    K = lambda T, c, A, buf=None: (('k', T, c), A, (G2, G3)[T], buf)
    Vv = lambda T, c, A, buf=None: (('v', T, c), A, (W0, W1)[T], buf)
    acc = (G2, W0, W1, G1)
    O = lambda u, t, A, buf=None: (('o', u, t), A, acc[t], buf)
    s = {}
    sx, sm = opt.get('sx', 45), opt.get('sm', 55)
    st = {0: PA, 1: PB, 2: PC, 3: X0, 9: PC, 16: PC, 23: PC, 64: PC, 77: PC, 79: PA, 81: PB}
    for u in opt.get('xs', (11, 19, 27, 34, 41, 48, 54)): st[u] = X0
    l = []
    for c, A in ((a_, MA), (n[0], N[0]), (n[1], N[1]), (n[2], N[2])): l += [Q(0,c,A), Q(1,c,A), K(0,c,A), K(1,c,A), Vv(0,c,A), Vv(1,c,A)]
    B5 = [(b_, MB), (8, M8), (n[3], N[3]), (n[4], N[4]), (n[5], N[5])]
    l += [Q(T, *B5[i]) for T, i in ((0,0),(1,0),(0,1),(1,1),(0,2),(0,3),(0,4),(1,2),(1,3),(1,4))]
    l += [K(T, *B5[i]) for T in range(2) for i in range(5)]
    l += [Vv(T, *B5[i]) for T, i in ((0,0),(1,0),(0,1),(1,1),(0,2),(1,2),(0,3),(0,4),(1,3),(1,4))]
    l[sx:sx] = ['sx0', 'sx1']; l[sm:sm] = ['sm0', 'sm1']
    l += ['zx', 'px0', 'zm', 'px1', 'pm0', 'pm1'] if opt.get('zm', 60) == 60 else ['zx', 'px0', 'px1', 'zm', 'pm0', 'pm1']
    l += [O(w,t,M8) for t in range(4)]
    oa = (MA, MB, G3)
    for t in range(4):
        if t == 2: l += [(('h',0,0), X0, G0, None), (('h',1,0), X1, G0, None)]
        for k in range(3): l.append(O(us[k], t, oa[k]))
    for i, b in st.items(): l[i] = l[i][:3] + (b,)
    loc = {}; nl = nr = 0
    for e in l:
        if isinstance(e, str): continue
        if e[3] is not None: loc[e[0]] = ('L', nl); nl += 1
        else: loc[e[0]] = ('R', 80+8*nr); nr += 1
    assert nl == 18 and nr == 54, (nl, nr)
    return l, loc, n, us

def init(a, w, loc):
    a('s_mul_i32 s54, s3, %d' % PHEAD)
    a(f's_add_u32 s37, s54, {WS_PART + w*2048}\ns_add_u32 s38, s54, {WS_PART + 8192 + 256*w}')
    for n in range(4): a(f's_mov_b32 s{39+n}, {WS_PART + n*8*PHEAD}')
    a(f's_mov_b32 s45, {WS_RING}\ns_mov_b32 s46, {WS_RING+0x8000}\ns_lshl_b32 s54, s3, 14\ns_add_u32 s47, s54, {WS_KV + w*4096}\ns_add_u32 s58, s54, {WS_KV}')
    a(f's_lshl_b32 s54, s3, 12\ns_add_u32 s48, s54, {WS_KM + w*1024}\ns_mov_b32 s49, 400000\ns_mov_b32 s36, 0')
    sc = f2u(128**-0.5 * 1.4426950408889634)
    a(f's_mov_b32 s50, {sc}\ns_mov_b32 s51, {sc}\ns_mov_b32 s52, {(127-48)<<23}\ns_mov_b32 s53, {112<<23}\ns_lshl_b32 s57, s3, 2')
    lane(a, 8)
    if w < 2: a(f's_lshr_b32 s59, s3, 3\ns_lshl_b32 s59, s59, 11\ns_add_u32 s59, s59, {1024 if w == 0 else 0}\ns_and_b32 s60, s3, 7')
    elif w == 2: a('s_mov_b32 s59, 8192\ns_lshr_b32 s60, s3, 2\ns_and_b32 s55, s3, 3')
    if w < 3:
        red_addr(a, w, 7, 8, 9)
        a('s_and_b32 s54, s60, 1\ns_lshl_b32 s54, s54, 8\ns_lshr_b32 s61, s60, 1\ns_lshl_b32 s61, s61, 6\ns_add_u32 s54, s54, s61\ns_lshr_b32 s61, s3, 3\ns_lshl_b32 s61, s61, 10\ns_add_u32 s54, s54, s61\ns_add_u32 s54, s54, %d' % (4096 if w == 0 else 0))
        expr(a, 10, 8, [(1,1,512),(2,1,32),(0,1,16),(4,1,8),(5,1,4),(3,1,1<<30)], 's54', 9)
        if w == 2:
            a('s_lshr_b32 s54, s60, 2\ns_lshl_b32 s54, s54, 5\ns_bfe_u32 s61, s60, 0x10001\ns_lshl_b32 s61, s61, 9\ns_add_u32 s54, s54, s61\ns_and_b32 s61, s60, 1\ns_lshl_b32 s61, s61, 7\ns_add_u32 s54, s54, s61\ns_add_u32 s54, s54, 8192')
            expr(a, 10, 8, [(0,1,8),(1,1,256),(2,1,64),(4,1,16),(3,1,1<<30),(5,1,1<<28)], 's54', 9)
            a('v_xor_b32 v10, 0x10000000, v10')
            a('s_lshl_b32 s54, s55, 29\nv_or_b32 v10, s54, v10')
        a('v_mov_b64 v[12:13], -1\nv_mov_b64 v[14:15], -1')
        for sl in range(1):
            for n in range(4):
                a(f's_mov_b32 s54, {WS_PART + sl*PSLOT + n*8*PHEAD}\nbuffer_store_dwordx4 v[12:15], v7, {WS}, s54 offen sc1')
        for sl in range(4): a(f's_mov_b32 s54, {WS_RING + sl*RSLOT}\nbuffer_store_dword{"x2 v[12:13]" if w == 2 else " v12"}, v10, {WS}, s54 offen sc1')
        a(f'v_lshlrev_b32 v11, 4, v8\nds_write_b32 v11, v10 offset:{L_PUB + 4*w}')
        if w == 1: a(f's_add_u32 s57, s57, {WS_FLAG + 0x2000}\ns_and_b32 s58, s3, 3\ns_lshl_b32 s58, s58, 8\ns_add_u32 s58, s58, {WS_FLAG + 0x2000}\nv_and_b32 v11, 0x300, v11\nbuffer_store_dword v12, v11, {WS}, s57 offen sc1')
    else:
        expr(a, 16, 8, [(0,2,2),(2,1,1)], 0, 9)
        a('v_and_b32 v9, 15, v8\nv_cmp_lt_u32 vcc, 7, v9\nv_cndmask_b32 v9, v9, v16, vcc\nv_mov_b32 v10, 0x3f80\nv_mov_b32 v11, 0x3f800000')
        for r in range(4):
            a(f'v_mov_b32 v{12+r}, 0\nv_cmp_eq_u32 vcc, {2*r}, v9\nv_cndmask_b32 v{12+r}, v{12+r}, v10, vcc\nv_cmp_eq_u32 vcc, {2*r+1}, v9\nv_cndmask_b32 v{12+r}, v{12+r}, v11, vcc')
        a(f'v_lshlrev_b32 v11, 4, v8\nds_write_b128 v11, v[12:15] offset:{L_SEL}')
        for r in range(4): a(f'v_mov_b32 v{16+r}, 0x3f803f80')
        a(f'ds_write_b128 v11, v[16:19] offset:{L_ONE}')
    expr(a, 0, 8, [(4,2,64)], (w&1)*16, 9); expr(a, 1, 8, [(0,4,16)], 0, 9); a('v_xor_b32 v0, v0, v1')
    expr(a, 1, 8, [(4,1,8192),(5,1,32*8192)], 4*w*8192, 9); a('v_add_u32 v0, v0, v1')
    expr(a, 4, 8, [(5,1,64)], (w&1)*128, 9); expr(a, 1, 8, [(0,5,16)], 0, 9); a('v_xor_b32 v4, v4, v1')
    expr(a, 1, 8, [(5,1,1152)], (32*(w&1) + 4*(w>>1))*1152, 9); a('v_add_u32 v4, v4, v1')
    expr(a, 7, 8, [(4,1,32)], (w&1)*64, 9); expr(a, 1, 8, [(0,3,16)], 0, 9); a('v_xor_b32 v7, v7, v1')
    expr(a, 1, 8, [(3,1,1152),(4,1,8*1152),(5,1,64*1152)], (32*(w&1) + 4*(w>>1))*1152, 9); a('v_add_u32 v7, v7, v1')
    base = [(4,2,WREG),(0,1,8)]
    expr(a, 2, 8, [(1,1,32)], (8*(w>>1) + (w&1))*16, 9); expr(a, 1, 8, [(4,1,16),(2,2,64)], 0, 9); a('v_xor_b32 v2, v2, v1')
    expr(a, 1, 8, base + [(2,2,256)], L_W, 9); a('v_add_u32 v2, v2, v1\nv_xor_b32 v3, 64, v2')
    expr(a, 5, 8, [(1,1,16),(3,1,32)], 8*w*16, 9); expr(a, 1, 8, [(2,1,64),(4,1,128)], 0, 9); a('v_xor_b32 v5, v5, v1')
    expr(a, 1, 8, base + [(2,1,512)], L_W, 9); a('v_add_u32 v5, v5, v1\nv_xor_b32 v6, 64, v5')
    expr(a, 1, 8, [(0,6,16)], L_W + WREG*w, 9)
    a('s_lshl_b32 s62, s3, 8\ns_mul_i32 s63, s3, %d' % (128*1152))
    groups = [(m, c) for m in 'qkv' for c in range(9)] + [('o', u, tp) for u in range(4) for tp in range(2)] + [('h',)]
    def dma(gi):
        g = groups[gi]
        for p in range(4):
            a(f's_mov_b32 m0, {L_W + WREG*w + (5 + gi%4)*4096 + p*1024}')
            ro = 16*(p>>1) + 2*(p&1)
            if g[0] in 'qkv': off, sb, vr, srd = (64*g[1] + ro)*8192, 62, 0, {'q':SWQ,'k':SWK,'v':SWV}[g[0]]
            elif g[0] == 'o': off, sb, vr, srd = (64*(g[1]>>1) + 8*(g[1]&1) + ro)*1152 + 512*g[2], 63, 4, SWO
            else: off, sb, vr, srd = ro*1152 + 1024, 63, 7, SWO
            a(f's_add_u32 s54, s{sb}, {off}\nbuffer_load_dwordx4 v{vr}, s[{srd}:{srd+3}], s54 offen lds')
    for gi in range(3): dma(gi)
    for gi, g in enumerate(groups):
        left = min(len(groups)-1-gi, 2)
        a(f's_waitcnt vmcnt({4*left}) lgkmcnt(0)\ns_barrier')
        if gi == 0 and w == 0:
            a(f's_getreg_b32 s64, hwreg(HW_REG_XCC_ID,0,3)\ns_lshl_b32 s54, s64, 2\ns_add_u32 s54, s54, 128\nv_mov_b32 v8, 1\ns_mov_b64 exec, 1\nbuffer_atomic_add v8, off, {DBG}, s54 sc1\ns_mov_b64 exec, -1')
        if gi+3 < len(groups): dma(gi+3)
        if g[0] == 'h':
            lane(a, 8)
            expr(a, 0, 8, [(1,1,16)], 2*w*16, 9); expr(a, 2, 8, [(3,1,32),(4,1,64)], 0, 9); a('v_xor_b32 v0, v0, v2')
            expr(a, 2, 8, base + [(2,2,128)], L_W, 9); a('v_add_u32 v0, v0, v2')
        for T in range(2):
            if g[0] in 'qkv': key, ad, ex = (g[0], T, g[1]), 2+T, 0
            elif g[0] == 'o': key, ad, ex = ('o', g[1], 2*g[2]+T), 5+T, 0
            else: key, ad, ex = ('h', T, 0), 0, 512*T
            kind, idx = loc[key]
            dst = idx if kind == 'R' else (8 if idx < 10 else 16 + 8*(idx-10))
            for p in range(4): a(f'ds_read_b64_tr_b16 {X(dst+2*p,2)}, v{ad} offset:{(5+gi%4)*4096 + p*1024 + ex}')
            if kind == 'L' and idx < 10:
                a(f'ds_write_b128 v1, v[8:11] offset:{idx*2048}\nds_write_b128 v1, v[12:15] offset:{idx*2048+1024}')
    a('s_waitcnt lgkmcnt(0)\ns_barrier')
    for idx in range(10, 18):
        r = 16 + 8*(idx-10)
        a(f'ds_write_b128 v1, {V(r,4)} offset:{idx*2048}\nds_write_b128 v1, {V(r+4,4)} offset:{idx*2048+1024}')
    lane(a, 8)
    a('v_lshlrev_b32 v0, 4, v8\nv_lshrrev_b32 v6, 4, v8\nv_xor_b32 v6, v6, v8\nv_lshlrev_b32 v6, 3, v6')
    expr(a, 2, 8, [(1,1,0xAAAA)], 0x4444, 9)
    expr(a, 4, 8, [(4,2,256),(2,2,32),(0,1,16)], 0, 9)
    expr(a, 3, 8, [(1,1,128)], 'v4', 9)
    expr(a, 5, 8, [(0,4,32),(4,2,8)], 0, 9); expr(a, 10, 8, [(2,2,8)], 0, 9); a('v_xor_b32 v5, v5, v10')
    if w < 3: red_addr(a, w, 7, 8, 9)
    expr(a, 10, 8, [(2,2,2304),(0,1,1152),(1,1,64),(4,2,16)], 0, 9)
    a('s_waitcnt lgkmcnt(0)')
    for r, ch in ((MA, w), (M8, 8), (MB, 4+w)): a(f'buffer_load_dwordx4 {V(r,4)}, v10, s[{SM0}:{SM0+3}], 0 offen offset:{ch*128}')
    L = a.lab('RSB'); E = a.lab('RSE')
    a(f'''s_mov_b32 s54, 128
{L}:
buffer_load_dwordx4 v[8:11], off, {DBG}, s54 sc1
buffer_load_dwordx4 v[12:15], off, {DBG}, s54 offset:16 sc1
s_cmp_lt_u32 s49, 1
s_cbranch_scc1 {E}
s_sub_u32 s49, s49, 1
v_add3_u32 v16, v8, v9, v10
v_add3_u32 v16, v16, v11, v12
v_add3_u32 v16, v16, v13, v14
v_add_u32 v16, v16, v15
v_cmp_gt_u32 vcc, 32, v16
s_cbranch_vccnz {L}
{E}:
s_waitcnt vmcnt(0)
v_max3_u32 v16, v8, v9, v10
v_max3_u32 v16, v16, v11, v12
v_max3_u32 v16, v16, v13, v14
v_max_u32 v16, v16, v15
v_readfirstlane_b32 s64, v16''')
    if w == 3:
        L = a.lab('RF'); E = a.lab('RFE')
        a(f'''{L}:
buffer_load_dword v7, off, {DBG}, s57 sc1
s_cmp_lt_u32 s49, 1
s_cbranch_scc1 {E}
s_sub_u32 s49, s49, 1
v_readfirstlane_b32 s54, v7
s_and_b32 s59, s54, 0xff
s_cbranch_scc0 {L}
s_and_b32 s59, s54, 0xff00
s_cbranch_scc0 {L}
s_and_b32 s59, s54, 0xff0000
s_cbranch_scc0 {L}
s_and_b32 s59, s54, 0xff000000
s_cbranch_scc0 {L}
{E}:
s_lshl_b32 s57, s3, 7
s_add_u32 s57, s57, {WS_FLAG}
s_waitcnt vmcnt(0)''')

def red_addr(a, w, d, ln, tmp):
    a('s_lshl_b32 s54, s60, 7\ns_add_u32 s54, s54, s59')
    expr(a, d, ln, [(3,3,PHEAD),(0,3,16)], 's54', tmp)
    if w == 2: a(f's_lshl_b32 s54, s55, 29\nv_or_b32 v{d}, s54, v{d}')

def zero(b): return [f'v_mov_b64 {V(b,2)}, 0', f'v_mov_b64 {V(b+2,2)}, 0']
def ldw(buf, idx): return [f'ds_read_b128 {V(buf,4)}, v1 offset:{idx*2048}', f'ds_read_b128 {V(buf+4,4)}, v1 offset:{idx*2048+1024}']
def cvt(d, s): return f'v_cvt_pk_bf16_f32 v{d}, v{s}, v{s+1}'
def padd(b): return f'v_pk_add_f32 {V(b,2)}, {V(b,2)}, {V(b+2,2)}'
DP = 'row_mask:0xf bank_mask:0xf'
DENSE = {
 'sx0': f'v_mfma_f32_16x16x32_bf16 {V(G4,4)}, {V(MA,4)}, {V(G0,4)}, 0',
 'sx1': f'v_mfma_f32_16x16x32_bf16 {V(G4,4)}, {V(N[0],4)}, {V(G1,4)}, {V(G4,4)}',
 'sm0': f'v_mfma_f32_16x16x32_bf16 {V(M8,4)}, {V(G2,4)}, {V(G0,4)}, 0',
 'sm1': f'v_mfma_f32_16x16x32_bf16 {V(M8,4)}, {V(G3,4)}, {V(G1,4)}, {V(M8,4)}',
 'zx': f'v_mfma_f32_16x16x32_bf16 {V(G3,4)}, {V(MB,4)}, {V(N[0],4)}, 0',
 'zm': f'v_mfma_f32_16x16x16_bf16 {V(G3,4)}, {V(MB,2)}, {V(MA,2)}, {V(G3,4)}',
 'px0': f'v_mfma_f32_16x16x32_bf16 {V(X0,4)}, {V(N[1],4)}, {V(N[0],4)}, 0',
 'px1': f'v_mfma_f32_16x16x32_bf16 {V(X1,4)}, {V(N[2],4)}, {V(N[0],4)}, 0',
 'pm0': f'v_mfma_f32_16x16x16_bf16 {V(X0,4)}, {V(G4+2,2)}, {V(MA,2)}, {V(X0,4)}',
 'pm1': f'v_mfma_f32_16x16x16_bf16 {V(X1,4)}, {V(G4+2,2)}, {V(MA+2,2)}, {V(X1,4)}',
}
def step(a, w, mode, l, loc, n, us, opt):
    sf = ' sc1' if mode else ''
    P = f'R{w}{mode}'
    ns = {i: [] for i in range(len(l))}; vs = {i: [] for i in range(len(l))}
    def put(d, s0, lst, per=1):
        for i, x in enumerate(lst): d[s0 + i//per].append(x)
    lidx = {i: loc[e[0]][1] for i, e in enumerate(l) if not isinstance(e, str) and e[3] is not None}
    pos = lambda ch: (ch&3)*2048 + (ch>>2)*1024
    add2 = lambda b: [f'v_add_f32 v{b}, v{b}, v{b+2}', f'v_add_f32 v{b+1}, v{b+1}, v{b+3}']
    tag = lambda r: f'v_and_or_b32 v{r}, v{r}, -2, s65'
    rdc = lambda r, c: f'ds_read_b128 {V(r,4)}, v0 offset:{pos(c)}'
    x2 = "x2" if w == 2 else ""
    g = opt.get
    b1, bw, cw, b2, bq, bk, bp, sx, sm, zm = g('b1', 1), g('bw', 19), g('cw', 21), g('b2', 24), g('bq', 41), g('bk', 51), g('bp', 55), g('sx', 45), g('sm', 55), g('zm', 60)
    last = lambda key: max(i for i, e in enumerate(l) if not isinstance(e, str) and e[0][:len(key)] == key)
    ns[b1] += ['s_barrier', rdc(N[0], n[0])]; ns[b1+1] += [rdc(N[1], n[1]), rdc(N[2], n[2])]
    T = N[3]
    wrb = f'ds_write_b128 v0, {V(MB,4)} offset:{w*2048+1024}'
    chb = [f'v_max3_u32 v{T}, v{MB}, v{MB+1}, v{MB+2}', f'v_max3_u32 v{T}, v{MB+3}, v{M8}, v{T}', f'v_max3_u32 v{T+1}, v{M8+1}, v{M8+2}, v{M8+3}', f'v_max_u32 v{T}, v{T+1}, v{T}', f'v_cmp_lt_u32 vcc, s66, v{T}']
    for i, r, ad, of in ((6, MA, 3, 0), (12, N[0], 3, 1024), (18, N[1], 0, 2048), (24, N[2], 0, 3072)):
        ns[i].append(f'buffer_load_dwordx4 {V(r,4)}, v{ad}, {WS}, s47 offen offset:{of} sc1')
    ns[bw] += [wrb]; vs[bw] += chb[:1]; vs[cw] += chb[1:3]; vs[cw+1] += chb[3:]; vs[min(cw+2, 23)] += [f's_cbranch_vccnz {P}PB', f'{P}B:']
    ns[b2] += ['s_barrier', rdc(N[3], n[3])]; ns[max(b2+1, 24)] += [rdc(N[4], n[4]), rdc(N[5], n[5])]
    prev = {}
    for u in sorted(lidx):
        bf = l[u][3]
        if u > 3: put(ns, g('ls', {}).get(u, {64: 58, 77: 70, 79: 72, 81: 74}.get(u, prev[bf] + 1)), ldw(bf, lidx[u]))
        prev[bf] = u
    if w < 3:
        vs[3].append(f'v_mov_b64 {V(T,2)}, -1')
        ns[7].append(f'buffer_store_dword{x2} {V(T, 2 if w == 2 else 1)}, v{G4}, {WS}, s46 offen{sf}')
    ns[14].append(f'ds_read_b64_tr_b16 {V(G4,2)}, v6 offset:{L_K + w*512}')
    ns[g('kms', 30) + g('kst', 2)*w] += [f'buffer_store_dwordx4 {V(G4,4)}, v0, {WS}, s48 offen' + opt.get('kmf', ' sc1')]
    ns[47] += ['s_add_u32 s48, s48, %d' % opt.get('kmi', 0x20000)]; ns[26] += ['s_add_u32 s47, s47, %d' % opt.get('kvi', 0x80000)]
    ns[27] += ['s_add_u32 s45, s45, 0x4000']; ns[31] += ['s_bitset0_b32 s45, 16', 's_add_u32 s44, s45, 8192']; ns[33] += [f's_add_u32 s43, s45, {w*1024}', f's_add_u32 s63, s45, {4096 + w*1024}']
    ns[38] += ['s_xor_b32 s46, s45, 0x8000', 's_and_b32 s65, s36, 1']
    tch = opt.get('touch', 1)
    if w == 3:
        vs[3].append('v_readfirstlane_b32 s54, v7 ;!'); vs[13].append(f'v_lshlrev_b32 v7, 3, v0 ;!')
        ns[6] += ['s_lshr_b32 s54, s54, s60']; ns[7] += ['s_and_b32 s54, s54, 0xff']
        ns[8] += ['s_cmp_gt_u32 s54, s61']; ns[9] += [f's_cbranch_scc0 {P}FL']*(1-opt.get('nofl', 0)) + [f'{P}FR:']
        ts = g('ts', 26)
        if tch: put(ns, ts, [f'buffer_load_dword v7, v7, {WS}, s59 offen sc1 ;!', f'buffer_load_dword v7, v7, {WS}, s62 offen sc1 ;!'])
        ns[ts+4] += [f'buffer_load_dword v7, off, {WS}, s57 sc1 ;!']
    qpost = lambda b, d: [f'v_mul_f32 v{b}, s50, v{b}', f'v_mul_f32 v{b+1}, s50, v{b+1}', f'v_fmac_f32 v{b}, s50, v{b+2}', f'v_fmac_f32 v{b+1}, s50, v{b+3}', cvt(d, b)]
    put(vs, 32, qpost(G0, G0), 2); put(vs, 35, qpost(G1, G0+1) + [f'ds_write_b64 v5, {V(G0,2)} offset:{L_Q + w*512}'], g('qp', 3))
    trq = [f'ds_read_b64_tr_b16 {V(G0+2*u,2)}, v6 offset:{L_Q + u*512}' for u in range(4)]
    ns[bq] = ['s_barrier'] + trq[:2] + ns[bq]; ns[bq+1] = trq[2:] + ns[bq+1]
    k0, k1 = last(('k', 0)), last(('k', 1))
    put(vs, k0+2, add2(G2) + [cvt(G2, G2)]); put(vs, k1+2, add2(G3) + [cvt(G2+1, G3), f'ds_write_b64 v5, {V(G2,2)} offset:{L_K + w*512}'], g('kp', 2))
    spost = lambda b: [f'v_add_f32_dpp v{b}, v{b+2}, v{b} quad_perm:[2,3,0,1] {DP}', f'v_add_f32_dpp v{b+1}, v{b+3}, v{b+1} quad_perm:[2,3,0,1] {DP}',
                       f'v_exp_f32_dpp v{b+2}, v{b} quad_perm:[0,1,0,1] {DP}', f'v_exp_f32_dpp v{b+3}, v{b+1} quad_perm:[0,1,0,1] {DP}']
    put(vs, sx+3, spost(G4) + [cvt(G4+2, G4+2), f'ds_write_b32 v0, v{G4+2} offset:{L_P + 4*w}'], 2)
    trk = [f'ds_read_b64_tr_b16 {V(G2+2*u,2)}, v6 offset:{L_K + u*512}' for u in range(4)]
    ns[bk] = ['s_barrier'] + trk[:2] + ns[bk]; ns[bk+1] = trk[2:] + ns[bk+1]
    put(vs, sx+6, [f'v_mov_b32 v{MA+1}, 0', f'v_mov_b32 v{MA+2}, 0'])
    ns[last(('v', 1, 4+w))+1].append(f'ds_read_b128 {V(MB,4)}, v0 offset:{L_ONE}')
    ns[bp] = ['s_barrier']*(bp != bk) + ns[bp] + [f'ds_read_b128 {V(N[0],4)}, v0 offset:{L_P}']
    put(vs, sm+g('mo', 2), spost(M8) + [cvt(MA, M8+2), cvt(MA+3, M8+2)], 2)
    ns[56].append('s_cmp_eq_u32 s36, 63')
    v0_, v1_ = last(('v', 0)), last(('v', 1))
    put(vs, v0_+g('vo', 2), add2(W0) + [cvt(G4+2, W0)], 2); put(vs, v1_+2, add2(W1) + [cvt(G4+3, W1)], 2)
    ns[61].append(f's_cbranch_scc1 {P}TAIL')
    vs[61] += zero(G2); vs[zm+2] += [f'v_rcp_f32 v{G3}, v{G3}', f'v_subrev_u32 v{G3+2}, s52, v{G3+2}']
    mul = [f'v_pk_mul_f32 {V(X0+2*i,2)}, {V(X0+2*i,2)}, {V(G3,2)} op_sel_hi:[1,0]' for i in range(4)]
    co = [cvt(M8+i, X0+2*i) for i in range(4)]
    if zm == 61: vs[62] += zero(W0)
    vs[63] += [f'v_cmp_le_u32 vcc, s53, v{G3+2}'] + zero(W0)*(zm == 60) + [f'{P}RJ:'] + mul[:2] + [f's_cbranch_vccnz {P}FB'] + co[:2] + mul[2:] + co[2:]
    vs[63] += [f'ds_write_b128 v4, {V(M8,4)} offset:{L_Q + (w>>1)*1024 + (w&1)*128}', 's_waitcnt lgkmcnt(1)']
    vs[64] += zero(W1); vs[65] += zero(G1); vs[66] += zero(G0)
    ro = [f'ds_read_b128 {V(r,4)}, v4 offset:{L_Q + (u>>1)*1024 + (u&1)*128}' for r, u in zip((MA, MB, G3), us)]
    ns[opt.get('bo', 66)] += ['s_barrier'] + ro
    put(ns, 68, [f'ds_read_b128 {V(X0+4*j,4)}, v3 offset:{L_Q + j*1024}' for j in range(2)])
    put(vs, 72, [cvt(G2, G2), cvt(G2+1, G2+2), tag(G2)]); vs[75] += [cvt(G2+2, W0), cvt(G2+3, W0+2)]
    (vs[75] if g('ast') is None else ns[76 + g('ast')*w]).append(f'buffer_store_dwordx4 {V(G2,4)}, v0, {WS}, s37 offen{sf}')
    put(vs, 77, add2(G0) + [cvt(M8+1, G0), tag(M8+1)]); vs[81] += [cvt(W1, W1), cvt(W1+1, W1+2), tag(W1)]
    vs[68].append(f'v_lshrrev_b32 v{M8}, 2, v0')
    hold = opt.get('hold', 0)
    sth = f'buffer_store_dword v{M8+1}, v{M8}, {WS}, s38 offen{sf}'; stb = f'buffer_store_dwordx4 {V(W1,4)}, v0, {WS}, s37 offen offset:1024{sf}'
    if not hold & 1: ns[81].append(sth)
    hs = [stb]*(hold>>1) + [sth]*(hold&1); XB = '\n'.join(['s_barrier ;!'] + hs)
    if w < 3: ns[76].append(f'ds_read_b32 v{G4}, v0 offset:{L_PUB + 4*w}')
    ns[77].append('s_add_u32 s36, s36, 1')
    nx3 = ['s_add_u32 s59, s36, 2', 's_min_u32 s59, s59, 63', 's_lshl_b32 s60, s59, 3', 's_lshr_b32 s61, s59, 2', 's_lshl_b32 s59, s59, 19', 's_add_u32 s59, s59, s58', 's_add_u32 s62, s59, 8192'] if w == 3 else []
    RB = [G0, G1, G2, G3]
    rld = [f'buffer_load_dwordx4 {V(RB[i],4)}, v7, {WS}, s{39+i} offen sc1 ;!' for i in range(4)]
    BUD = 's_sub_u32 s49, s49, 1\ns_cselect_b32 s49, 0, s49\ns_cselect_b32 s66, -1, -2\ns_cselect_b32 s67, 1, 0'
    pre = ldw(PA, lidx[0]) + ldw(PB, lidx[1]) + ldw(PC, lidx[2]) + ldw(X0, lidx[3])
    zs = zero(G0) + zero(G1) + zero(G2) + zero(G3) + zero(W0) + zero(W1)
    wra = f'ds_write_b128 v0, {V(MA,4)} offset:{w*2048}'
    poll = f'buffer_load_dwordx4 {V(MA,4)}, v0, {WS}, s43 offen sc1 ;!'
    ldb = [f'buffer_load_dwordx4 {V(MB,4)}, v0, {WS}, s63 offen sc1', f'buffer_load_dwordx4 {V(M8,4)}, v0, {WS}, s44 offen sc1']
    nop = lambda k: ['s_nop 3']*k
    lb = opt.get('lb')
    if lb is not None:
        ns[0].append('s_cmp_eq_u32 s36, 0'); ns[lb] += [f's_cbranch_scc1 {P}LB'] + ldb + [f'{P}LB:']
    fs = opt.get('fs'); F = N[3]
    fpoll = f'buffer_load_ushort v{F+3}, v{F+2}, {WS}, s58 offen sc1 ;!'
    if fs is not None and w == 1:
        ns[30] += ['s_add_u32 s59, s36, 1', 's_mul_i32 s60, s59, 0x10001']
        vs[67] += [f'v_lshrrev_b32 v{F+2}, 3, v0']; vs[64] += [f'v_mov_b32 v{F}, s60']; vs[65] += [f'v_and_b32 v{F+1}, 0x300, v0']
        ns[fs] += [f'buffer_store_dword v{F}, v{F+1}, {WS}, s57 offen{sf}']
        for i in opt.get('fp', (69, 72, 75, 78)): ns[i] += [fpoll]
    spec = opt.get('spec', 0); ec = opt.get('ec')
    if ec is not None:
        T = G4+1
        ns[ec] += [f's_cbranch_scc1 {P}EW', 's_waitcnt vmcnt(0)', f'{P}EW:']
        ns[bw].insert(0, 's_waitcnt vmcnt(%d)' % sum(x.startswith('buffer_') for i in range(ec+2, bw) for x in ns[i] + vs[i]))
        c_ = [f'v_max3_u32 v{T}, v{MB}, v{MB+1}, v{MB+2} ;!', f'v_max3_u32 v{T}, v{MB+3}, v{M8}, v{T} ;!', f'v_max3_u32 v{T}, v{M8+1}, v{M8+2}, v{T} ;!', f'v_max_u32 v{T}, v{M8+3}, v{T} ;!', f'v_cmp_lt_u32 vcc, s66, v{T}']
        vs[ec] += c_[:2]; vs[ec+1] += c_[2:] + [f's_cbranch_vccnz {P}EC', f'{P}ER:']
    st = opt.get('st', [])
    def stamp(p):
        if p in st: a(f's_memtime s[{76+2*st.index(p)}:{77+2*st.index(p)}] ;!')
    if bp != bk:
        fl = [x for i in range(bk) for x in ns[i] + vs[i]]; kw = max(i for i, x in enumerate(fl) if x.startswith('ds_write_b64'))
        ns[bk][0:1] = ['s_waitcnt lgkmcnt(%d)' % sum(x.startswith('ds_') for x in fl[kw+1:]), 's_barrier ;!']
    a('\n'.join(pre + zs + nx3 + [wra, f'ds_read_b32 v{G4}, v0 offset:{L_PUB + 4*min(w, 2)}', 's_mov_b32 s66, -1']))
    if opt.get('prof'): a('s_memtime s[70:71]\ns_waitcnt lgkmcnt(0)\ns_mov_b32 s72, s49')
    if opt.get('drop') is not None: a('s_mov_b32 s49, 0\ns_mov_b32 s53, -1')
    if opt.get('prof'):
        for k in range(6): a(f's_mov_b32 s{90+k}, 0\ns_mov_b32 s{76+2*k}, s70')
    T = G4+1
    chk = f'v_max3_u32 v{T}, v{MA}, v{MA+1}, v{MA+2}\nv_max_u32 v{T}, v{MA+3}, v{T}\n{wra}\nv_cmp_lt_u32 vcc, s66, v{T}'
    a('s_waitcnt vmcnt(0) lgkmcnt(0)')
    if w < 3 and not mode and opt.get('rr', 1):
        a(f'v_mov_b64 {V(G4+2,2)}, -1')
        for sl in range(4): a(f's_mov_b32 s54, {WS_RING + sl*RSLOT}\nbuffer_store_dword{x2} {V(G4+2, 2 if w == 2 else 1)}, v{G4}, {WS}, s54 offen')
    if w == 3 and opt.get('rr', 1):
        a(f'v_lshlrev_b32 v{G4+2}, 3, v0\ns_add_u32 s54, s58, 0x80000\ns_add_u32 s55, s58, 0x82000\nbuffer_load_dword v{G4+3}, v{G4+2}, {WS}, s54 offen sc1 ;!\nbuffer_load_dword v{G4+3}, v{G4+2}, {WS}, s55 offen sc1 ;!')
    def hclk(R=G4+1):
        if opt.get('hst') == 2 and w == 3:
            L = a.lab('HC'); k = opt.get('hk', 0)
            a(f's_memtime s[90:91]\ns_load_dwordx2 s[98:99], s[0:1], 128\ns_lshl_b32 s94, s3, 8\ns_or_b32 s94, s94, s36\ns_lshr_b32 s95, s94, {k}\ns_and_b32 s94, s94, {(1<<k)-1}\ns_lshl_b32 s94, s94, 8\ns_or_b32 s94, s94, s95\ns_cmp_lt_u32 s94, 16\ns_waitcnt lgkmcnt(0)\ns_cbranch_scc0 {L}\ns_lshl_b32 s94, s94, 2\ns_sub_u32 s90, s90, s68\nv_mov_b32 v{R+1}, s94\nv_mov_b32 v{R}, s90\nglobal_store_dword v{R+1}, v{R}, s[98:99] sc1\n{L}:')
    hclk()
    a(f'''s_branch {P}STEP
@loop {P}
{P}TOP:
{poll}
{BUD}
{P}TW:
@vmclear
s_waitcnt vmcnt({opt.get('depth', 1)}) lgkmcnt(0)
{chk}
s_cbranch_vccnz {P}TOP''')
    a('\n'.join(['s_cmp_eq_u32 s36, s36'] if ec is not None else ldb if lb is None or opt.get('lb2') else []) + f'\n{P}STEP:')
    stamp('top')
    for i, e in enumerate(l):
        if isinstance(e, str): a(DENSE[e])
        else:
            kind, idx = loc[e[0]]
            a(f'v_smfmac_f32_16x16x64_bf16 {V(e[2],4)}, {V(e[1],4)}, {X(idx if kind == "R" else e[3], 8)}, v2')
        if i != 1: stamp(i)
        a('\n'.join(x for x in ns[i] + vs[i] if not any(x.startswith(p) for p in opt.get('drop', []))))
        if i == 1: stamp(i)
    sel = f'ds_read_b128 {V(M8,4)}, v0 offset:{L_SEL}'
    al = opt.get('al', 'ack0'); d1 = opt.get('d1', (0, 0, 0)); xb = opt.get('xb', 'early')
    a(f'{cvt(W1+2, G1)}\n{cvt(W1+3, G1+2)}')
    if w == 1 and al == 'pre': a('\n'.join(nop(d1[1]) + rld))
    else: a('\n'.join(nop(opt.get('bd', 0))))
    a(('' if hold & 2 else stb) + f'\n{P}HOP:')
    stamp('hop')
    def reduce(beh, mid=()):
        bo = lambda d, x, y: f'v_bitop3_b32 v{d}, v{x}, v{y}, s65 bitop3:0x7e'
        T = G0; T2 = G1
        for i in range(4):
            a(f's_waitcnt vmcnt({3-i+beh + (len(mid) if i else 0)})')
            if i == 0:
                stamp('ld')
                if w == 1 and xb == 'bar': a(f's_barrier ;!\n{P}P1X:')
            o2 = (RB[i], M8) if w < 2 else (M8, RB[i])
            a(f'v_mfma_f32_16x16x32_bf16 {V(MB,4)}, {V(o2[0],4)}, {V(o2[1],4)}, ' + ('0' if i == 0 else V(MB,4)))
            if i == 0: a('\n'.join(mid) + '\n@vmclear')
            if i == 1: a(bo(T, RB[0], RB[1]))
            elif i == 3: a(bo(T2, RB[2], RB[3]))
        if w == 2 and mode:
            for i in range(4):
                for j in range(1, 4): a(f'v_bitop3_b32 v{T}, v{T}, v{RB[i]+j}, s65 bitop3:0xf6')
        a(f'v_bitop3_b32 v{T}, v{T}, v{T2}, 1 bitop3:0xa8\nv_cmp_lt_u32 vcc, s67, v{T}\ns_cbranch_vccnz {P}R1')
        if w < 2: a(f'v_permlane32_swap_b32 v{MB}, v{MB+2}\nv_permlane32_swap_b32 v{MB+1}, v{MB+3}\n' + '\n'.join(add2(MB) + [cvt(MB, MB)]))
        else: a('\n'.join([f'v_add_f32_dpp v{MB+i}, v{MB+i}, v{MB+i} row_ror:8 {DP}' for i in range(4)] + [cvt(MB, MB), cvt(MB+1, MB+2)]))
        a(f'buffer_store_dword{x2} {V(MB, 2 if w == 2 else 1)}, v{G4}, {WS}, s45 offen{sf}')
        stamp('p1')
    def endst(to):
        if spec: to = a.lab(P + 'SP')
        if st: a('s_memtime s[74:75] ;!')
        if st and 'tl' in opt:
            n_ = len(st)
            a(f's_waitcnt lgkmcnt(0)\ns_sub_u32 s88, s36, {opt["tl"]}\ns_cmp_lt_u32 s88, {20//n_}\ns_cbranch_scc0 {to}\ns_mul_i32 m0, s88, {n_}\ns_nop 0')
            for k in range(n_): a(f's_movreld_b32 s{16+k}, s{76+2*k}')
        elif st:
            a('s_waitcnt lgkmcnt(0)')
            for k in range(len(st)): a(f's_sub_u32 s88, s74, s{76+2*k}\ns_add_u32 s{90+k}, s{90+k}, s88\ns_mov_b32 s{76+2*k}, s74')
        if not spec: a(f's_branch {to}'); return
        a(f'{to}:\n@reset\n' + '\n'.join([poll]*(spec-2) + nop(opt.get('d3', 0)) + [x + ' ;!' for x in ldb]) + f'\n{BUD}')
        for i in range(spec): a(f'@vmclear\ns_waitcnt vmcnt({spec+1-i}) lgkmcnt(0)\n{chk}\ns_cbranch_vccz {P}STEP')
        a(f's_branch {P}TOP')
    xf = opt.get('xf', 0)
    pf = opt.get('pf', (4, 0, 0, 0))
    def plain(k=0):
        a('s_barrier ;!'); stamp('y')
        sp_ = nop(opt.get('sp', 0)); r = pre[k:]; h = len(r)//2; z0 = opt.get('z0', 8)
        a('\n'.join(nop(opt.get('d2', 0)) + zs[:z0] + [poll] + r[:h] + zs[z0:6+z0//2] + sp_ + ([poll] if opt.get('depth', 1) > 1 else []) + r[h:] + zs[6+z0//2:] + sp_))
    if w == 1:
        if fs is not None:
            a(f'{P}F1:\nv_cmp_ne_u32 vcc, s59, v{F+3} ;!\ns_cbranch_vccz {P}F2\n{fpoll}\ns_sub_u32 s49, s49, 1\ns_cselect_b32 s49, 0, s49\ns_waitcnt vmcnt(8)\ns_cbranch_scc0 {P}F1\n{P}F2:')
            stamp('f')
        if al[:3] == 'ack': a('s_waitcnt vmcnt(%s)' % (al[3:] or 2))
        if al != 'pre': a('\n'.join(nop(d1[1]) + pre[:pf[1]] + rld))
        if xf: a(XB)
        a(f'{sel}\n{BUD}\n@vmclear\n{P}P1:'); reduce(1 if al == 'pre' else len(hs)); plain(pf[1]); a(f'@end {P}'); endst(f'{P}TOP')
    elif w == 3:
        a('\n'.join(nx3))
        hclk(MB)
        if opt.get('clk'): a(f's_memtime s[90:91]\ns_memrealtime s[92:93]\ns_lshl_b32 s94, s3, 7\ns_add_u32 s94, s94, s36\ns_lshl_b32 s94, s94, 3\ns_add_u32 s94, s94, 0x220000\ns_waitcnt lgkmcnt(0)\nv_mov_b32 v{G0}, s90\nv_mov_b32 v{G0+1}, s92\nbuffer_store_dwordx2 {V(G0,2)}, off, {WS}, s94')
        if xb == 'bar' or xf: a(XB)
        plain(); a(f'@end {P}'); endst(f'{P}TOP')
    elif xb == 'early':
        if w == 2: a(f's_cmp_lg_u32 s55, 0\ns_cbranch_scc1 {P}NQ')
        if hold: a(XB)
        a(f'{sel}\n{BUD}\ns_waitcnt vmcnt(%d)' % (63 if xf == 2 else 0 if w == 0 else opt.get('ah', 0)))
        if xf and not hold: a(XB)
        a('\n'.join(nop(d1[w]) + pre[:pf[w]] + rld + ['@vmclear', f'{P}P1:'])); reduce(0); plain(pf[w]); a(f'@end {P}'); endst(f'{P}TOP')
    else:
        if w == 2: a(f's_cmp_lg_u32 s55, 0\ns_cbranch_scc1 {P}NQ')
        if hold: a(XB)
        a('\n'.join([sel] + pre[pf[w]:] + [BUD]))
        if xb == 'ack': a('s_waitcnt vmcnt(%d)' % (0 if w == 0 else opt.get('ah', 0)))
        if (xb == 'bar' or xf) and not hold: a('s_barrier ;!')
        a('\n'.join(nop(d1[w]) + pre[:pf[w]] + rld + ['s_barrier ;!'])); stamp('y')
        a('\n'.join(nop(opt.get('d2', 0)) + [poll, '@vmclear', f'{P}P1:'])); reduce(1, [poll] if opt.get('depth', 1) > 1 else [])
        a('\n'.join(zs) + f'\n@end {P}'); endst(f'{P}TW')
    T = N[3]
    a(f'''@reset
{P}PB:
{ldb[0]} ;!
{ldb[1]} ;!
{BUD}
@vmclear
s_waitcnt vmcnt({opt.get('pbd', 0)})
''' + '\n'.join(chb) + f'''
{wrb}
s_cbranch_vccnz {P}PB
s_waitcnt lgkmcnt(0)
s_branch {P}B''')
    if ec is not None: a(f'@reset\n{P}EC:\n{ldb[0]} ;!\n{ldb[1]} ;!\ns_branch {P}ER')
    if w < 3: a(f'@reset\n{P}R1:\n' + '\n'.join(rld) + f'\n{BUD}\ns_waitcnt vmcnt(0)\ns_branch {P}P1' + ('X' if w == 1 and xb == 'bar' else ''))
    if w == 2:
        a(f'@reset\n{P}NQ:')
        if xb == 'bar' or xf: a(XB)
        plain(); endst(f'{P}TOP')
    a(f'''@reset
{P}TAIL:
s_waitcnt lgkmcnt(0)
ds_read_b64_tr_b16 {V(G4,2)}, v6 offset:{L_K + w*512}
buffer_store_dwordx4 {V(G4,4)}, v0, {WS}, s48 offen sc1''')
    if opt.get('hst') == 1: a(f's_mov_b32 s81, {mode+1}'); hstamps(a, 0, [(0,68),(13,82),(2,70),(3,78),(11,81)], w)
    elif opt.get('prof'):
        a(f'''s_memtime s[74:75]
s_waitcnt lgkmcnt(0)
s_sub_u32 s74, s74, s70
s_sub_u32 s70, s70, s68
s_sub_u32 s72, s72, s49
v_mov_b32 v8, s74
v_mov_b32 v9, s70
v_mov_b32 v10, s72
v_mov_b32 v11, {mode}
s_lshl_b32 s54, s3, 6
s_add_u32 s54, s54, {0x200000 + w*16}
buffer_store_dwordx4 v[8:11], off, {WS}, s54
s_add_u32 s54, s54, 0x1000
v_mov_b32 v12, s90
v_mov_b32 v13, s91
v_mov_b32 v14, s92
v_mov_b32 v15, s93
buffer_store_dwordx4 v[12:15], off, {WS}, s54''')
    if 'tl' in opt:
        a(f's_lshl_b32 s54, s3, 9\ns_add_u32 s54, s54, {0x210000 + w*128}')
        a(f'''s_memtime s[76:77]
s_memrealtime s[78:79]
s_mov_b32 s90, 0
s_mov_b32 s91, 0
s_mov_b32 s92, 0
s_waitcnt lgkmcnt(0)
{P}CAL:
s_memtime s[80:81]
s_memrealtime s[82:83]
s_waitcnt lgkmcnt(0)
s_sub_u32 s80, s80, s76
s_sub_u32 s82, s82, s78
s_add_u32 s90, s90, s80
s_add_u32 s91, s91, s82
s_add_u32 s92, s92, 1
s_cmp_lt_u32 s92, 256
s_cbranch_scc1 {P}CAL
v_mov_b32 v40, s76
v_mov_b32 v41, s78
v_mov_b32 v42, s90
v_mov_b32 v43, s91''')
        for k in range(20): a(f'v_mov_b32 v{20+k}, s{16+k}')
        for k in range(6): a(f'buffer_store_dwordx4 {V(20+4*k,4)}, off, {WS}, s54 offset:{16*k}')
    a('s_waitcnt vmcnt(0)\ns_endpgm')
    a(f'''@reset
{P}FB:
s_waitcnt vmcnt(0) lgkmcnt(0)
ds_write_b64 v6, {V(G4,2)} offset:{L_Q + w*512}
s_barrier''')
    for u in range(4): a(f'ds_read_b64 {V(X0+2*u,2)}, v6 offset:{L_Q + u*512}')
    t = G3
    a(f'''s_waitcnt lgkmcnt(0)
s_barrier
v_max3_f32 v{t}, v{X0}, v{X0+1}, v{X0+2}
v_max3_f32 v{t}, v{t}, v{X0+3}, v{X0+4}
v_max3_f32 v{t}, v{t}, v{X0+5}, v{X0+6}
v_max3_f32 v{t}, v{t}, v{X0+7}, v{M8}
v_max_f32 v{t}, v{t}, v{M8+1}
v_mov_b32 v{t+1}, v{t}
v_permlane16_swap_b32 v{t}, v{t+1}
v_max_f32 v{t}, v{t}, v{t+1}
v_mov_b32 v{t+1}, v{t}
v_permlane32_swap_b32 v{t}, v{t+1}
v_max_f32 v{t}, v{t}, v{t+1}''')
    rs = [X0+i for i in range(8)] + [M8, M8+1]
    for r in rs: a(f'v_sub_f32 v{r}, v{r}, v{t}')
    for r in rs: a(f'v_exp_f32_dpp v{r}, v{r} quad_perm:[0,1,0,1] {DP}')
    for u in range(4): a(cvt(N[0]+u, X0+2*u))
    a(cvt(MA, M8)); a(cvt(MA+3, M8))
    for e in ('zx', 'px0', 'px1', 'zm', 'pm0', 'pm1'): a(DENSE[e])
    a(f'v_rcp_f32 v{G3}, v{G3}\ns_mov_b64 vcc, 0\ns_nop 7\ns_branch {P}RJ')
    if w == 3:
        a(f'''@reset
{P}FL:
buffer_load_dword v7, off, {WS}, s57 sc1
s_cmp_lt_u32 s49, 1
s_waitcnt vmcnt(0)
s_cbranch_scc1 {P}FR
s_sub_u32 s49, s49, 1
v_readfirstlane_b32 s54, v7
s_lshr_b32 s54, s54, s60
s_and_b32 s54, s54, 0xff
s_cmp_gt_u32 s54, s61
s_cbranch_scc1 {P}FR
s_branch {P}FL''')

def gen(opt):
    out = []
    a = Asm(); a('REC:')
    if opt.get('prof'): a('s_memtime s[68:69]')
    srds(a, [('ws',8),('dbg',12),('wq',SWQ),('wk',SWK),('wv',SWV),('wo',SWO),('mem0',SM0)])
    for w in range(1, 4): a(f's_cmp_eq_u32 s4, {w}\ns_cbranch_scc1 RECW{w}')
    out.append(a.text())
    for w in range(4):
        l, loc, n, us = plan(w, opt)
        a = Asm(); a.uid = 100*w; a(f'RECW{w}:'); init(a, w, loc)
        if opt.get('mode') is None: a(f's_cmp_eq_u32 s64, 32\ns_cbranch_scc0 RECM{w}')
        elif opt['mode'] == 1: a(f's_branch RECM{w}')
        step(a, w, 0, l, loc, n, us, opt)
        a(f'@reset\nRECM{w}:'); step(a, w, 1, l, loc, n, us, opt)
        out.append(a.text())
        if opt.get('sim') == w:
            for t, x in a.sim(f'R{w}0TOP', f'R{w}0TAIL'): print(t, x)
    return '\n'.join(out)
```

```python
from common import *
import struct
N = [8+4*i for i in range(6)]; MA, MB, M8, X0, X1, W0, W1 = 32, 36, 40, 44, 48, 52, 56
G0, G1, G2, G3, G4 = 60, 64, 68, 72, 76
PA, PB, PC = N[0], N[2], N[4]
L_Q, L_K, L_SEL, L_PUB, L_P, L_ONE, L_W = 8192, 10240, 12288, 13312, 14336, 15360, 16384
WREG = 36864
WS, DBG, SWQ, SWK, SWV, SWO, SM0 = 's[8:11]', 's[12:15]', 16, 20, 24, 28, 32
def f2u(x): return struct.unpack('<I', struct.pack('<f', x))[0]

def plan(w, opt):
    a_, b_ = w, 4+w; n = [c for c in range(8) if c not in (a_, b_)]
    us = [u for u in range(4) if u != w]
    Q = lambda T, c, A, buf=None: (('q', T, c), A, (G0, G1)[T], buf)
    K = lambda T, c, A, buf=None: (('k', T, c), A, (G2, G3)[T], buf)
    Vv = lambda T, c, A, buf=None: (('v', T, c), A, (W0, W1)[T], buf)
    acc = (G2, W0, W1, G1)
    O = lambda u, t, A, buf=None: (('o', u, t), A, acc[t], buf)
    s = {}
    sx, sm = opt.get('sx', 45), opt.get('sm', 55)
    st = {0: PA, 1: PB, 2: PC, 3: X0, 9: PC, 16: PC, 23: PC, 64: PC, 77: PC, 79: PA, 81: PB}
    for u in opt.get('xs', (11, 19, 27, 34, 41, 48, 54)): st[u] = X0
    l = []
    for c, A in ((a_, MA), (n[0], N[0]), (n[1], N[1]), (n[2], N[2])): l += [Q(0,c,A), Q(1,c,A), K(0,c,A), K(1,c,A), Vv(0,c,A), Vv(1,c,A)]
    B5 = [(b_, MB), (8, M8), (n[3], N[3]), (n[4], N[4]), (n[5], N[5])]
    l += [Q(T, *B5[i]) for T, i in ((0,0),(1,0),(0,1),(1,1),(0,2),(0,3),(0,4),(1,2),(1,3),(1,4))]
    l += [K(T, *B5[i]) for T in range(2) for i in range(5)]
    l += [Vv(T, *B5[i]) for T, i in ((0,0),(1,0),(0,1),(1,1),(0,2),(1,2),(0,3),(0,4),(1,3),(1,4))]
    l[sx:sx] = ['sx0', 'sx1']; l[sm:sm] = ['sm0', 'sm1']
    l += ['zx', 'px0', 'zm', 'px1', 'pm0', 'pm1'] if opt.get('zm', 60) == 60 else ['zx', 'px0', 'px1', 'zm', 'pm0', 'pm1']
    l += [O(w,t,M8) for t in range(4)]
    oa = (MA, MB, G3)
    for t in range(4):
        if t == 2: l += [(('h',0,0), X0, G0, None), (('h',1,0), X1, G0, None)]
        for k in range(3): l.append(O(us[k], t, oa[k]))
    for i, b in st.items(): l[i] = l[i][:3] + (b,)
    loc = {}; nl = nr = 0
    for e in l:
        if isinstance(e, str): continue
        if e[3] is not None: loc[e[0]] = ('L', nl); nl += 1
        else: loc[e[0]] = ('R', 80+8*nr); nr += 1
    assert nl == 18 and nr == 54, (nl, nr)
    return l, loc, n, us

def init(a, w, loc, opt):
    lane(a, 8)
    expr(a, 0, 8, [(4,2,64)], (w&1)*16, 9); expr(a, 1, 8, [(0,4,16)], 0, 9); a('v_xor_b32 v0, v0, v1')
    expr(a, 1, 8, [(4,1,8192),(5,1,32*8192)], 4*w*8192, 9); a('v_add_u32 v0, v0, v1')
    a('s_lshl_b32 s62, s3, 8\ns_mul_i32 s63, s3, %d' % (128*1152))
    groups = [(m, c) for m in 'qkv' for c in range(9)] + [('o', u, tp) for u in range(4) for tp in range(2)] + [('h',)]
    q = []
    def dma(gi):
        g = groups[gi]
        for p in range(4):
            a(f's_mov_b32 m0, {L_W + WREG*w + (5 + gi%4)*4096 + p*1024}')
            ro = 16*(p>>1) + 2*(p&1)
            if g[0] in 'qkv': off, sb, vr, srd = (64*g[1] + ro)*8192, 62, 0, {'q':SWQ,'k':SWK,'v':SWV}[g[0]]
            elif g[0] == 'o': off, sb, vr, srd = (64*(g[1]>>1) + 8*(g[1]&1) + ro)*1152 + 512*g[2], 63, 4, SWO
            else: off, sb, vr, srd = ro*1152 + 1024, 63, 7, SWO
            a(f's_add_u32 s54, s{sb}, {off}\nbuffer_load_dwordx4 v{vr}, s[{srd}:{srd+3}], s54 offen{opt.get("wf", "")} lds'); q.append(gi)
    for gi in range(3): dma(gi)
    a('s_mul_i32 s54, s3, %d' % PHEAD)
    a(f's_add_u32 s37, s54, {WS_PART + w*2048}\ns_add_u32 s38, s54, {WS_PART + 8192 + 256*w}')
    for n in range(4): a(f's_mov_b32 s{39+n}, {WS_PART + n*8*PHEAD}')
    a(f's_mov_b32 s45, {WS_RING}\ns_mov_b32 s46, {WS_RING+0x8000}\ns_lshl_b32 s54, s3, 14\ns_add_u32 s47, s54, {WS_KV + w*4096}\ns_add_u32 s58, s54, {WS_KV}')
    a(f's_lshl_b32 s54, s3, 12\ns_add_u32 s48, s54, {WS_KM + w*1024}\ns_mov_b32 s49, 400000\ns_mov_b32 s36, 0')
    sc = f2u(128**-0.5 * 1.4426950408889634)
    a(f's_mov_b32 s50, {sc}\ns_mov_b32 s51, {sc}\ns_mov_b32 s52, {(127-48)<<23}\ns_mov_b32 s53, {112<<23}\ns_lshl_b32 s57, s3, 2')
    if w < 2: a(f's_lshr_b32 s59, s3, 3\ns_lshl_b32 s59, s59, 11\ns_add_u32 s59, s59, {1024 if w == 0 else 0}\ns_and_b32 s60, s3, 7')
    elif w == 2: a('s_mov_b32 s59, 8192\ns_lshr_b32 s60, s3, 2\ns_and_b32 s55, s3, 3')
    if w < 3:
        red_addr(a, w, 7, 8, 9)
        a('s_and_b32 s54, s60, 1\ns_lshl_b32 s54, s54, 8\ns_lshr_b32 s61, s60, 1\ns_lshl_b32 s61, s61, 6\ns_add_u32 s54, s54, s61\ns_lshr_b32 s61, s3, 3\ns_lshl_b32 s61, s61, 10\ns_add_u32 s54, s54, s61\ns_add_u32 s54, s54, %d' % (4096 if w == 0 else 0))
        expr(a, 10, 8, [(1,1,512),(2,1,32),(0,1,16),(4,1,8),(5,1,4),(3,1,1<<30)], 's54', 9)
        if w == 2:
            a('s_lshr_b32 s54, s60, 2\ns_lshl_b32 s54, s54, 5\ns_bfe_u32 s61, s60, 0x10001\ns_lshl_b32 s61, s61, 9\ns_add_u32 s54, s54, s61\ns_and_b32 s61, s60, 1\ns_lshl_b32 s61, s61, 7\ns_add_u32 s54, s54, s61\ns_add_u32 s54, s54, 8192')
            expr(a, 10, 8, [(0,1,8),(1,1,256),(2,1,64),(4,1,16),(3,1,1<<30),(5,1,1<<28)], 's54', 9)
            a('v_xor_b32 v10, 0x10000000, v10')
            a('s_lshl_b32 s54, s55, 29\nv_or_b32 v10, s54, v10')
        a('v_mov_b64 v[12:13], -1\nv_mov_b64 v[14:15], -1')
        for sl in range(1):
            for n in range(4):
                a(f's_mov_b32 s54, {WS_PART + sl*PSLOT + n*8*PHEAD}\nbuffer_store_dwordx4 v[12:15], v7, {WS}, s54 offen sc1')
        for sl in range(4): a(f's_mov_b32 s54, {WS_RING + sl*RSLOT}\nbuffer_store_dword{"x2 v[12:13]" if w == 2 else " v12"}, v10, {WS}, s54 offen sc1')
        a(f'v_lshlrev_b32 v11, 4, v8\nds_write_b32 v11, v10 offset:{L_PUB + 4*w}')
        if w == 1: a(f's_add_u32 s57, s57, {WS_FLAG + 0x2000}\ns_and_b32 s58, s3, 3\ns_lshl_b32 s58, s58, 8\ns_add_u32 s58, s58, {WS_FLAG + 0x2000}\nv_and_b32 v11, 0x300, v11\nbuffer_store_dword v12, v11, {WS}, s57 offen sc1')
    else:
        expr(a, 16, 8, [(0,2,2),(2,1,1)], 0, 9)
        a('v_and_b32 v9, 15, v8\nv_cmp_lt_u32 vcc, 7, v9\nv_cndmask_b32 v9, v9, v16, vcc\nv_mov_b32 v10, 0x3f80\nv_mov_b32 v11, 0x3f800000')
        for r in range(4):
            a(f'v_mov_b32 v{12+r}, 0\nv_cmp_eq_u32 vcc, {2*r}, v9\nv_cndmask_b32 v{12+r}, v{12+r}, v10, vcc\nv_cmp_eq_u32 vcc, {2*r+1}, v9\nv_cndmask_b32 v{12+r}, v{12+r}, v11, vcc')
        a(f'v_lshlrev_b32 v11, 4, v8\nds_write_b128 v11, v[12:15] offset:{L_SEL}')
        for r in range(4): a(f'v_mov_b32 v{16+r}, 0x3f803f80')
        a(f'ds_write_b128 v11, v[16:19] offset:{L_ONE}')
    expr(a, 4, 8, [(5,1,64)], (w&1)*128, 9); expr(a, 1, 8, [(0,5,16)], 0, 9); a('v_xor_b32 v4, v4, v1')
    expr(a, 1, 8, [(5,1,1152)], (32*(w&1) + 4*(w>>1))*1152, 9); a('v_add_u32 v4, v4, v1')
    expr(a, 7, 8, [(4,1,32)], (w&1)*64, 9); expr(a, 1, 8, [(0,3,16)], 0, 9); a('v_xor_b32 v7, v7, v1')
    expr(a, 1, 8, [(3,1,1152),(4,1,8*1152),(5,1,64*1152)], (32*(w&1) + 4*(w>>1))*1152, 9); a('v_add_u32 v7, v7, v1')
    base = [(4,2,WREG),(0,1,8)]
    expr(a, 2, 8, [(1,1,32)], (8*(w>>1) + (w&1))*16, 9); expr(a, 1, 8, [(4,1,16),(2,2,64)], 0, 9); a('v_xor_b32 v2, v2, v1')
    expr(a, 1, 8, base + [(2,2,256)], L_W, 9); a('v_add_u32 v2, v2, v1\nv_xor_b32 v3, 64, v2')
    expr(a, 5, 8, [(1,1,16),(3,1,32)], 8*w*16, 9); expr(a, 1, 8, [(2,1,64),(4,1,128)], 0, 9); a('v_xor_b32 v5, v5, v1')
    expr(a, 1, 8, base + [(2,1,512)], L_W, 9); a('v_add_u32 v5, v5, v1\nv_xor_b32 v6, 64, v5')
    expr(a, 1, 8, [(0,6,16)], L_W + WREG*w, 9)
    g1 = opt.get('g1', 28)
    ldd = f'buffer_load_dwordx4 v[8:11], off, {DBG}, s54 sc1 ;!\nbuffer_load_dwordx4 v[12:15], off, {DBG}, s54 offset:16 sc1 ;!'
    tch = f'buffer_load_dword v3, {WS}, s54 offen sc1 lds ;!'
    def flg(L):
        a('v_readfirstlane_b32 s54, v7')
        for b in range(4): a(f's_and_b32 s59, s54, {hex(0xff << 8*b)}\ns_cbranch_scc0 {L}')
        a(f's_mov_b32 s60, s58')
        if L[:3] == 'RFN': a(f'{L}:')
        for o in (0, 0x2000, 0x80000, 0x82000): a(f's_add_u32 s54, s60, {o}\n{tch}')
    q.extend([-1]*(8, 9, 8, 0)[w])
    for gi, g in enumerate(groups):
        a(f's_waitcnt vmcnt({q[::-1].index(gi)}) lgkmcnt(0)\ns_barrier')
        if gi == 3 and w == 0:
            a(f's_getreg_b32 s64, hwreg(HW_REG_XCC_ID,0,3)\ns_lshl_b32 s54, s64, 2\ns_add_u32 s54, s54, 128\nv_mov_b32 v8, 1\ns_mov_b64 exec, 1\nbuffer_atomic_add v8, off, {DBG}, s54 sc1\ns_mov_b64 exec, -1'); q.append(-1)
        if gi+3 < len(groups): dma(gi+3)
        if gi == 27:
            lane(a, 8)
            expr(a, 0, 8, [(1,1,16)], 2*w*16, 9); expr(a, 2, 8, [(3,1,32),(4,1,64)], 0, 9); a('v_xor_b32 v0, v0, v2')
            expr(a, 2, 8, base + [(2,2,128)], L_W, 9); a('v_add_u32 v0, v0, v2\nv_lshlrev_b32 v3, 7, v8')
            expr(a, 2, 8, [(2,2,2304),(0,1,1152),(1,1,64),(4,2,16)], 0, 9)
            for d, ch in ((w*2048, w), (w*2048+1024, 4+w), (L_Q, 8)): a(f's_mov_b32 m0, {d}\ns_mov_b32 s54, {ch*128}\nbuffer_load_dwordx4 v2, s[{SM0}:{SM0+3}], s54 offen lds'); q.append(-1)
        if gi == g1:
            a(f's_mov_b32 s54, 128\n{ldd}'); q.extend([-1, -1])
            if w == 3: a(f'buffer_load_dword v2, off, {DBG}, s57 sc1 ;!'); q.append(-1)
        if gi == g1+4:
            L = a.lab('RSB'); E = a.lab('RSE'); C = a.lab('RSC')
            a(f'''s_branch {C}
{L}:
s_cmp_lt_u32 s49, 1
s_cbranch_scc1 {E}
s_sub_u32 s49, s49, 1
s_mov_b32 s54, 128
{ldd}
s_waitcnt vmcnt(0)
{C}:
@vmclear
v_add3_u32 v7, v8, v9, v10
v_add3_u32 v7, v7, v11, v12
v_add3_u32 v7, v7, v13, v14
v_add_u32 v7, v7, v15
v_cmp_gt_u32 vcc, 32, v7
s_cbranch_vccnz {L}
{E}:
v_max3_u32 v8, v8, v9, v10
v_max3_u32 v8, v8, v11, v12
v_max3_u32 v8, v8, v13, v14
v_max_u32 v8, v8, v15
v_readfirstlane_b32 s64, v8''')
            a(f's_mov_b32 m0, {L_K + w*512}')
            if opt.get('rt', 1) and w == 2: a(f'v_and_b32 v3, 0x780, v3\ns_lshl_b32 s54, s3, 11\ns_add_u32 s54, s54, {WS_RING}\n{tch}'); q.append(-1)
            if opt.get('pt', 0) and w < 2: a(f's_sub_u32 s54, s37, {1024*w}\n{tch}'); q.append(-1)
            if w == 3: a(f'v_mov_b32 v7, v2\ns_mov_b32 s60, {WS_RING}'); flg(a.lab('RFN')); q.extend([-1]*4)
        for T in range(2):
            if g[0] in 'qkv': key, ad, ex = (g[0], T, g[1]), 2+T, 0
            elif g[0] == 'o': key, ad, ex = ('o', g[1], 2*g[2]+T), 5+T, 0
            else: key, ad, ex = ('h', T, 0), 0, 512*T
            kind, idx = loc[key]
            dst = idx if kind == 'R' else (8 if idx < 10 else 16 + 8*(idx-10))
            for p in range(4): a(f'ds_read_b64_tr_b16 {X(dst+2*p,2)}, v{ad} offset:{(5+gi%4)*4096 + p*1024 + ex}')
            if kind == 'L' and idx < 10:
                a(f'ds_write_b128 v1, v[8:11] offset:{idx*2048}\nds_write_b128 v1, v[12:15] offset:{idx*2048+1024}')
    a('s_waitcnt lgkmcnt(0)\ns_barrier')
    for idx in range(10, 18):
        r = 16 + 8*(idx-10)
        a(f'ds_write_b128 v1, {V(r,4)} offset:{idx*2048}\nds_write_b128 v1, {V(r+4,4)} offset:{idx*2048+1024}')
    if w == 3:
        L = a.lab('RF'); E = a.lab('RFE')
        a(f'''s_cmp_eq_u32 s60, s58
s_cbranch_scc1 {E}
{L}:
s_cmp_lt_u32 s49, 1
s_cbranch_scc1 {E}
s_sub_u32 s49, s49, 1
buffer_load_dword v7, off, {DBG}, s57 sc1
s_waitcnt vmcnt(0)''')
        flg(L)
        a(f'{E}:\ns_lshl_b32 s57, s3, 7\ns_add_u32 s57, s57, {WS_FLAG}')
    lane(a, 8)
    a('v_lshlrev_b32 v0, 4, v8\nv_lshrrev_b32 v6, 4, v8\nv_xor_b32 v6, v6, v8\nv_lshlrev_b32 v6, 3, v6')
    for r, o in ((MA, w*2048), (MB, w*2048+1024), (M8, L_Q)): a(f'ds_read_b128 {V(r,4)}, v0 offset:{o}')
    expr(a, 2, 8, [(1,1,0xAAAA)], 0x4444, 9)
    expr(a, 4, 8, [(4,2,256),(2,2,32),(0,1,16)], 0, 9)
    expr(a, 3, 8, [(1,1,128)], 'v4', 9)
    expr(a, 5, 8, [(0,4,32),(4,2,8)], 0, 9); expr(a, 10, 8, [(2,2,8)], 0, 9); a('v_xor_b32 v5, v5, v10')
    if w < 3: red_addr(a, w, 7, 8, 9)

def red_addr(a, w, d, ln, tmp):
    a('s_lshl_b32 s54, s60, 7\ns_add_u32 s54, s54, s59')
    expr(a, d, ln, [(3,3,PHEAD),(0,3,16)], 's54', tmp)
    if w == 2: a(f's_lshl_b32 s54, s55, 29\nv_or_b32 v{d}, s54, v{d}')

def zero(b): return [f'v_mov_b64 {V(b,2)}, 0', f'v_mov_b64 {V(b+2,2)}, 0']
def ldw(buf, idx): return [f'ds_read_b128 {V(buf,4)}, v1 offset:{idx*2048}', f'ds_read_b128 {V(buf+4,4)}, v1 offset:{idx*2048+1024}']
def cvt(d, s): return f'v_cvt_pk_bf16_f32 v{d}, v{s}, v{s+1}'
def padd(b): return f'v_pk_add_f32 {V(b,2)}, {V(b,2)}, {V(b+2,2)}'
DP = 'row_mask:0xf bank_mask:0xf'
DENSE = {
 'sx0': f'v_mfma_f32_16x16x32_bf16 {V(G4,4)}, {V(MA,4)}, {V(G0,4)}, 0',
 'sx1': f'v_mfma_f32_16x16x32_bf16 {V(G4,4)}, {V(N[0],4)}, {V(G1,4)}, {V(G4,4)}',
 'sm0': f'v_mfma_f32_16x16x32_bf16 {V(M8,4)}, {V(G2,4)}, {V(G0,4)}, 0',
 'sm1': f'v_mfma_f32_16x16x32_bf16 {V(M8,4)}, {V(G3,4)}, {V(G1,4)}, {V(M8,4)}',
 'zx': f'v_mfma_f32_16x16x32_bf16 {V(G3,4)}, {V(MB,4)}, {V(N[0],4)}, 0',
 'zm': f'v_mfma_f32_16x16x16_bf16 {V(G3,4)}, {V(MB,2)}, {V(MA,2)}, {V(G3,4)}',
 'px0': f'v_mfma_f32_16x16x32_bf16 {V(X0,4)}, {V(N[1],4)}, {V(N[0],4)}, 0',
 'px1': f'v_mfma_f32_16x16x32_bf16 {V(X1,4)}, {V(N[2],4)}, {V(N[0],4)}, 0',
 'pm0': f'v_mfma_f32_16x16x16_bf16 {V(X0,4)}, {V(G4+2,2)}, {V(MA,2)}, {V(X0,4)}',
 'pm1': f'v_mfma_f32_16x16x16_bf16 {V(X1,4)}, {V(G4+2,2)}, {V(MA+2,2)}, {V(X1,4)}',
}
def step(a, w, mode, l, loc, n, us, opt):
    sf = ' sc1' if mode else ''
    P = f'R{w}{mode}'
    ns = {i: [] for i in range(len(l))}; vs = {i: [] for i in range(len(l))}
    def put(d, s0, lst, per=1):
        for i, x in enumerate(lst): d[s0 + i//per].append(x)
    lidx = {i: loc[e[0]][1] for i, e in enumerate(l) if not isinstance(e, str) and e[3] is not None}
    pos = lambda ch: (ch&3)*2048 + (ch>>2)*1024
    add2 = lambda b: [f'v_add_f32 v{b}, v{b}, v{b+2}', f'v_add_f32 v{b+1}, v{b+1}, v{b+3}']
    tag = lambda r: f'v_and_or_b32 v{r}, v{r}, -2, s65'
    rdc = lambda r, c: f'ds_read_b128 {V(r,4)}, v0 offset:{pos(c)}'
    x2 = "x2" if w == 2 else ""
    g = opt.get
    b1, bw, cw, b2, bq, bk, bp, sx, sm, zm = g('b1', 1), g('bw', 19), g('cw', 21), g('b2', 24), g('bq', 41), g('bk', 51), g('bp', 55), g('sx', 45), g('sm', 55), g('zm', 60)
    last = lambda key: max(i for i, e in enumerate(l) if not isinstance(e, str) and e[0][:len(key)] == key)
    ns[b1] += ['s_barrier', rdc(N[0], n[0])]; ns[b1+1] += [rdc(N[1], n[1]), rdc(N[2], n[2])]
    T = N[3]
    wrb = f'ds_write_b128 v0, {V(MB,4)} offset:{w*2048+1024}'
    chb = [f'v_max3_u32 v{T}, v{MB}, v{MB+1}, v{MB+2}', f'v_max3_u32 v{T}, v{MB+3}, v{M8}, v{T}', f'v_max3_u32 v{T+1}, v{M8+1}, v{M8+2}, v{M8+3}', f'v_max_u32 v{T}, v{T+1}, v{T}', f'v_cmp_lt_u32 vcc, s66, v{T}']
    for i, r, ad, of in ((6, MA, 3, 0), (12, N[0], 3, 1024), (18, N[1], 0, 2048), (24, N[2], 0, 3072)):
        ns[i].append(f'buffer_load_dwordx4 {V(r,4)}, v{ad}, {WS}, s47 offen offset:{of} sc1')
    ns[bw] += [wrb]; vs[bw] += chb[:1]; vs[cw] += chb[1:3]; vs[cw+1] += chb[3:]; vs[min(cw+2, 23)] += [f's_cbranch_vccnz {P}PB', f'{P}B:']
    ns[b2] += ['s_barrier', rdc(N[3], n[3])]; ns[max(b2+1, 24)] += [rdc(N[4], n[4]), rdc(N[5], n[5])]
    prev = {}
    for u in sorted(lidx):
        bf = l[u][3]
        if u > 3: put(ns, g('ls', {}).get(u, {64: 58, 77: 70, 79: 72, 81: 74}.get(u, prev[bf] + 1)), ldw(bf, lidx[u]))
        prev[bf] = u
    if w < 3:
        vs[3].append(f'v_mov_b64 {V(T,2)}, -1')
        ns[7].append(f'buffer_store_dword{x2} {V(T, 2 if w == 2 else 1)}, v{G4}, {WS}, s46 offen{sf}')
    ns[14].append(f'ds_read_b64_tr_b16 {V(G4,2)}, v6 offset:{L_K + w*512}')
    ns[g('kms', 30) + g('kst', 2)*w] += [f'buffer_store_dwordx4 {V(G4,4)}, v0, {WS}, s48 offen' + opt.get('kmf', ' sc1')]
    ns[47] += ['s_add_u32 s48, s48, %d' % opt.get('kmi', 0x20000)]; ns[26] += ['s_add_u32 s47, s47, %d' % opt.get('kvi', 0x80000)]
    ns[27] += ['s_add_u32 s45, s45, 0x4000']; ns[31] += ['s_bitset0_b32 s45, 16', 's_add_u32 s44, s45, 8192']; ns[33] += [f's_add_u32 s43, s45, {w*1024}', f's_add_u32 s63, s45, {4096 + w*1024}']
    ns[38] += ['s_xor_b32 s46, s45, 0x8000', 's_and_b32 s65, s36, 1']
    tch = opt.get('touch', 1)
    if w == 3:
        vs[3].append('v_readfirstlane_b32 s54, v7 ;!'); vs[13].append(f'v_lshlrev_b32 v7, 3, v0 ;!')
        ns[6] += ['s_lshr_b32 s54, s54, s60']; ns[7] += ['s_and_b32 s54, s54, 0xff']
        ns[8] += ['s_cmp_gt_u32 s54, s61']; ns[9] += [f's_cbranch_scc0 {P}FL']*(1-opt.get('nofl', 0)) + [f'{P}FR:']
        ts = g('ts', 26)
        if tch: put(ns, ts, [f'buffer_load_dword v7, v7, {WS}, s59 offen sc1 ;!', f'buffer_load_dword v7, v7, {WS}, s62 offen sc1 ;!'])
        ns[ts+4] += [f'buffer_load_dword v7, off, {WS}, s57 sc1 ;!']
    qpost = lambda b, d: [f'v_mul_f32 v{b}, s50, v{b}', f'v_mul_f32 v{b+1}, s50, v{b+1}', f'v_fmac_f32 v{b}, s50, v{b+2}', f'v_fmac_f32 v{b+1}, s50, v{b+3}', cvt(d, b)]
    put(vs, 32, qpost(G0, G0), 2); put(vs, 35, qpost(G1, G0+1) + [f'ds_write_b64 v5, {V(G0,2)} offset:{L_Q + w*512}'], g('qp', 3))
    trq = [f'ds_read_b64_tr_b16 {V(G0+2*u,2)}, v6 offset:{L_Q + u*512}' for u in range(4)]
    ns[bq] = ['s_barrier'] + trq[:2] + ns[bq]; ns[bq+1] = trq[2:] + ns[bq+1]
    k0, k1 = last(('k', 0)), last(('k', 1))
    put(vs, k0+2, add2(G2) + [cvt(G2, G2)]); put(vs, k1+2, add2(G3) + [cvt(G2+1, G3), f'ds_write_b64 v5, {V(G2,2)} offset:{L_K + w*512}'], g('kp', 2))
    spost = lambda b: [f'v_add_f32_dpp v{b}, v{b+2}, v{b} quad_perm:[2,3,0,1] {DP}', f'v_add_f32_dpp v{b+1}, v{b+3}, v{b+1} quad_perm:[2,3,0,1] {DP}',
                       f'v_exp_f32_dpp v{b+2}, v{b} quad_perm:[0,1,0,1] {DP}', f'v_exp_f32_dpp v{b+3}, v{b+1} quad_perm:[0,1,0,1] {DP}']
    put(vs, sx+3, spost(G4) + [cvt(G4+2, G4+2), f'ds_write_b32 v0, v{G4+2} offset:{L_P + 4*w}'], 2)
    trk = [f'ds_read_b64_tr_b16 {V(G2+2*u,2)}, v6 offset:{L_K + u*512}' for u in range(4)]
    ns[bk] = ['s_barrier'] + trk[:2] + ns[bk]; ns[bk+1] = trk[2:] + ns[bk+1]
    put(vs, sx+6, [f'v_mov_b32 v{MA+1}, 0', f'v_mov_b32 v{MA+2}, 0'])
    ns[last(('v', 1, 4+w))+1].append(f'ds_read_b128 {V(MB,4)}, v0 offset:{L_ONE}')
    ns[bp] = ['s_barrier']*(bp != bk) + ns[bp] + [f'ds_read_b128 {V(N[0],4)}, v0 offset:{L_P}']
    put(vs, sm+g('mo', 2), spost(M8) + [cvt(MA, M8+2), cvt(MA+3, M8+2)], 2)
    ns[56].append('s_cmp_eq_u32 s36, 63')
    v0_, v1_ = last(('v', 0)), last(('v', 1))
    put(vs, v0_+g('vo', 2), add2(W0) + [cvt(G4+2, W0)], 2); put(vs, v1_+2, add2(W1) + [cvt(G4+3, W1)], 2)
    ns[61].append(f's_cbranch_scc1 {P}TAIL')
    vs[61] += zero(G2); vs[zm+2] += [f'v_rcp_f32 v{G3}, v{G3}', f'v_subrev_u32 v{G3+2}, s52, v{G3+2}']
    mul = [f'v_pk_mul_f32 {V(X0+2*i,2)}, {V(X0+2*i,2)}, {V(G3,2)} op_sel_hi:[1,0]' for i in range(4)]
    co = [cvt(M8+i, X0+2*i) for i in range(4)]
    if zm == 61: vs[62] += zero(W0)
    vs[63] += [f'v_cmp_le_u32 vcc, s53, v{G3+2}'] + zero(W0)*(zm == 60) + [f'{P}RJ:'] + mul[:2] + [f's_cbranch_vccnz {P}FB'] + co[:2] + mul[2:] + co[2:]
    vs[63] += [f'ds_write_b128 v4, {V(M8,4)} offset:{L_Q + (w>>1)*1024 + (w&1)*128}', 's_waitcnt lgkmcnt(1)']
    vs[64] += zero(W1); vs[65] += zero(G1); vs[66] += zero(G0)
    ro = [f'ds_read_b128 {V(r,4)}, v4 offset:{L_Q + (u>>1)*1024 + (u&1)*128}' for r, u in zip((MA, MB, G3), us)]
    ns[opt.get('bo', 66)] += ['s_barrier'] + ro
    put(ns, 68, [f'ds_read_b128 {V(X0+4*j,4)}, v3 offset:{L_Q + j*1024}' for j in range(2)])
    put(vs, 72, [cvt(G2, G2), cvt(G2+1, G2+2), tag(G2)]); vs[75] += [cvt(G2+2, W0), cvt(G2+3, W0+2)]
    (vs[75] if g('ast') is None else ns[76 + g('ast')*w]).append(f'buffer_store_dwordx4 {V(G2,4)}, v0, {WS}, s37 offen{sf}')
    put(vs, 77, add2(G0) + [cvt(M8+1, G0), tag(M8+1)]); vs[81] += [cvt(W1, W1), cvt(W1+1, W1+2), tag(W1)]
    vs[68].append(f'v_lshrrev_b32 v{M8}, 2, v0')
    hold = opt.get('hold', 0)
    sth = f'buffer_store_dword v{M8+1}, v{M8}, {WS}, s38 offen{sf}'; stb = f'buffer_store_dwordx4 {V(W1,4)}, v0, {WS}, s37 offen offset:1024{sf}'
    if not hold & 1: ns[81].append(sth)
    hs = [stb]*(hold>>1) + [sth]*(hold&1); XB = '\n'.join(['s_barrier ;!'] + hs)
    if w < 3: ns[76].append(f'ds_read_b32 v{G4}, v0 offset:{L_PUB + 4*w}')
    ns[77].append('s_add_u32 s36, s36, 1')
    nx3 = ['s_add_u32 s59, s36, 2', 's_min_u32 s59, s59, 63', 's_lshl_b32 s60, s59, 3', 's_lshr_b32 s61, s59, 2', 's_lshl_b32 s59, s59, 19', 's_add_u32 s59, s59, s58', 's_add_u32 s62, s59, 8192'] if w == 3 else []
    RB = [G0, G1, G2, G3]
    rld = [f'buffer_load_dwordx4 {V(RB[i],4)}, v7, {WS}, s{39+i} offen sc1 ;!' for i in range(4)]
    BUD = 's_sub_u32 s49, s49, 1\ns_cselect_b32 s49, 0, s49\ns_cselect_b32 s66, -1, -2\ns_cselect_b32 s67, 1, 0'
    pre = ldw(PA, lidx[0]) + ldw(PB, lidx[1]) + ldw(PC, lidx[2]) + ldw(X0, lidx[3])
    zs = zero(G0) + zero(G1) + zero(G2) + zero(G3) + zero(W0) + zero(W1)
    wra = f'ds_write_b128 v0, {V(MA,4)} offset:{w*2048}'
    poll = f'buffer_load_dwordx4 {V(MA,4)}, v0, {WS}, s43 offen sc1 ;!'
    ldb = [f'buffer_load_dwordx4 {V(MB,4)}, v0, {WS}, s63 offen sc1', f'buffer_load_dwordx4 {V(M8,4)}, v0, {WS}, s44 offen sc1']
    nop = lambda k: ['s_nop 3']*k
    lb = opt.get('lb')
    if lb is not None:
        ns[0].append('s_cmp_eq_u32 s36, 0'); ns[lb] += [f's_cbranch_scc1 {P}LB'] + ldb + [f'{P}LB:']
    fs = opt.get('fs'); F = N[3]
    fpoll = f'buffer_load_ushort v{F+3}, v{F+2}, {WS}, s58 offen sc1 ;!'
    if fs is not None and w == 1:
        ns[30] += ['s_add_u32 s59, s36, 1', 's_mul_i32 s60, s59, 0x10001']
        vs[67] += [f'v_lshrrev_b32 v{F+2}, 3, v0']; vs[64] += [f'v_mov_b32 v{F}, s60']; vs[65] += [f'v_and_b32 v{F+1}, 0x300, v0']
        ns[fs] += [f'buffer_store_dword v{F}, v{F+1}, {WS}, s57 offen{sf}']
        for i in opt.get('fp', (69, 72, 75, 78)): ns[i] += [fpoll]
    spec = opt.get('spec', 0); ec = opt.get('ec')
    if ec is not None:
        T = G4+1
        ns[ec] += [f's_cbranch_scc1 {P}EW', 's_waitcnt vmcnt(0)', f'{P}EW:']
        ns[bw].insert(0, 's_waitcnt vmcnt(%d)' % sum(x.startswith('buffer_') for i in range(ec+2, bw) for x in ns[i] + vs[i]))
        c_ = [f'v_max3_u32 v{T}, v{MB}, v{MB+1}, v{MB+2} ;!', f'v_max3_u32 v{T}, v{MB+3}, v{M8}, v{T} ;!', f'v_max3_u32 v{T}, v{M8+1}, v{M8+2}, v{T} ;!', f'v_max_u32 v{T}, v{M8+3}, v{T} ;!', f'v_cmp_lt_u32 vcc, s66, v{T}']
        vs[ec] += c_[:2]; vs[ec+1] += c_[2:] + [f's_cbranch_vccnz {P}EC', f'{P}ER:']
    st = opt.get('st', [])
    def stamp(p):
        if p in st: a(f's_memtime s[{76+2*st.index(p)}:{77+2*st.index(p)}] ;!')
    if bp != bk:
        fl = [x for i in range(bk) for x in ns[i] + vs[i]]; kw = max(i for i, x in enumerate(fl) if x.startswith('ds_write_b64'))
        ns[bk][0:1] = ['s_waitcnt lgkmcnt(%d)' % sum(x.startswith('ds_') for x in fl[kw+1:]), 's_barrier ;!']
    a('\n'.join(pre + zs + nx3 + [f'ds_read_b32 v{G4}, v0 offset:{L_PUB + 4*min(w, 2)}', 's_mov_b32 s66, -1']))
    if opt.get('prof'): a('s_memtime s[70:71]\ns_waitcnt lgkmcnt(0)\ns_mov_b32 s72, s49')
    if opt.get('drop') is not None: a('s_mov_b32 s49, 0\ns_mov_b32 s53, -1')
    if opt.get('prof'):
        for k in range(6): a(f's_mov_b32 s{90+k}, 0\ns_mov_b32 s{76+2*k}, s70')
    T = G4+1
    chk = f'v_max3_u32 v{T}, v{MA}, v{MA+1}, v{MA+2}\nv_max_u32 v{T}, v{MA+3}, v{T}\n{wra}\nv_cmp_lt_u32 vcc, s66, v{T}'
    a('s_waitcnt lgkmcnt(0)')
    if w < 3 and not mode and opt.get('rr', 0):
        a(f'v_mov_b64 {V(G4+2,2)}, -1')
        for sl in range(4): a(f's_mov_b32 s54, {WS_RING + sl*RSLOT}\nbuffer_store_dword{x2} {V(G4+2, 2 if w == 2 else 1)}, v{G4}, {WS}, s54 offen')
    def hclk(R=G4+1):
        if opt.get('hst') == 2 and w == 3:
            L = a.lab('HC'); k = opt.get('hk', 0)
            a(f's_memtime s[90:91]\ns_load_dwordx2 s[98:99], s[0:1], 128\ns_lshl_b32 s94, s3, 8\ns_or_b32 s94, s94, s36\ns_lshr_b32 s95, s94, {k}\ns_and_b32 s94, s94, {(1<<k)-1}\ns_lshl_b32 s94, s94, 8\ns_or_b32 s94, s94, s95\ns_cmp_lt_u32 s94, 16\ns_waitcnt lgkmcnt(0)\ns_cbranch_scc0 {L}\ns_lshl_b32 s94, s94, 2\ns_sub_u32 s90, s90, s68\nv_mov_b32 v{R+1}, s94\nv_mov_b32 v{R}, s90\nglobal_store_dword v{R+1}, v{R}, s[98:99] sc1\n{L}:')
    hclk()
    if opt.get('hst') == 3 and w == opt.get('hw', 0):
        R = G4+1
        a(f's_memtime s[90:91]\ns_load_dwordx2 s[98:99], s[0:1], 128\ns_lshl_b32 s94, s3, 1\ns_waitcnt lgkmcnt(0)\ns_sub_u32 s90, s90, s68\nv_mov_b32 v{R+1}, s94\nv_mov_b32 v{R}, s90\nglobal_store_short v{R+1}, v{R}, s[98:99] sc1')
    a(f'''s_branch {P}STEP
@loop {P}
{P}TOP:
{poll}
{BUD}
{P}TW:
@vmclear
s_waitcnt vmcnt({opt.get('depth', 1)}) lgkmcnt(0)
{chk}
s_cbranch_vccnz {P}TOP''')
    a('\n'.join(['s_cmp_eq_u32 s36, s36'] if ec is not None else ldb if lb is None or opt.get('lb2') else []) + f'\n{P}STEP:')
    stamp('top')
    for i, e in enumerate(l):
        if isinstance(e, str): a(DENSE[e])
        else:
            kind, idx = loc[e[0]]
            a(f'v_smfmac_f32_16x16x64_bf16 {V(e[2],4)}, {V(e[1],4)}, {X(idx if kind == "R" else e[3], 8)}, v2')
        if i != 1: stamp(i)
        a('\n'.join(x for x in ns[i] + vs[i] if not any(x.startswith(p) for p in opt.get('drop', []))))
        if i == 1: stamp(i)
    sel = f'ds_read_b128 {V(M8,4)}, v0 offset:{L_SEL}'
    al = opt.get('al', 'ack0'); d1 = opt.get('d1', (0, 0, 0)); xb = opt.get('xb', 'early')
    a(f'{cvt(W1+2, G1)}\n{cvt(W1+3, G1+2)}')
    if w == 1 and al == 'pre': a('\n'.join(nop(d1[1]) + rld))
    else: a('\n'.join(nop(opt.get('bd', 0))))
    a(('' if hold & 2 else stb) + f'\n{P}HOP:')
    stamp('hop')
    def reduce(beh, mid=()):
        bo = lambda d, x, y: f'v_bitop3_b32 v{d}, v{x}, v{y}, s65 bitop3:0x7e'
        T = G0; T2 = G1
        for i in range(4):
            a(f's_waitcnt vmcnt({3-i+beh + (len(mid) if i else 0)})')
            if i == 0:
                stamp('ld')
                if w == 1 and xb == 'bar': a(f's_barrier ;!\n{P}P1X:')
            o2 = (RB[i], M8) if w < 2 else (M8, RB[i])
            a(f'v_mfma_f32_16x16x32_bf16 {V(MB,4)}, {V(o2[0],4)}, {V(o2[1],4)}, ' + ('0' if i == 0 else V(MB,4)))
            if i == 0: a('\n'.join(mid) + '\n@vmclear')
            if i == 1: a(bo(T, RB[0], RB[1]))
            elif i == 3: a(bo(T2, RB[2], RB[3]))
        if w == 2 and mode:
            for i in range(4):
                for j in range(1, 4): a(f'v_bitop3_b32 v{T}, v{T}, v{RB[i]+j}, s65 bitop3:0xf6')
        a(f'v_bitop3_b32 v{T}, v{T}, v{T2}, 1 bitop3:0xa8\nv_cmp_lt_u32 vcc, s67, v{T}\ns_cbranch_vccnz {P}R1')
        if w < 2: a(f'v_permlane32_swap_b32 v{MB}, v{MB+2}\nv_permlane32_swap_b32 v{MB+1}, v{MB+3}\n' + '\n'.join(add2(MB) + [cvt(MB, MB)]))
        else: a('\n'.join([f'v_add_f32_dpp v{MB+i}, v{MB+i}, v{MB+i} row_ror:8 {DP}' for i in range(4)] + [cvt(MB, MB), cvt(MB+1, MB+2)]))
        a(f'buffer_store_dword{x2} {V(MB, 2 if w == 2 else 1)}, v{G4}, {WS}, s45 offen{sf}')
        stamp('p1')
    def endst(to):
        if spec: to = a.lab(P + 'SP')
        if st: a('s_memtime s[74:75] ;!')
        if st and 'tl' in opt:
            n_ = len(st)
            a(f's_waitcnt lgkmcnt(0)\ns_sub_u32 s88, s36, {opt["tl"]}\ns_cmp_lt_u32 s88, {20//n_}\ns_cbranch_scc0 {to}\ns_mul_i32 m0, s88, {n_}\ns_nop 0')
            for k in range(n_): a(f's_movreld_b32 s{16+k}, s{76+2*k}')
        elif st:
            a('s_waitcnt lgkmcnt(0)')
            for k in range(len(st)): a(f's_sub_u32 s88, s74, s{76+2*k}\ns_add_u32 s{90+k}, s{90+k}, s88\ns_mov_b32 s{76+2*k}, s74')
        if not spec: a(f's_branch {to}'); return
        a(f'{to}:\n@reset\n' + '\n'.join([poll]*(spec-2) + nop(opt.get('d3', 0)) + [x + ' ;!' for x in ldb]) + f'\n{BUD}')
        for i in range(spec): a(f'@vmclear\ns_waitcnt vmcnt({spec+1-i}) lgkmcnt(0)\n{chk}\ns_cbranch_vccz {P}STEP')
        a(f's_branch {P}TOP')
    xf = opt.get('xf', 0)
    pf = opt.get('pf', (4, 0, 0, 0))
    def plain(k=0):
        a('s_barrier ;!'); stamp('y')
        sp_ = nop(opt.get('sp', 0)); r = pre[k:]; h = len(r)//2; z0 = opt.get('z0', 8)
        a('\n'.join(nop(opt.get('d2', 0)) + zs[:z0] + [poll] + r[:h] + zs[z0:6+z0//2] + sp_ + ([poll] if opt.get('depth', 1) > 1 else []) + r[h:] + zs[6+z0//2:] + sp_))
    if w == 1:
        if fs is not None:
            a(f'{P}F1:\nv_cmp_ne_u32 vcc, s59, v{F+3} ;!\ns_cbranch_vccz {P}F2\n{fpoll}\ns_sub_u32 s49, s49, 1\ns_cselect_b32 s49, 0, s49\ns_waitcnt vmcnt(8)\ns_cbranch_scc0 {P}F1\n{P}F2:')
            stamp('f')
        if al[:3] == 'ack': a('s_waitcnt vmcnt(%s)' % (al[3:] or 2))
        if al != 'pre': a('\n'.join(nop(d1[1]) + pre[:pf[1]] + rld))
        if xf: a(XB)
        a(f'{sel}\n{BUD}\n@vmclear\n{P}P1:'); reduce(1 if al == 'pre' else len(hs)); plain(pf[1]); a(f'@end {P}'); endst(f'{P}TOP')
    elif w == 3:
        a('\n'.join(nx3))
        hclk(MB)
        if opt.get('clk'): a(f's_memtime s[90:91]\ns_memrealtime s[92:93]\ns_lshl_b32 s94, s3, 7\ns_add_u32 s94, s94, s36\ns_lshl_b32 s94, s94, 3\ns_add_u32 s94, s94, 0x220000\ns_waitcnt lgkmcnt(0)\nv_mov_b32 v{G0}, s90\nv_mov_b32 v{G0+1}, s92\nbuffer_store_dwordx2 {V(G0,2)}, off, {WS}, s94')
        if xb == 'bar' or xf: a(XB)
        plain(); a(f'@end {P}'); endst(f'{P}TOP')
    elif xb == 'early':
        if w == 2: a(f's_cmp_lg_u32 s55, 0\ns_cbranch_scc1 {P}NQ')
        if hold: a(XB)
        a(f'{sel}\n{BUD}\ns_waitcnt vmcnt(%d)' % (63 if xf == 2 else 0 if w == 0 else opt.get('ah', 0)))
        if xf and not hold: a(XB)
        a('\n'.join(nop(d1[w]) + pre[:pf[w]] + rld + ['@vmclear', f'{P}P1:'])); reduce(0); plain(pf[w]); a(f'@end {P}'); endst(f'{P}TOP')
    else:
        if w == 2: a(f's_cmp_lg_u32 s55, 0\ns_cbranch_scc1 {P}NQ')
        if hold: a(XB)
        a('\n'.join([sel] + pre[pf[w]:] + [BUD]))
        if xb == 'ack': a('s_waitcnt vmcnt(%d)' % (0 if w == 0 else opt.get('ah', 0)))
        if (xb == 'bar' or xf) and not hold: a('s_barrier ;!')
        a('\n'.join(nop(d1[w]) + pre[:pf[w]] + rld + ['s_barrier ;!'])); stamp('y')
        a('\n'.join(nop(opt.get('d2', 0)) + [poll, '@vmclear', f'{P}P1:'])); reduce(1, [poll] if opt.get('depth', 1) > 1 else [])
        a('\n'.join(zs) + f'\n@end {P}'); endst(f'{P}TW')
    T = N[3]
    a(f'''@reset
{P}PB:
{ldb[0]} ;!
{ldb[1]} ;!
{BUD}
@vmclear
s_waitcnt vmcnt({opt.get('pbd', 0)})
''' + '\n'.join(chb) + f'''
{wrb}
s_cbranch_vccnz {P}PB
s_waitcnt lgkmcnt(0)
s_branch {P}B''')
    if ec is not None: a(f'@reset\n{P}EC:\n{ldb[0]} ;!\n{ldb[1]} ;!\ns_branch {P}ER')
    if w < 3: a(f'@reset\n{P}R1:\n' + '\n'.join(rld) + f'\n{BUD}\ns_waitcnt vmcnt(0)\ns_branch {P}P1' + ('X' if w == 1 and xb == 'bar' else ''))
    if w == 2:
        a(f'@reset\n{P}NQ:')
        if xb == 'bar' or xf: a(XB)
        plain(); endst(f'{P}TOP')
    a(f'''@reset
{P}TAIL:
s_waitcnt lgkmcnt(0)
ds_read_b64_tr_b16 {V(G4,2)}, v6 offset:{L_K + w*512}
buffer_store_dwordx4 {V(G4,4)}, v0, {WS}, s48 offen sc1''')
    if opt.get('hst') == 1: a(f's_mov_b32 s81, {mode+1}'); hstamps(a, 0, [(0,68),(13,82),(2,70),(3,78),(11,81)], w)
    elif opt.get('prof'):
        a(f'''s_memtime s[74:75]
s_waitcnt lgkmcnt(0)
s_sub_u32 s74, s74, s70
s_sub_u32 s70, s70, s68
s_sub_u32 s72, s72, s49
v_mov_b32 v8, s74
v_mov_b32 v9, s70
v_mov_b32 v10, s72
v_mov_b32 v11, {mode}
s_lshl_b32 s54, s3, 6
s_add_u32 s54, s54, {0x200000 + w*16}
buffer_store_dwordx4 v[8:11], off, {WS}, s54
s_add_u32 s54, s54, 0x1000
v_mov_b32 v12, s90
v_mov_b32 v13, s91
v_mov_b32 v14, s92
v_mov_b32 v15, s93
buffer_store_dwordx4 v[12:15], off, {WS}, s54''')
    if 'tl' in opt:
        a(f's_lshl_b32 s54, s3, 9\ns_add_u32 s54, s54, {0x210000 + w*128}')
        a(f'''s_memtime s[76:77]
s_memrealtime s[78:79]
s_mov_b32 s90, 0
s_mov_b32 s91, 0
s_mov_b32 s92, 0
s_waitcnt lgkmcnt(0)
{P}CAL:
s_memtime s[80:81]
s_memrealtime s[82:83]
s_waitcnt lgkmcnt(0)
s_sub_u32 s80, s80, s76
s_sub_u32 s82, s82, s78
s_add_u32 s90, s90, s80
s_add_u32 s91, s91, s82
s_add_u32 s92, s92, 1
s_cmp_lt_u32 s92, 256
s_cbranch_scc1 {P}CAL
v_mov_b32 v40, s76
v_mov_b32 v41, s78
v_mov_b32 v42, s90
v_mov_b32 v43, s91''')
        for k in range(20): a(f'v_mov_b32 v{20+k}, s{16+k}')
        for k in range(6): a(f'buffer_store_dwordx4 {V(20+4*k,4)}, off, {WS}, s54 offset:{16*k}')
    a('s_waitcnt vmcnt(0)\ns_endpgm')
    a(f'''@reset
{P}FB:
s_waitcnt vmcnt(0) lgkmcnt(0)
ds_write_b64 v6, {V(G4,2)} offset:{L_Q + w*512}
s_barrier''')
    for u in range(4): a(f'ds_read_b64 {V(X0+2*u,2)}, v6 offset:{L_Q + u*512}')
    t = G3
    a(f'''s_waitcnt lgkmcnt(0)
s_barrier
v_max3_f32 v{t}, v{X0}, v{X0+1}, v{X0+2}
v_max3_f32 v{t}, v{t}, v{X0+3}, v{X0+4}
v_max3_f32 v{t}, v{t}, v{X0+5}, v{X0+6}
v_max3_f32 v{t}, v{t}, v{X0+7}, v{M8}
v_max_f32 v{t}, v{t}, v{M8+1}
v_mov_b32 v{t+1}, v{t}
v_permlane16_swap_b32 v{t}, v{t+1}
v_max_f32 v{t}, v{t}, v{t+1}
v_mov_b32 v{t+1}, v{t}
v_permlane32_swap_b32 v{t}, v{t+1}
v_max_f32 v{t}, v{t}, v{t+1}''')
    rs = [X0+i for i in range(8)] + [M8, M8+1]
    for r in rs: a(f'v_sub_f32 v{r}, v{r}, v{t}')
    for r in rs: a(f'v_exp_f32_dpp v{r}, v{r} quad_perm:[0,1,0,1] {DP}')
    for u in range(4): a(cvt(N[0]+u, X0+2*u))
    a(cvt(MA, M8)); a(cvt(MA+3, M8))
    for e in ('zx', 'px0', 'px1', 'zm', 'pm0', 'pm1'): a(DENSE[e])
    a(f'v_rcp_f32 v{G3}, v{G3}\ns_mov_b64 vcc, 0\ns_nop 7\ns_branch {P}RJ')
    if w == 3:
        a(f'''@reset
{P}FL:
buffer_load_dword v7, off, {WS}, s57 sc1
s_cmp_lt_u32 s49, 1
s_waitcnt vmcnt(0)
s_cbranch_scc1 {P}FR
s_sub_u32 s49, s49, 1
v_readfirstlane_b32 s54, v7
s_lshr_b32 s54, s54, s60
s_and_b32 s54, s54, 0xff
s_cmp_gt_u32 s54, s61
s_cbranch_scc1 {P}FR
s_branch {P}FL''')

def gen(opt):
    out = []
    a = Asm(); a('REC:')
    if opt.get('hx'): a('s_xor_b32 s3, s3, %d' % opt['hx'])
    if opt.get('prof'): a('s_memtime s[68:69]')
    srds(a, [('ws',8),('dbg',12),('wq',SWQ),('wk',SWK),('wv',SWV),('wo',SWO),('mem0',SM0)])
    for w in range(1, 4): a(f's_cmp_eq_u32 s4, {w}\ns_cbranch_scc1 RECW{w}')
    out.append(a.text())
    for w in range(4):
        l, loc, n, us = plan(w, opt)
        a = Asm(); a.uid = 100*w; a(f'RECW{w}:'); init(a, w, loc, opt)
        if opt.get('mode') is None: a(f's_cmp_eq_u32 s64, 32\ns_cbranch_scc0 RECM{w}')
        elif opt['mode'] == 1: a(f's_branch RECM{w}')
        step(a, w, 0, l, loc, n, us, opt)
        a(f'@reset\nRECM{w}:'); step(a, w, 1, l, loc, n, us, opt)
        out.append(a.text())
        if opt.get('sim') == w:
            for t, x in a.sim(f'R{w}0TOP', f'R{w}0TAIL'): print(t, x)
    return '\n'.join(out)
```

```python
from common import *
import struct
N = [8+4*i for i in range(6)]; MA, MB, M8, X0, X1, W0, W1 = 32, 36, 40, 44, 48, 52, 56
G0, G1, G2, G3, G4 = 60, 64, 68, 72, 76
PA, PB, PC = N[0], N[2], N[4]
L_Q, L_K, L_SEL, L_PUB, L_P, L_ONE, L_W = 8192, 10240, 12288, 13312, 14336, 15360, 16384
WREG = 36864
WS, DBG, SWQ, SWK, SWV, SWO, SM0 = 's[8:11]', 's[12:15]', 16, 20, 24, 28, 32
def f2u(x): return struct.unpack('<I', struct.pack('<f', x))[0]

def plan(w, opt):
    a_, b_ = w, 4+w; n = [c for c in range(8) if c not in (a_, b_)]
    us = [u for u in range(4) if u != w]
    Q = lambda T, c, A, buf=None: (('q', T, c), A, (G0, G1)[T], buf)
    K = lambda T, c, A, buf=None: (('k', T, c), A, (G2, G3)[T], buf)
    Vv = lambda T, c, A, buf=None: (('v', T, c), A, (W0, W1)[T], buf)
    acc = (G2, W0, W1, G1)
    O = lambda u, t, A, buf=None: (('o', u, t), A, acc[t], buf)
    s = {}
    sx, sm = opt.get('sx', 45), opt.get('sm', 55)
    st = {0: PA, 1: PB, 2: PC, 3: X0, 9: PC, 16: PC, 23: PC, 64: PC, 77: PC, 79: PA, 81: PB}
    for u in opt.get('xs', (11, 19, 27, 34, 41, 48, 54)): st[u] = X0
    l = []
    for c, A in ((a_, MA), (n[0], N[0]), (n[1], N[1]), (n[2], N[2])): l += [Q(0,c,A), Q(1,c,A), K(0,c,A), K(1,c,A), Vv(0,c,A), Vv(1,c,A)]
    B5 = [(b_, MB), (8, M8), (n[3], N[3]), (n[4], N[4]), (n[5], N[5])]
    l += [Q(T, *B5[i]) for T, i in ((0,0),(1,0),(0,1),(1,1),(0,2),(0,3),(0,4),(1,2),(1,3),(1,4))]
    l += [K(T, *B5[i]) for T in range(2) for i in range(5)]
    l += [Vv(T, *B5[i]) for T, i in ((0,0),(1,0),(0,1),(1,1),(0,2),(1,2),(0,3),(0,4),(1,3),(1,4))]
    l[sx:sx] = ['sx0', 'sx1']; l[sm:sm] = ['sm0', 'sm1']
    l += ['zx', 'px0', 'zm', 'px1', 'pm0', 'pm1'] if opt.get('zm', 60) == 60 else ['zx', 'px0', 'px1', 'zm', 'pm0', 'pm1']
    l += [O(w,t,M8) for t in range(4)]
    oa = (MA, MB, G3)
    for t in range(4):
        if t == 2: l += [(('h',0,0), X0, G0, None), (('h',1,0), X1, G0, None)]
        for k in range(3): l.append(O(us[k], t, oa[k]))
    for i, b in st.items(): l[i] = l[i][:3] + (b,)
    loc = {}; nl = nr = 0
    for e in l:
        if isinstance(e, str): continue
        if e[3] is not None: loc[e[0]] = ('L', nl); nl += 1
        else: loc[e[0]] = ('R', 80+8*nr); nr += 1
    assert nl == 18 and nr == 54, (nl, nr)
    return l, loc, n, us

def init(a, w, loc, opt):
    lane(a, 8)
    expr(a, 4, 8, [(5,1,64)], (w&1)*128, 9); expr(a, 1, 8, [(0,5,16)], 0, 9); a('v_xor_b32 v4, v4, v1')
    expr(a, 1, 8, [(5,1,1152)], (32*(w&1) + 4*(w>>1))*1152, 9); a('v_add_u32 v4, v4, v1')
    expr(a, 7, 8, [(4,1,32)], (w&1)*64, 9); expr(a, 1, 8, [(0,3,16)], 0, 9); a('v_xor_b32 v7, v7, v1')
    expr(a, 1, 8, [(3,1,1152),(4,1,8*1152),(5,1,64*1152)], (32*(w&1) + 4*(w>>1))*1152, 9); a('v_add_u32 v7, v7, v1')
    a('s_lshl_b32 s62, s3, 8\ns_mul_i32 s63, s3, %d' % (128*1152))
    groups = [('h',)] + [('o', u, tp) for u in range(4) for tp in range(2)] + [(x[0], int(c)) for x in opt.get('go', 'k0123 v0123 k45678 q01238 v45678 q4567').split() for c in x[1:]]
    if opt.get('il'): o_ = groups[3:9]; r_ = groups[9:]; groups = groups[:3] + [x for i in range(6) for x in r_[3*i:3*i+3] + [o_[i]]] + r_[18:]
    q = []
    def dma(gi):
        g = groups[gi]
        for p in range(4):
            a(f's_mov_b32 m0, {L_W + WREG*w + (5 + gi%4)*4096 + p*1024}')
            ro = 16*(p>>1) + 2*(p&1)
            if g[0] in 'qkv': off, sb, vr, srd = (64*g[1] + ro)*8192, 62, 0, {'q':SWQ,'k':SWK,'v':SWV}[g[0]]
            elif g[0] == 'o': off, sb, vr, srd = (64*(g[1]>>1) + 8*(g[1]&1) + ro)*1152 + 512*g[2], 63, 4, SWO
            else: off, sb, vr, srd = ro*1152 + 1024, 63, 7, SWO
            a(f's_add_u32 s54, s{sb}, {off}\nbuffer_load_dwordx4 v{vr}, s[{srd}:{srd+3}], s54 offen{opt.get("wf", "")} lds'); q.append(gi)
    for gi in range(3): dma(gi)
    a('s_mul_i32 s54, s3, %d' % PHEAD)
    a(f's_add_u32 s37, s54, {WS_PART + w*2048}\ns_add_u32 s38, s54, {WS_PART + 8192 + 256*w}')
    for n in range(4): a(f's_mov_b32 s{39+n}, {WS_PART + n*8*PHEAD}')
    a(f's_mov_b32 s45, {WS_RING}\ns_mov_b32 s46, {WS_RING+0x8000}\ns_lshl_b32 s54, s3, 14\ns_add_u32 s47, s54, {WS_KV + w*4096}\ns_add_u32 s58, s54, {WS_KV}')
    a(f's_lshl_b32 s54, s3, 12\ns_add_u32 s48, s54, {WS_KM + w*1024}\ns_mov_b32 s49, 400000\ns_mov_b32 s36, 0')
    sc = f2u(128**-0.5 * 1.4426950408889634)
    a(f's_mov_b32 s50, {sc}\ns_mov_b32 s51, {sc}\ns_mov_b32 s52, {(127-48)<<23}\ns_mov_b32 s53, {112<<23}\ns_lshl_b32 s57, s3, 2')
    if w < 2: a(f's_lshr_b32 s59, s3, 3\ns_lshl_b32 s59, s59, 11\ns_add_u32 s59, s59, {1024 if w == 0 else 0}\ns_and_b32 s60, s3, 7')
    elif w == 2: a('s_mov_b32 s59, 8192\ns_lshr_b32 s60, s3, 2\ns_and_b32 s55, s3, 3')
    if w < 3:
        red_addr(a, w, 7, 8, 9)
        a('s_and_b32 s54, s60, 1\ns_lshl_b32 s54, s54, 8\ns_lshr_b32 s61, s60, 1\ns_lshl_b32 s61, s61, 6\ns_add_u32 s54, s54, s61\ns_lshr_b32 s61, s3, 3\ns_lshl_b32 s61, s61, 10\ns_add_u32 s54, s54, s61\ns_add_u32 s54, s54, %d' % (4096 if w == 0 else 0))
        expr(a, 10, 8, [(1,1,512),(2,1,32),(0,1,16),(4,1,8),(5,1,4),(3,1,1<<30)], 's54', 9)
        if w == 2:
            a('s_lshr_b32 s54, s60, 2\ns_lshl_b32 s54, s54, 5\ns_bfe_u32 s61, s60, 0x10001\ns_lshl_b32 s61, s61, 9\ns_add_u32 s54, s54, s61\ns_and_b32 s61, s60, 1\ns_lshl_b32 s61, s61, 7\ns_add_u32 s54, s54, s61\ns_add_u32 s54, s54, 8192')
            expr(a, 10, 8, [(0,1,8),(1,1,256),(2,1,64),(4,1,16),(3,1,1<<30),(5,1,1<<28)], 's54', 9)
            a('v_xor_b32 v10, 0x10000000, v10')
            a('s_lshl_b32 s54, s55, 29\nv_or_b32 v10, s54, v10')
        a('v_mov_b64 v[12:13], -1\nv_mov_b64 v[14:15], -1')
        for sl in range(1):
            for n in range(4):
                a(f's_mov_b32 s54, {WS_PART + sl*PSLOT + n*8*PHEAD}\nbuffer_store_dwordx4 v[12:15], v7, {WS}, s54 offen sc1')
        for sl in range(4): a(f's_mov_b32 s54, {WS_RING + sl*RSLOT}\nbuffer_store_dword{"x2 v[12:13]" if w == 2 else " v12"}, v10, {WS}, s54 offen sc1')
        a(f'v_lshlrev_b32 v11, 4, v8\nds_write_b32 v11, v10 offset:{L_PUB + 4*w}')
        if w == 1: a(f's_add_u32 s57, s57, {WS_FLAG + 0x2000}\ns_and_b32 s58, s3, 3\ns_lshl_b32 s58, s58, 8\ns_add_u32 s58, s58, {WS_FLAG + 0x2000}\nv_and_b32 v11, 0x300, v11\nbuffer_store_dword v12, v11, {WS}, s57 offen sc1')
    else:
        expr(a, 16, 8, [(0,2,2),(2,1,1)], 0, 9)
        a('v_and_b32 v9, 15, v8\nv_cmp_lt_u32 vcc, 7, v9\nv_cndmask_b32 v9, v9, v16, vcc\nv_mov_b32 v10, 0x3f80\nv_mov_b32 v11, 0x3f800000')
        for r in range(4):
            a(f'v_mov_b32 v{12+r}, 0\nv_cmp_eq_u32 vcc, {2*r}, v9\nv_cndmask_b32 v{12+r}, v{12+r}, v10, vcc\nv_cmp_eq_u32 vcc, {2*r+1}, v9\nv_cndmask_b32 v{12+r}, v{12+r}, v11, vcc')
        a(f'v_lshlrev_b32 v11, 4, v8\nds_write_b128 v11, v[12:15] offset:{L_SEL}')
        for r in range(4): a(f'v_mov_b32 v{16+r}, 0x3f803f80')
        a(f'ds_write_b128 v11, v[16:19] offset:{L_ONE}')
    expr(a, 0, 8, [(4,2,64)], (w&1)*16, 9); expr(a, 1, 8, [(0,4,16)], 0, 9); a('v_xor_b32 v0, v0, v1')
    expr(a, 1, 8, [(4,1,8192),(5,1,32*8192)], 4*w*8192, 9); a('v_add_u32 v0, v0, v1')
    base = [(4,2,WREG),(0,1,8)]
    expr(a, 2, 8, [(1,1,32)], (8*(w>>1) + (w&1))*16, 9); expr(a, 1, 8, [(4,1,16),(2,2,64)], 0, 9); a('v_xor_b32 v2, v2, v1')
    expr(a, 1, 8, base + [(2,2,256)], L_W, 9); a('v_add_u32 v2, v2, v1')
    expr(a, 3, 8, [(1,1,16)], 2*w*16, 9); expr(a, 1, 8, [(3,1,32),(4,1,64)], 0, 9); a('v_xor_b32 v3, v3, v1')
    expr(a, 1, 8, base + [(2,2,128)], L_W, 9); a('v_add_u32 v3, v3, v1')
    expr(a, 5, 8, [(1,1,16),(3,1,32)], 8*w*16, 9); expr(a, 1, 8, [(2,1,64),(4,1,128)], 0, 9); a('v_xor_b32 v5, v5, v1')
    expr(a, 1, 8, base + [(2,1,512)], L_W, 9); a('v_add_u32 v5, v5, v1\nv_xor_b32 v6, 64, v5')
    expr(a, 1, 8, [(0,6,16)], L_W + WREG*w, 9)
    g1 = opt.get('g1', 28)
    ldd = f'buffer_load_dwordx4 v[8:11], off, {DBG}, s54 sc1 ;!\nbuffer_load_dwordx4 v[12:15], off, {DBG}, s54 offset:16 sc1 ;!'
    tch = f'buffer_load_dword v4, {WS}, s54 offen sc1 lds ;!'
    def flg(L):
        a('v_readfirstlane_b32 s54, v7')
        for b in range(4): a(f's_and_b32 s59, s54, {hex(0xff << 8*b)}\ns_cbranch_scc0 {L}')
        a(f's_mov_b32 s60, s58')
        if L[:3] == 'RFN': a(f'{L}:')
        for o in (0, 0x2000, 0x80000, 0x82000): a(f's_add_u32 s54, s60, {o}\n{tch}')
    q.extend([-1]*(8, 9, 8, 0)[w])
    for gi, g in enumerate(groups):
        a(f's_waitcnt vmcnt({q[::-1].index(gi)}) lgkmcnt(0)\ns_barrier')
        if gi == 3 and w == 0:
            a(f's_getreg_b32 s64, hwreg(HW_REG_XCC_ID,0,3)\ns_lshl_b32 s54, s64, 2\ns_add_u32 s54, s54, 128\nv_mov_b32 v8, 1\ns_mov_b64 exec, 1\nbuffer_atomic_add v8, off, {DBG}, s54 sc1\ns_mov_b64 exec, -1'); q.append(-1)
        if gi+3 < len(groups): dma(gi+3)
        if gi == 1: a('v_xor_b32 v3, 64, v2')
        if gi == 27:
            lane(a, 8)
            a('v_lshlrev_b32 v4, 7, v8'); expr(a, 5, 8, [(2,2,2304),(0,1,1152),(1,1,64),(4,2,16)], 0, 9)
            for d, ch in ((w*2048, w), (w*2048+1024, 4+w), (L_Q, 8)): a(f's_mov_b32 m0, {d}\ns_mov_b32 s54, {ch*128}\nbuffer_load_dwordx4 v5, s[{SM0}:{SM0+3}], s54 offen lds'); q.append(-1)
        if gi == g1:
            a(f's_mov_b32 s54, 128\n{ldd}'); q.extend([-1, -1])
            if w == 3: a(f'buffer_load_dword v5, off, {DBG}, s57 sc1 ;!'); q.append(-1)
        if gi == g1+4:
            L = a.lab('RSB'); E = a.lab('RSE'); C = a.lab('RSC')
            a(f'''s_branch {C}
{L}:
s_cmp_lt_u32 s49, 1
s_cbranch_scc1 {E}
s_sub_u32 s49, s49, 1
s_mov_b32 s54, 128
{ldd}
s_waitcnt vmcnt(0)
{C}:
@vmclear
v_add3_u32 v7, v8, v9, v10
v_add3_u32 v7, v7, v11, v12
v_add3_u32 v7, v7, v13, v14
v_add_u32 v7, v7, v15
v_cmp_gt_u32 vcc, 32, v7
s_cbranch_vccnz {L}
{E}:
v_max3_u32 v8, v8, v9, v10
v_max3_u32 v8, v8, v11, v12
v_max3_u32 v8, v8, v13, v14
v_max_u32 v8, v8, v15
v_readfirstlane_b32 s64, v8''')
            a(f's_mov_b32 m0, {L_K + w*512}')
            if opt.get('rt', 1) and w == 2: a(f'v_and_b32 v4, 0x780, v4\ns_lshl_b32 s54, s3, 11\ns_add_u32 s54, s54, {WS_RING}\n{tch}'); q.append(-1)
            if opt.get('pt', 0) and w < 2: a(f's_sub_u32 s54, s37, {1024*w}\n{tch}'); q.append(-1)
            if w == 3: a(f'v_mov_b32 v7, v5\ns_mov_b32 s60, {WS_RING}'); flg(a.lab('RFN')); q.extend([-1]*4)
        for T in range(2):
            if g[0] in 'qkv': key, ad, ex = (g[0], T, g[1]), 2+T, 0
            elif g[0] == 'o': key, ad, ex = ('o', g[1], 2*g[2]+T), 5+T, 0
            else: key, ad, ex = ('h', T, 0), 3, 512*T
            kind, idx = loc[key]
            dst = idx if kind == 'R' else (8 if idx < 10 else 16 + 8*(idx-10))
            for p in range(4): a(f'ds_read_b64_tr_b16 {X(dst+2*p,2)}, v{ad} offset:{(5+gi%4)*4096 + p*1024 + ex}')
            if kind == 'L' and idx < 10:
                assert gi < 27
                a(f'ds_write_b128 v1, v[8:11] offset:{idx*2048}\nds_write_b128 v1, v[12:15] offset:{idx*2048+1024}')
    a('s_waitcnt lgkmcnt(0)\ns_barrier')
    for idx in range(10, 18):
        r = 16 + 8*(idx-10)
        a(f'ds_write_b128 v1, {V(r,4)} offset:{idx*2048}\nds_write_b128 v1, {V(r+4,4)} offset:{idx*2048+1024}')
    if w == 3:
        L = a.lab('RF'); E = a.lab('RFE')
        a(f'''s_cmp_eq_u32 s60, s58
s_cbranch_scc1 {E}
{L}:
s_cmp_lt_u32 s49, 1
s_cbranch_scc1 {E}
s_sub_u32 s49, s49, 1
buffer_load_dword v7, off, {DBG}, s57 sc1
s_waitcnt vmcnt(0)''')
        flg(L)
        a(f'{E}:\ns_lshl_b32 s57, s3, 7\ns_add_u32 s57, s57, {WS_FLAG}')
    lane(a, 8)
    a('v_lshlrev_b32 v0, 4, v8\nv_lshrrev_b32 v6, 4, v8\nv_xor_b32 v6, v6, v8\nv_lshlrev_b32 v6, 3, v6')
    for r, o in ((MA, w*2048), (MB, w*2048+1024), (M8, L_Q)): a(f'ds_read_b128 {V(r,4)}, v0 offset:{o}')
    expr(a, 2, 8, [(1,1,0xAAAA)], 0x4444, 9)
    expr(a, 4, 8, [(4,2,256),(2,2,32),(0,1,16)], 0, 9)
    expr(a, 3, 8, [(1,1,128)], 'v4', 9)
    expr(a, 5, 8, [(0,4,32),(4,2,8)], 0, 9); expr(a, 10, 8, [(2,2,8)], 0, 9); a('v_xor_b32 v5, v5, v10')
    if w < 3: red_addr(a, w, 7, 8, 9)

def red_addr(a, w, d, ln, tmp):
    a('s_lshl_b32 s54, s60, 7\ns_add_u32 s54, s54, s59')
    expr(a, d, ln, [(3,3,PHEAD),(0,3,16)], 's54', tmp)
    if w == 2: a(f's_lshl_b32 s54, s55, 29\nv_or_b32 v{d}, s54, v{d}')

def zero(b): return [f'v_mov_b64 {V(b,2)}, 0', f'v_mov_b64 {V(b+2,2)}, 0']
def ldw(buf, idx): return [f'ds_read_b128 {V(buf,4)}, v1 offset:{idx*2048}', f'ds_read_b128 {V(buf+4,4)}, v1 offset:{idx*2048+1024}']
def cvt(d, s): return f'v_cvt_pk_bf16_f32 v{d}, v{s}, v{s+1}'
def padd(b): return f'v_pk_add_f32 {V(b,2)}, {V(b,2)}, {V(b+2,2)}'
DP = 'row_mask:0xf bank_mask:0xf'
DENSE = {
 'sx0': f'v_mfma_f32_16x16x32_bf16 {V(G4,4)}, {V(MA,4)}, {V(G0,4)}, 0',
 'sx1': f'v_mfma_f32_16x16x32_bf16 {V(G4,4)}, {V(N[0],4)}, {V(G1,4)}, {V(G4,4)}',
 'sm0': f'v_mfma_f32_16x16x32_bf16 {V(M8,4)}, {V(G2,4)}, {V(G0,4)}, 0',
 'sm1': f'v_mfma_f32_16x16x32_bf16 {V(M8,4)}, {V(G3,4)}, {V(G1,4)}, {V(M8,4)}',
 'zx': f'v_mfma_f32_16x16x32_bf16 {V(G3,4)}, {V(MB,4)}, {V(N[0],4)}, 0',
 'zm': f'v_mfma_f32_16x16x16_bf16 {V(G3,4)}, {V(MB,2)}, {V(MA,2)}, {V(G3,4)}',
 'px0': f'v_mfma_f32_16x16x32_bf16 {V(X0,4)}, {V(N[1],4)}, {V(N[0],4)}, 0',
 'px1': f'v_mfma_f32_16x16x32_bf16 {V(X1,4)}, {V(N[2],4)}, {V(N[0],4)}, 0',
 'pm0': f'v_mfma_f32_16x16x16_bf16 {V(X0,4)}, {V(G4+2,2)}, {V(MA,2)}, {V(X0,4)}',
 'pm1': f'v_mfma_f32_16x16x16_bf16 {V(X1,4)}, {V(G4+2,2)}, {V(MA+2,2)}, {V(X1,4)}',
}
def step(a, w, mode, l, loc, n, us, opt):
    sf = ' sc1' if mode else ''
    P = f'R{w}{mode}'
    ns = {i: [] for i in range(len(l))}; vs = {i: [] for i in range(len(l))}
    def put(d, s0, lst, per=1):
        for i, x in enumerate(lst): d[s0 + i//per].append(x)
    lidx = {i: loc[e[0]][1] for i, e in enumerate(l) if not isinstance(e, str) and e[3] is not None}
    pos = lambda ch: (ch&3)*2048 + (ch>>2)*1024
    add2 = lambda b: [f'v_add_f32 v{b}, v{b}, v{b+2}', f'v_add_f32 v{b+1}, v{b+1}, v{b+3}']
    tag = lambda r: f'v_and_or_b32 v{r}, v{r}, -2, s65'
    rdc = lambda r, c: f'ds_read_b128 {V(r,4)}, v0 offset:{pos(c)}'
    x2 = "x2" if w == 2 else ""
    g = opt.get
    b1, bw, cw, b2, bq, bk, bp, sx, sm, zm = g('b1', 1), g('bw', 19), g('cw', 21), g('b2', 24), g('bq', 41), g('bk', 51), g('bp', 55), g('sx', 45), g('sm', 55), g('zm', 60)
    last = lambda key: max(i for i, e in enumerate(l) if not isinstance(e, str) and e[0][:len(key)] == key)
    ns[b1] += ['s_barrier', rdc(N[0], n[0])]; ns[b1+1] += [rdc(N[1], n[1]), rdc(N[2], n[2])]
    T = N[3]
    wrb = f'ds_write_b128 v0, {V(MB,4)} offset:{w*2048+1024}'
    chb = [f'v_max3_u32 v{T}, v{MB}, v{MB+1}, v{MB+2}', f'v_max3_u32 v{T}, v{MB+3}, v{M8}, v{T}', f'v_max3_u32 v{T+1}, v{M8+1}, v{M8+2}, v{M8+3}', f'v_max_u32 v{T}, v{T+1}, v{T}', f'v_cmp_lt_u32 vcc, s66, v{T}']
    for i, r, ad, of in ((6, MA, 3, 0), (12, N[0], 3, 1024), (18, N[1], 0, 2048), (24, N[2], 0, 3072)):
        ns[i].append(f'buffer_load_dwordx4 {V(r,4)}, v{ad}, {WS}, s47 offen offset:{of} sc1')
    ns[bw] += [wrb]; vs[bw] += chb[:1]; vs[cw] += chb[1:3]; vs[cw+1] += chb[3:]; vs[min(cw+2, 23)] += [f's_cbranch_vccnz {P}PB', f'{P}B:']
    ns[b2] += ['s_barrier', rdc(N[3], n[3])]; ns[max(b2+1, 24)] += [rdc(N[4], n[4]), rdc(N[5], n[5])]
    prev = {}
    for u in sorted(lidx):
        bf = l[u][3]
        if u > 3: put(ns, g('ls', {}).get(u, {64: 58, 77: 70, 79: 72, 81: 74}.get(u, prev[bf] + 1)), ldw(bf, lidx[u]))
        prev[bf] = u
    if w < 3:
        vs[3].append(f'v_mov_b64 {V(T,2)}, -1')
        ns[7].append(f'buffer_store_dword{x2} {V(T, 2 if w == 2 else 1)}, v{G4}, {WS}, s46 offen{sf}')
    ns[14].append(f'ds_read_b64_tr_b16 {V(G4,2)}, v6 offset:{L_K + w*512}')
    ns[g('kms', 30) + g('kst', 2)*w] += [f'buffer_store_dwordx4 {V(G4,4)}, v0, {WS}, s48 offen' + opt.get('kmf', ' sc1')]
    ns[47] += ['s_add_u32 s48, s48, %d' % opt.get('kmi', 0x20000)]; ns[26] += ['s_add_u32 s47, s47, %d' % opt.get('kvi', 0x80000)]
    ns[27] += ['s_add_u32 s45, s45, 0x4000']; ns[31] += ['s_bitset0_b32 s45, 16', 's_add_u32 s44, s45, 8192']; ns[33] += [f's_add_u32 s43, s45, {w*1024}', f's_add_u32 s63, s45, {4096 + w*1024}']
    ns[38] += ['s_xor_b32 s46, s45, 0x8000', 's_and_b32 s65, s36, 1']
    tch = opt.get('touch', 1)
    if w == 3:
        vs[3].append('v_readfirstlane_b32 s54, v7 ;!'); vs[13].append(f'v_lshlrev_b32 v7, 3, v0 ;!')
        ns[6] += ['s_lshr_b32 s54, s54, s60']; ns[7] += ['s_and_b32 s54, s54, 0xff']
        ns[8] += ['s_cmp_gt_u32 s54, s61']; ns[9] += [f's_cbranch_scc0 {P}FL']*(1-opt.get('nofl', 0)) + [f'{P}FR:']
        ts = g('ts', 26)
        if tch: put(ns, ts, [f'buffer_load_dword v7, v7, {WS}, s59 offen sc1 ;!', f'buffer_load_dword v7, v7, {WS}, s62 offen sc1 ;!'])
        ns[ts+4] += [f'buffer_load_dword v7, off, {WS}, s57 sc1 ;!']
    qpost = lambda b, d: [f'v_mul_f32 v{b}, s50, v{b}', f'v_mul_f32 v{b+1}, s50, v{b+1}', f'v_fmac_f32 v{b}, s50, v{b+2}', f'v_fmac_f32 v{b+1}, s50, v{b+3}', cvt(d, b)]
    put(vs, 32, qpost(G0, G0), 2); put(vs, 35, qpost(G1, G0+1) + [f'ds_write_b64 v5, {V(G0,2)} offset:{L_Q + w*512}'], g('qp', 3))
    trq = [f'ds_read_b64_tr_b16 {V(G0+2*u,2)}, v6 offset:{L_Q + u*512}' for u in range(4)]
    ns[bq] = ['s_barrier'] + trq[:2] + ns[bq]; ns[bq+1] = trq[2:] + ns[bq+1]
    k0, k1 = last(('k', 0)), last(('k', 1))
    put(vs, k0+2, add2(G2) + [cvt(G2, G2)]); put(vs, k1+2, add2(G3) + [cvt(G2+1, G3), f'ds_write_b64 v5, {V(G2,2)} offset:{L_K + w*512}'], g('kp', 2))
    spost = lambda b: [f'v_add_f32_dpp v{b}, v{b+2}, v{b} quad_perm:[2,3,0,1] {DP}', f'v_add_f32_dpp v{b+1}, v{b+3}, v{b+1} quad_perm:[2,3,0,1] {DP}',
                       f'v_exp_f32_dpp v{b+2}, v{b} quad_perm:[0,1,0,1] {DP}', f'v_exp_f32_dpp v{b+3}, v{b+1} quad_perm:[0,1,0,1] {DP}']
    put(vs, sx+3, spost(G4) + [cvt(G4+2, G4+2), f'ds_write_b32 v0, v{G4+2} offset:{L_P + 4*w}'], 2)
    trk = [f'ds_read_b64_tr_b16 {V(G2+2*u,2)}, v6 offset:{L_K + u*512}' for u in range(4)]
    ns[bk] = ['s_barrier'] + trk[:2] + ns[bk]; ns[bk+1] = trk[2:] + ns[bk+1]
    put(vs, sx+6, [f'v_mov_b32 v{MA+1}, 0', f'v_mov_b32 v{MA+2}, 0'])
    ns[last(('v', 1, 4+w))+1].append(f'ds_read_b128 {V(MB,4)}, v0 offset:{L_ONE}')
    ns[bp] = ['s_barrier']*(bp != bk) + ns[bp] + [f'ds_read_b128 {V(N[0],4)}, v0 offset:{L_P}']
    put(vs, sm+g('mo', 2), spost(M8) + [cvt(MA, M8+2), cvt(MA+3, M8+2)], 2)
    ns[56].append('s_cmp_eq_u32 s36, 63')
    v0_, v1_ = last(('v', 0)), last(('v', 1))
    put(vs, v0_+g('vo', 2), add2(W0) + [cvt(G4+2, W0)], 2); put(vs, v1_+2, add2(W1) + [cvt(G4+3, W1)], 2)
    ns[61].append(f's_cbranch_scc1 {P}TAIL')
    vs[61] += zero(G2); vs[zm+2] += [f'v_rcp_f32 v{G3}, v{G3}', f'v_subrev_u32 v{G3+2}, s52, v{G3+2}']
    mul = [f'v_pk_mul_f32 {V(X0+2*i,2)}, {V(X0+2*i,2)}, {V(G3,2)} op_sel_hi:[1,0]' for i in range(4)]
    co = [cvt(M8+i, X0+2*i) for i in range(4)]
    if zm == 61: vs[62] += zero(W0)
    vs[63] += [f'v_cmp_le_u32 vcc, s53, v{G3+2}'] + zero(W0)*(zm == 60) + [f'{P}RJ:'] + mul[:2] + [f's_cbranch_vccnz {P}FB'] + co[:2] + mul[2:] + co[2:]
    vs[63] += [f'ds_write_b128 v4, {V(M8,4)} offset:{L_Q + (w>>1)*1024 + (w&1)*128}', 's_waitcnt lgkmcnt(1)']
    vs[64] += zero(W1); vs[65] += zero(G1); vs[66] += zero(G0)
    ro = [f'ds_read_b128 {V(r,4)}, v4 offset:{L_Q + (u>>1)*1024 + (u&1)*128}' for r, u in zip((MA, MB, G3), us)]
    ns[opt.get('bo', 66)] += ['s_barrier'] + ro
    put(ns, 68, [f'ds_read_b128 {V(X0+4*j,4)}, v3 offset:{L_Q + j*1024}' for j in range(2)])
    put(vs, 72, [cvt(G2, G2), cvt(G2+1, G2+2), tag(G2)]); vs[75] += [cvt(G2+2, W0), cvt(G2+3, W0+2)]
    (vs[75] if g('ast') is None else ns[76 + g('ast')*w]).append(f'buffer_store_dwordx4 {V(G2,4)}, v0, {WS}, s37 offen{sf}')
    put(vs, 77, add2(G0) + [cvt(M8+1, G0), tag(M8+1)]); vs[81] += [cvt(W1, W1), cvt(W1+1, W1+2), tag(W1)]
    vs[68].append(f'v_lshrrev_b32 v{M8}, 2, v0')
    hold = opt.get('hold', 0)
    sth = f'buffer_store_dword v{M8+1}, v{M8}, {WS}, s38 offen{sf}'; stb = f'buffer_store_dwordx4 {V(W1,4)}, v0, {WS}, s37 offen offset:1024{sf}'
    if not hold & 1: ns[81].append(sth)
    hs = [stb]*(hold>>1) + [sth]*(hold&1); XB = '\n'.join(['s_barrier ;!'] + hs)
    if w < 3: ns[76].append(f'ds_read_b32 v{G4}, v0 offset:{L_PUB + 4*w}')
    ns[77].append('s_add_u32 s36, s36, 1')
    nx3 = ['s_add_u32 s59, s36, 2', 's_min_u32 s59, s59, 63', 's_lshl_b32 s60, s59, 3', 's_lshr_b32 s61, s59, 2', 's_lshl_b32 s59, s59, 19', 's_add_u32 s59, s59, s58', 's_add_u32 s62, s59, 8192'] if w == 3 else []
    RB = [G0, G1, G2, G3]
    rld = [f'buffer_load_dwordx4 {V(RB[i],4)}, v7, {WS}, s{39+i} offen sc1 ;!' for i in range(4)]
    BUD = 's_sub_u32 s49, s49, 1\ns_cselect_b32 s49, 0, s49\ns_cselect_b32 s66, -1, -2\ns_cselect_b32 s67, 1, 0'
    pre = ldw(PA, lidx[0]) + ldw(PB, lidx[1]) + ldw(PC, lidx[2]) + ldw(X0, lidx[3])
    zs = zero(G0) + zero(G1) + zero(G2) + zero(G3) + zero(W0) + zero(W1)
    wra = f'ds_write_b128 v0, {V(MA,4)} offset:{w*2048}'
    poll = f'buffer_load_dwordx4 {V(MA,4)}, v0, {WS}, s43 offen sc1 ;!'
    ldb = [f'buffer_load_dwordx4 {V(MB,4)}, v0, {WS}, s63 offen sc1', f'buffer_load_dwordx4 {V(M8,4)}, v0, {WS}, s44 offen sc1']
    nop = lambda k: ['s_nop 3']*k
    lb = opt.get('lb')
    if lb is not None:
        ns[0].append('s_cmp_eq_u32 s36, 0'); ns[lb] += [f's_cbranch_scc1 {P}LB'] + ldb + [f'{P}LB:']
    fs = opt.get('fs'); F = N[3]
    fpoll = f'buffer_load_ushort v{F+3}, v{F+2}, {WS}, s58 offen sc1 ;!'
    if fs is not None and w == 1:
        ns[30] += ['s_add_u32 s59, s36, 1', 's_mul_i32 s60, s59, 0x10001']
        vs[67] += [f'v_lshrrev_b32 v{F+2}, 3, v0']; vs[64] += [f'v_mov_b32 v{F}, s60']; vs[65] += [f'v_and_b32 v{F+1}, 0x300, v0']
        ns[fs] += [f'buffer_store_dword v{F}, v{F+1}, {WS}, s57 offen{sf}']
        for i in opt.get('fp', (69, 72, 75, 78)): ns[i] += [fpoll]
    spec = opt.get('spec', 0); ec = opt.get('ec')
    if ec is not None:
        T = G4+1
        ns[ec] += [f's_cbranch_scc1 {P}EW', 's_waitcnt vmcnt(0)', f'{P}EW:']
        ns[bw].insert(0, 's_waitcnt vmcnt(%d)' % sum(x.startswith('buffer_') for i in range(ec+2, bw) for x in ns[i] + vs[i]))
        c_ = [f'v_max3_u32 v{T}, v{MB}, v{MB+1}, v{MB+2} ;!', f'v_max3_u32 v{T}, v{MB+3}, v{M8}, v{T} ;!', f'v_max3_u32 v{T}, v{M8+1}, v{M8+2}, v{T} ;!', f'v_max_u32 v{T}, v{M8+3}, v{T} ;!', f'v_cmp_lt_u32 vcc, s66, v{T}']
        vs[ec] += c_[:2]; vs[ec+1] += c_[2:] + [f's_cbranch_vccnz {P}EC', f'{P}ER:']
    st = opt.get('st', [])
    def stamp(p):
        if p in st: a(f's_memtime s[{76+2*st.index(p)}:{77+2*st.index(p)}] ;!')
    if bp != bk:
        fl = [x for i in range(bk) for x in ns[i] + vs[i]]; kw = max(i for i, x in enumerate(fl) if x.startswith('ds_write_b64'))
        ns[bk][0:1] = ['s_waitcnt lgkmcnt(%d)' % sum(x.startswith('ds_') for x in fl[kw+1:]), 's_barrier ;!']
    a('\n'.join(pre + zs + nx3 + [f'ds_read_b32 v{G4}, v0 offset:{L_PUB + 4*min(w, 2)}', 's_mov_b32 s66, -1']))
    if opt.get('prof'): a('s_memtime s[70:71]\ns_waitcnt lgkmcnt(0)\ns_mov_b32 s72, s49')
    if opt.get('drop') is not None: a('s_mov_b32 s49, 0\ns_mov_b32 s53, -1')
    if opt.get('prof'):
        for k in range(6): a(f's_mov_b32 s{90+k}, 0\ns_mov_b32 s{76+2*k}, s70')
    T = G4+1
    chk = f'v_max3_u32 v{T}, v{MA}, v{MA+1}, v{MA+2}\nv_max_u32 v{T}, v{MA+3}, v{T}\n{wra}\nv_cmp_lt_u32 vcc, s66, v{T}'
    a('s_waitcnt lgkmcnt(0)')
    if w < 3 and not mode and opt.get('rr', 0):
        a(f'v_mov_b64 {V(G4+2,2)}, -1')
        for sl in range(4): a(f's_mov_b32 s54, {WS_RING + sl*RSLOT}\nbuffer_store_dword{x2} {V(G4+2, 2 if w == 2 else 1)}, v{G4}, {WS}, s54 offen')
    def hclk(R=G4+1):
        if opt.get('hst') == 2 and w == 3:
            L = a.lab('HC'); k = opt.get('hk', 0)
            a(f's_memtime s[90:91]\ns_load_dwordx2 s[98:99], s[0:1], 128\ns_lshl_b32 s94, s3, 8\ns_or_b32 s94, s94, s36\ns_lshr_b32 s95, s94, {k}\ns_and_b32 s94, s94, {(1<<k)-1}\ns_lshl_b32 s94, s94, 8\ns_or_b32 s94, s94, s95\ns_cmp_lt_u32 s94, 16\ns_waitcnt lgkmcnt(0)\ns_cbranch_scc0 {L}\ns_lshl_b32 s94, s94, 2\ns_sub_u32 s90, s90, s68\nv_mov_b32 v{R+1}, s94\nv_mov_b32 v{R}, s90\nglobal_store_dword v{R+1}, v{R}, s[98:99] sc1\n{L}:')
    hclk()
    if opt.get('hst') == 3 and w == opt.get('hw', 0):
        R = G4+1
        a(f's_memtime s[90:91]\ns_load_dwordx2 s[98:99], s[0:1], 128\ns_lshl_b32 s94, s3, 1\ns_waitcnt lgkmcnt(0)\ns_sub_u32 s90, s90, s68\nv_mov_b32 v{R+1}, s94\nv_mov_b32 v{R}, s90\nglobal_store_short v{R+1}, v{R}, s[98:99] sc1')
    a(f'''s_branch {P}STEP
@loop {P}
{P}TOP:
{poll}
{BUD}
{P}TW:
@vmclear
s_waitcnt vmcnt({opt.get('depth', 1)}) lgkmcnt(0)
{chk}
s_cbranch_vccnz {P}TOP''')
    a('\n'.join(['s_cmp_eq_u32 s36, s36'] if ec is not None else ldb if lb is None or opt.get('lb2') else []) + f'\n{P}STEP:')
    stamp('top')
    for i, e in enumerate(l):
        if isinstance(e, str): a(DENSE[e])
        else:
            kind, idx = loc[e[0]]
            a(f'v_smfmac_f32_16x16x64_bf16 {V(e[2],4)}, {V(e[1],4)}, {X(idx if kind == "R" else e[3], 8)}, v2')
        if i != 1: stamp(i)
        a('\n'.join(x for x in ns[i] + vs[i] if not any(x.startswith(p) for p in opt.get('drop', []))))
        if i == 1: stamp(i)
    sel = f'ds_read_b128 {V(M8,4)}, v0 offset:{L_SEL}'
    al = opt.get('al', 'ack0'); d1 = opt.get('d1', (0, 0, 0)); xb = opt.get('xb', 'early')
    a(f'{cvt(W1+2, G1)}\n{cvt(W1+3, G1+2)}')
    if w == 1 and al == 'pre': a('\n'.join(nop(d1[1]) + rld))
    else: a('\n'.join(nop(opt.get('bd', 0))))
    a(('' if hold & 2 else stb) + f'\n{P}HOP:')
    stamp('hop')
    def reduce(beh, mid=()):
        bo = lambda d, x, y: f'v_bitop3_b32 v{d}, v{x}, v{y}, s65 bitop3:0x7e'
        T = G0; T2 = G1
        for i in range(4):
            a(f's_waitcnt vmcnt({3-i+beh + (len(mid) if i else 0)})')
            if i == 0:
                stamp('ld')
                if w == 1 and xb == 'bar': a(f's_barrier ;!\n{P}P1X:')
            o2 = (RB[i], M8) if w < 2 else (M8, RB[i])
            a(f'v_mfma_f32_16x16x32_bf16 {V(MB,4)}, {V(o2[0],4)}, {V(o2[1],4)}, ' + ('0' if i == 0 else V(MB,4)))
            if i == 0: a('\n'.join(mid) + '\n@vmclear')
            if i == 1: a(bo(T, RB[0], RB[1]))
            elif i == 3: a(bo(T2, RB[2], RB[3]))
        if w == 2 and mode:
            for i in range(4):
                for j in range(1, 4): a(f'v_bitop3_b32 v{T}, v{T}, v{RB[i]+j}, s65 bitop3:0xf6')
        a(f'v_bitop3_b32 v{T}, v{T}, v{T2}, 1 bitop3:0xa8\nv_cmp_lt_u32 vcc, s67, v{T}\ns_cbranch_vccnz {P}R1')
        if w < 2: a(f'v_permlane32_swap_b32 v{MB}, v{MB+2}\nv_permlane32_swap_b32 v{MB+1}, v{MB+3}\n' + '\n'.join(add2(MB) + [cvt(MB, MB)]))
        else: a('\n'.join([f'v_add_f32_dpp v{MB+i}, v{MB+i}, v{MB+i} row_ror:8 {DP}' for i in range(4)] + [cvt(MB, MB), cvt(MB+1, MB+2)]))
        a(f'buffer_store_dword{x2} {V(MB, 2 if w == 2 else 1)}, v{G4}, {WS}, s45 offen{sf}')
        stamp('p1')
    def endst(to):
        if spec: to = a.lab(P + 'SP')
        if st: a('s_memtime s[74:75] ;!')
        if st and 'tl' in opt:
            n_ = len(st)
            a(f's_waitcnt lgkmcnt(0)\ns_sub_u32 s88, s36, {opt["tl"]}\ns_cmp_lt_u32 s88, {20//n_}\ns_cbranch_scc0 {to}\ns_mul_i32 m0, s88, {n_}\ns_nop 0')
            for k in range(n_): a(f's_movreld_b32 s{16+k}, s{76+2*k}')
        elif st:
            a('s_waitcnt lgkmcnt(0)')
            for k in range(len(st)): a(f's_sub_u32 s88, s74, s{76+2*k}\ns_add_u32 s{90+k}, s{90+k}, s88\ns_mov_b32 s{76+2*k}, s74')
        if not spec: a(f's_branch {to}'); return
        a(f'{to}:\n@reset\n' + '\n'.join([poll]*(spec-2) + nop(opt.get('d3', 0)) + [x + ' ;!' for x in ldb]) + f'\n{BUD}')
        for i in range(spec): a(f'@vmclear\ns_waitcnt vmcnt({spec+1-i}) lgkmcnt(0)\n{chk}\ns_cbranch_vccz {P}STEP')
        a(f's_branch {P}TOP')
    xf = opt.get('xf', 0)
    pf = opt.get('pf', (4, 0, 0, 0))
    def plain(k=0):
        a('s_barrier ;!'); stamp('y')
        sp_ = nop(opt.get('sp', 0)); r = pre[k:]; h = len(r)//2; z0 = opt.get('z0', 8)
        a('\n'.join(nop(opt.get('d2', 0)) + zs[:z0] + [poll] + r[:h] + zs[z0:6+z0//2] + sp_ + ([poll] if opt.get('depth', 1) > 1 else []) + r[h:] + zs[6+z0//2:] + sp_))
    if w == 1:
        if fs is not None:
            a(f'{P}F1:\nv_cmp_ne_u32 vcc, s59, v{F+3} ;!\ns_cbranch_vccz {P}F2\n{fpoll}\ns_sub_u32 s49, s49, 1\ns_cselect_b32 s49, 0, s49\ns_waitcnt vmcnt(8)\ns_cbranch_scc0 {P}F1\n{P}F2:')
            stamp('f')
        if al[:3] == 'ack': a('s_waitcnt vmcnt(%s)' % (al[3:] or 2))
        if al != 'pre': a('\n'.join(nop(d1[1]) + pre[:pf[1]] + rld))
        if xf: a(XB)
        a(f'{sel}\n{BUD}\n@vmclear\n{P}P1:'); reduce(1 if al == 'pre' else len(hs)); plain(pf[1]); a(f'@end {P}'); endst(f'{P}TOP')
    elif w == 3:
        a('\n'.join(nx3))
        hclk(MB)
        if opt.get('clk'): a(f's_memtime s[90:91]\ns_memrealtime s[92:93]\ns_lshl_b32 s94, s3, 7\ns_add_u32 s94, s94, s36\ns_lshl_b32 s94, s94, 3\ns_add_u32 s94, s94, 0x220000\ns_waitcnt lgkmcnt(0)\nv_mov_b32 v{G0}, s90\nv_mov_b32 v{G0+1}, s92\nbuffer_store_dwordx2 {V(G0,2)}, off, {WS}, s94')
        if xb == 'bar' or xf: a(XB)
        plain(); a(f'@end {P}'); endst(f'{P}TOP')
    elif xb == 'early':
        if w == 2: a(f's_cmp_lg_u32 s55, 0\ns_cbranch_scc1 {P}NQ')
        if hold: a(XB)
        a(f'{sel}\n{BUD}\ns_waitcnt vmcnt(%d)' % (63 if xf == 2 else 0 if w == 0 else opt.get('ah', 0)))
        if xf and not hold: a(XB)
        a('\n'.join(nop(d1[w]) + pre[:pf[w]] + rld + ['@vmclear', f'{P}P1:'])); reduce(0); plain(pf[w]); a(f'@end {P}'); endst(f'{P}TOP')
    else:
        if w == 2: a(f's_cmp_lg_u32 s55, 0\ns_cbranch_scc1 {P}NQ')
        if hold: a(XB)
        a('\n'.join([sel] + pre[pf[w]:] + [BUD]))
        if xb == 'ack': a('s_waitcnt vmcnt(%d)' % (0 if w == 0 else opt.get('ah', 0)))
        if (xb == 'bar' or xf) and not hold: a('s_barrier ;!')
        a('\n'.join(nop(d1[w]) + pre[:pf[w]] + rld + ['s_barrier ;!'])); stamp('y')
        a('\n'.join(nop(opt.get('d2', 0)) + [poll, '@vmclear', f'{P}P1:'])); reduce(1, [poll] if opt.get('depth', 1) > 1 else [])
        a('\n'.join(zs) + f'\n@end {P}'); endst(f'{P}TW')
    T = N[3]
    a(f'''@reset
{P}PB:
{ldb[0]} ;!
{ldb[1]} ;!
{BUD}
@vmclear
s_waitcnt vmcnt({opt.get('pbd', 0)})
''' + '\n'.join(chb) + f'''
{wrb}
s_cbranch_vccnz {P}PB
s_waitcnt lgkmcnt(0)
s_branch {P}B''')
    if ec is not None: a(f'@reset\n{P}EC:\n{ldb[0]} ;!\n{ldb[1]} ;!\ns_branch {P}ER')
    if w < 3: a(f'@reset\n{P}R1:\n' + '\n'.join(rld) + f'\n{BUD}\ns_waitcnt vmcnt(0)\ns_branch {P}P1' + ('X' if w == 1 and xb == 'bar' else ''))
    if w == 2:
        a(f'@reset\n{P}NQ:')
        if xb == 'bar' or xf: a(XB)
        plain(); endst(f'{P}TOP')
    a(f'''@reset
{P}TAIL:
s_waitcnt lgkmcnt(0)
ds_read_b64_tr_b16 {V(G4,2)}, v6 offset:{L_K + w*512}
buffer_store_dwordx4 {V(G4,4)}, v0, {WS}, s48 offen sc1''')
    if opt.get('hst') == 1: a(f's_mov_b32 s81, {mode+1}'); hstamps(a, 0, [(0,68),(13,82),(2,70),(3,78),(11,81)], w)
    elif opt.get('prof'):
        a(f'''s_memtime s[74:75]
s_waitcnt lgkmcnt(0)
s_sub_u32 s74, s74, s70
s_sub_u32 s70, s70, s68
s_sub_u32 s72, s72, s49
v_mov_b32 v8, s74
v_mov_b32 v9, s70
v_mov_b32 v10, s72
v_mov_b32 v11, {mode}
s_lshl_b32 s54, s3, 6
s_add_u32 s54, s54, {0x200000 + w*16}
buffer_store_dwordx4 v[8:11], off, {WS}, s54
s_add_u32 s54, s54, 0x1000
v_mov_b32 v12, s90
v_mov_b32 v13, s91
v_mov_b32 v14, s92
v_mov_b32 v15, s93
buffer_store_dwordx4 v[12:15], off, {WS}, s54''')
    if 'tl' in opt:
        a(f's_lshl_b32 s54, s3, 9\ns_add_u32 s54, s54, {0x210000 + w*128}')
        a(f'''s_memtime s[76:77]
s_memrealtime s[78:79]
s_mov_b32 s90, 0
s_mov_b32 s91, 0
s_mov_b32 s92, 0
s_waitcnt lgkmcnt(0)
{P}CAL:
s_memtime s[80:81]
s_memrealtime s[82:83]
s_waitcnt lgkmcnt(0)
s_sub_u32 s80, s80, s76
s_sub_u32 s82, s82, s78
s_add_u32 s90, s90, s80
s_add_u32 s91, s91, s82
s_add_u32 s92, s92, 1
s_cmp_lt_u32 s92, 256
s_cbranch_scc1 {P}CAL
v_mov_b32 v40, s76
v_mov_b32 v41, s78
v_mov_b32 v42, s90
v_mov_b32 v43, s91''')
        for k in range(20): a(f'v_mov_b32 v{20+k}, s{16+k}')
        for k in range(6): a(f'buffer_store_dwordx4 {V(20+4*k,4)}, off, {WS}, s54 offset:{16*k}')
    a('s_waitcnt vmcnt(0)\ns_endpgm')
    a(f'''@reset
{P}FB:
s_waitcnt vmcnt(0) lgkmcnt(0)
ds_write_b64 v6, {V(G4,2)} offset:{L_Q + w*512}
s_barrier''')
    for u in range(4): a(f'ds_read_b64 {V(X0+2*u,2)}, v6 offset:{L_Q + u*512}')
    t = G3
    a(f'''s_waitcnt lgkmcnt(0)
s_barrier
v_max3_f32 v{t}, v{X0}, v{X0+1}, v{X0+2}
v_max3_f32 v{t}, v{t}, v{X0+3}, v{X0+4}
v_max3_f32 v{t}, v{t}, v{X0+5}, v{X0+6}
v_max3_f32 v{t}, v{t}, v{X0+7}, v{M8}
v_max_f32 v{t}, v{t}, v{M8+1}
v_mov_b32 v{t+1}, v{t}
v_permlane16_swap_b32 v{t}, v{t+1}
v_max_f32 v{t}, v{t}, v{t+1}
v_mov_b32 v{t+1}, v{t}
v_permlane32_swap_b32 v{t}, v{t+1}
v_max_f32 v{t}, v{t}, v{t+1}''')
    rs = [X0+i for i in range(8)] + [M8, M8+1]
    for r in rs: a(f'v_sub_f32 v{r}, v{r}, v{t}')
    for r in rs: a(f'v_exp_f32_dpp v{r}, v{r} quad_perm:[0,1,0,1] {DP}')
    for u in range(4): a(cvt(N[0]+u, X0+2*u))
    a(cvt(MA, M8)); a(cvt(MA+3, M8))
    for e in ('zx', 'px0', 'px1', 'zm', 'pm0', 'pm1'): a(DENSE[e])
    a(f'v_rcp_f32 v{G3}, v{G3}\ns_mov_b64 vcc, 0\ns_nop 7\ns_branch {P}RJ')
    if w == 3:
        a(f'''@reset
{P}FL:
buffer_load_dword v7, off, {WS}, s57 sc1
s_cmp_lt_u32 s49, 1
s_waitcnt vmcnt(0)
s_cbranch_scc1 {P}FR
s_sub_u32 s49, s49, 1
v_readfirstlane_b32 s54, v7
s_lshr_b32 s54, s54, s60
s_and_b32 s54, s54, 0xff
s_cmp_gt_u32 s54, s61
s_cbranch_scc1 {P}FR
s_branch {P}FL''')

def gen(opt):
    out = []
    a = Asm(); a('REC:')
    if opt.get('hx'): a('s_xor_b32 s3, s3, %d' % opt['hx'])
    if opt.get('prof'): a('s_memtime s[68:69]')
    srds(a, [('ws',8),('dbg',12),('wq',SWQ),('wk',SWK),('wv',SWV),('wo',SWO),('mem0',SM0)])
    for w in range(1, 4): a(f's_cmp_eq_u32 s4, {w}\ns_cbranch_scc1 RECW{w}')
    out.append(a.text())
    for w in range(4):
        l, loc, n, us = plan(w, opt)
        a = Asm(); a.uid = 100*w; a(f'RECW{w}:'); init(a, w, loc, opt)
        if opt.get('mode') is None: a(f's_cmp_eq_u32 s64, 32\ns_cbranch_scc0 RECM{w}')
        elif opt['mode'] == 1: a(f's_branch RECM{w}')
        step(a, w, 0, l, loc, n, us, opt)
        a(f'@reset\nRECM{w}:'); step(a, w, 1, l, loc, n, us, opt)
        out.append(a.text())
        if opt.get('sim') == w:
            for t, x in a.sim(f'R{w}0TOP', f'R{w}0TAIL'): print(t, x)
    return '\n'.join(out)
```

```python
from common import *
import struct
N = [8+4*i for i in range(6)]; MA, MB, M8, X0, X1, W0, W1 = 32, 36, 40, 44, 48, 52, 56
G0, G1, G2, G3, G4 = 60, 64, 68, 72, 76
PA, PB, PC = N[0], N[2], N[4]
L_Q, L_K, L_SEL, L_PUB, L_P, L_ONE, L_W = 8192, 10240, 12288, 13312, 14336, 15360, 16384
WREG = 36864
WS, DBG, SWQ, SWK, SWV, SWO, SM0 = 's[8:11]', 's[12:15]', 16, 20, 24, 28, 32
def f2u(x): return struct.unpack('<I', struct.pack('<f', x))[0]

def plan(w, opt):
    a_, b_ = w, 4+w; n = [c for c in range(8) if c not in (a_, b_)]
    us = [u for u in range(4) if u != w]
    Q = lambda T, c, A, buf=None: (('q', T, c), A, (G0, G1)[T], buf)
    K = lambda T, c, A, buf=None: (('k', T, c), A, (G2, G3)[T], buf)
    Vv = lambda T, c, A, buf=None: (('v', T, c), A, (W0, W1)[T], buf)
    acc = (G2, W0, W1, G1)
    O = lambda u, t, A, buf=None: (('o', u, t), A, acc[t], buf)
    s = {}
    sx, sm = opt.get('sx', 45), opt.get('sm', 55)
    st = {0: PA, 1: PB, 2: PC, 3: X0, 9: PC, 16: PC, 23: PC, 64: PC, 77: PC, 79: PA, 81: PB}
    for u in opt.get('xs', (11, 19, 27, 34, 41, 48, 54)): st[u] = X0
    l = []
    for c, A in ((a_, MA), (n[0], N[0]), (n[1], N[1]), (n[2], N[2])): l += [Q(0,c,A), Q(1,c,A), K(0,c,A), K(1,c,A), Vv(0,c,A), Vv(1,c,A)]
    B5 = [(b_, MB), (8, M8), (n[3], N[3]), (n[4], N[4]), (n[5], N[5])]
    l += [Q(T, *B5[i]) for T, i in ((0,0),(1,0),(0,1),(1,1),(0,2),(0,3),(0,4),(1,2),(1,3),(1,4))]
    l += [K(T, *B5[i]) for T in range(2) for i in range(5)]
    l += [Vv(T, *B5[i]) for T, i in ((0,0),(1,0),(0,1),(1,1),(0,2),(1,2),(0,3),(0,4),(1,3),(1,4))]
    l[sx:sx] = ['sx0', 'sx1']; l[sm:sm] = ['sm0', 'sm1']
    l += ['zx', 'px0', 'zm', 'px1', 'pm0', 'pm1'] if opt.get('zm', 60) == 60 else ['zx', 'px0', 'px1', 'zm', 'pm0', 'pm1']
    l += [O(w,t,M8) for t in range(4)]
    oa = (MA, MB, G3)
    for t in range(4):
        if t == 2: l += [(('h',0,0), X0, G0, None), (('h',1,0), X1, G0, None)]
        for k in range(3): l.append(O(us[k], t, oa[k]))
    for i, b in st.items(): l[i] = l[i][:3] + (b,)
    loc = {}; nl = nr = 0
    for e in l:
        if isinstance(e, str): continue
        if e[3] is not None: loc[e[0]] = ('L', nl); nl += 1
        else: loc[e[0]] = ('R', 80+8*nr); nr += 1
    assert nl == 18 and nr == 54, (nl, nr)
    return l, loc, n, us

def init(a, w, loc, opt):
    lane(a, 8)
    expr(a, 4, 8, [(5,1,64)], (w&1)*128, 9); expr(a, 1, 8, [(0,5,16)], 0, 9); a('v_xor_b32 v4, v4, v1')
    expr(a, 1, 8, [(5,1,1152)], (32*(w&1) + 4*(w>>1))*1152, 9); a('v_add_u32 v4, v4, v1')
    expr(a, 7, 8, [(4,1,32)], (w&1)*64, 9); expr(a, 1, 8, [(0,3,16)], 0, 9); a('v_xor_b32 v7, v7, v1')
    expr(a, 1, 8, [(3,1,1152),(4,1,8*1152),(5,1,64*1152)], (32*(w&1) + 4*(w>>1))*1152, 9); a('v_add_u32 v7, v7, v1')
    a('s_lshl_b32 s62, s3, 8\ns_mul_i32 s63, s3, %d' % (128*1152))
    groups = [('h',)] + [('o', u, tp) for u in range(4) for tp in range(2)] + [(x[0], int(c)) for x in opt.get('go', 'k0123 v0123 k45678 q01238 v45678 q4567').split() for c in x[1:]]
    if opt.get('il'): o_ = groups[3:9]; r_ = groups[9:]; groups = groups[:3] + [x for i in range(6) for x in r_[3*i:3*i+3] + [o_[i]]] + r_[18:]
    q = []
    def dma(gi):
        g = groups[gi]
        for p in range(4):
            a(f's_mov_b32 m0, {L_W + WREG*w + (5 + gi%4)*4096 + p*1024}')
            ro = 16*(p>>1) + 2*(p&1)
            if g[0] in 'qkv': off, sb, vr, srd = (64*g[1] + ro)*8192, 62, 0, {'q':SWQ,'k':SWK,'v':SWV}[g[0]]
            elif g[0] == 'o': off, sb, vr, srd = (64*(g[1]>>1) + 8*(g[1]&1) + ro)*1152 + 512*g[2], 63, 4, SWO
            else: off, sb, vr, srd = ro*1152 + 1024, 63, 7, SWO
            a(f's_add_u32 s54, s{sb}, {off}\nbuffer_load_dwordx4 v{vr}, s[{srd}:{srd+3}], s54 offen{opt.get("wf", "")} lds'); q.append(gi)
    for gi in range(3): dma(gi)
    a('s_mul_i32 s54, s3, %d' % PHEAD)
    a(f's_add_u32 s37, s54, {WS_PART + w*2048}\ns_add_u32 s38, s54, {WS_PART + 8192 + 256*w}')
    for n in range(4): a(f's_mov_b32 s{39+n}, {WS_PART + n*8*PHEAD}')
    a(f's_mov_b32 s45, {WS_RING}\ns_mov_b32 s46, {WS_RING+0x8000}\ns_lshl_b32 s54, s3, 14\ns_add_u32 s47, s54, {WS_KV + w*4096}\ns_add_u32 s58, s54, {WS_KV}')
    a(f's_lshl_b32 s54, s3, 12\ns_add_u32 s48, s54, {WS_KM + w*1024}\ns_mov_b32 s49, 400000\ns_mov_b32 s36, 0')
    sc = f2u(128**-0.5 * 1.4426950408889634)
    a(f's_mov_b32 s50, {sc}\ns_mov_b32 s51, {sc}\ns_mov_b32 s52, {(127-48)<<23}\ns_mov_b32 s53, {112<<23}\ns_lshl_b32 s57, s3, 2')
    if w < 2: a(f's_lshr_b32 s59, s3, 3\ns_lshl_b32 s59, s59, 11\ns_add_u32 s59, s59, {1024 if w == 0 else 0}\ns_and_b32 s60, s3, 7')
    elif w == 2: a('s_mov_b32 s59, 8192\ns_lshr_b32 s60, s3, 2\ns_and_b32 s55, s3, 3')
    if w < 3:
        red_addr(a, w, 7, 8, 9)
        a('s_and_b32 s54, s60, 1\ns_lshl_b32 s54, s54, 8\ns_lshr_b32 s61, s60, 1\ns_lshl_b32 s61, s61, 6\ns_add_u32 s54, s54, s61\ns_lshr_b32 s61, s3, 3\ns_lshl_b32 s61, s61, 10\ns_add_u32 s54, s54, s61\ns_add_u32 s54, s54, %d' % (4096 if w == 0 else 0))
        expr(a, 10, 8, [(1,1,512),(2,1,32),(0,1,16),(4,1,8),(5,1,4),(3,1,1<<30)], 's54', 9)
        if w == 2:
            a('s_lshr_b32 s54, s60, 2\ns_lshl_b32 s54, s54, 5\ns_bfe_u32 s61, s60, 0x10001\ns_lshl_b32 s61, s61, 9\ns_add_u32 s54, s54, s61\ns_and_b32 s61, s60, 1\ns_lshl_b32 s61, s61, 7\ns_add_u32 s54, s54, s61\ns_add_u32 s54, s54, 8192')
            expr(a, 10, 8, [(0,1,8),(1,1,256),(2,1,64),(4,1,16),(3,1,1<<30),(5,1,1<<28)], 's54', 9)
            a('v_xor_b32 v10, 0x10000000, v10')
            a('s_lshl_b32 s54, s55, 29\nv_or_b32 v10, s54, v10')
        a('v_mov_b64 v[12:13], -1\nv_mov_b64 v[14:15], -1')
        for sl in range(1):
            for n in range(4):
                a(f's_mov_b32 s54, {WS_PART + sl*PSLOT + n*8*PHEAD}\nbuffer_store_dwordx4 v[12:15], v7, {WS}, s54 offen sc1')
        for sl in range(4): a(f's_mov_b32 s54, {WS_RING + sl*RSLOT}\nbuffer_store_dword{"x2 v[12:13]" if w == 2 else " v12"}, v10, {WS}, s54 offen sc1')
        a(f'v_lshlrev_b32 v11, 4, v8\nds_write_b32 v11, v10 offset:{L_PUB + 4*w}')
        if w == 1: a(f's_add_u32 s57, s57, {WS_FLAG + 0x2000}\ns_and_b32 s58, s3, 3\ns_lshl_b32 s58, s58, 8\ns_add_u32 s58, s58, {WS_FLAG + 0x2000}\nv_and_b32 v11, 0x300, v11\nbuffer_store_dword v12, v11, {WS}, s57 offen sc1')
    else:
        expr(a, 16, 8, [(0,2,2),(2,1,1)], 0, 9)
        a('v_and_b32 v9, 15, v8\nv_cmp_lt_u32 vcc, 7, v9\nv_cndmask_b32 v9, v9, v16, vcc\nv_mov_b32 v10, 0x3f80\nv_mov_b32 v11, 0x3f800000')
        for r in range(4):
            a(f'v_mov_b32 v{12+r}, 0\nv_cmp_eq_u32 vcc, {2*r}, v9\nv_cndmask_b32 v{12+r}, v{12+r}, v10, vcc\nv_cmp_eq_u32 vcc, {2*r+1}, v9\nv_cndmask_b32 v{12+r}, v{12+r}, v11, vcc')
        a(f'v_lshlrev_b32 v11, 4, v8\nds_write_b128 v11, v[12:15] offset:{L_SEL}')
        for r in range(4): a(f'v_mov_b32 v{16+r}, 0x3f803f80')
        a(f'ds_write_b128 v11, v[16:19] offset:{L_ONE}')
    expr(a, 0, 8, [(4,2,64)], (w&1)*16, 9); expr(a, 1, 8, [(0,4,16)], 0, 9); a('v_xor_b32 v0, v0, v1')
    expr(a, 1, 8, [(4,1,8192),(5,1,32*8192)], 4*w*8192, 9); a('v_add_u32 v0, v0, v1')
    base = [(4,2,WREG),(0,1,8)]
    expr(a, 2, 8, [(1,1,32)], (8*(w>>1) + (w&1))*16, 9); expr(a, 1, 8, [(4,1,16),(2,2,64)], 0, 9); a('v_xor_b32 v2, v2, v1')
    expr(a, 1, 8, base + [(2,2,256)], L_W, 9); a('v_add_u32 v2, v2, v1')
    expr(a, 3, 8, [(1,1,16)], 2*w*16, 9); expr(a, 1, 8, [(3,1,32),(4,1,64)], 0, 9); a('v_xor_b32 v3, v3, v1')
    expr(a, 1, 8, base + [(2,2,128)], L_W, 9); a('v_add_u32 v3, v3, v1')
    expr(a, 5, 8, [(1,1,16),(3,1,32)], 8*w*16, 9); expr(a, 1, 8, [(2,1,64),(4,1,128)], 0, 9); a('v_xor_b32 v5, v5, v1')
    expr(a, 1, 8, base + [(2,1,512)], L_W, 9); a('v_add_u32 v5, v5, v1\nv_xor_b32 v6, 64, v5')
    expr(a, 1, 8, [(0,6,16)], L_W + WREG*w, 9)
    g1 = opt.get('g1', 28)
    ldd = f'buffer_load_dwordx4 v[8:11], off, {DBG}, s54 sc1 ;!\nbuffer_load_dwordx4 v[12:15], off, {DBG}, s54 offset:16 sc1 ;!'
    tch = f'buffer_load_dword v4, {WS}, s54 offen sc1 lds ;!'
    def flg(L):
        a('v_readfirstlane_b32 s54, v7')
        for b in range(4): a(f's_and_b32 s59, s54, {hex(0xff << 8*b)}\ns_cbranch_scc0 {L}')
        a(f's_mov_b32 s60, s58')
        if L[:3] == 'RFN': a(f'{L}:')
        for o in (0, 0x2000): a(f's_add_u32 s54, s60, {o}\n{tch}')
    q.extend([-1]*(8, 9, 8, 0)[w])
    for gi, g in enumerate(groups):
        a(f's_waitcnt vmcnt({q[::-1].index(gi)}) lgkmcnt(0)\ns_barrier')
        if gi == 3 and w == 0:
            a(f's_getreg_b32 s64, hwreg(HW_REG_XCC_ID,0,3)\ns_lshl_b32 s54, s64, 2\ns_add_u32 s54, s54, 128\nv_mov_b32 v8, 1\ns_mov_b64 exec, 1\nbuffer_atomic_add v8, off, {DBG}, s54 sc1\ns_mov_b64 exec, -1'); q.append(-1)
        if gi+3 < len(groups): dma(gi+3)
        if gi == 1: a('v_xor_b32 v3, 64, v2')
        if gi == 27:
            lane(a, 8)
            a('v_lshlrev_b32 v4, 7, v8'); expr(a, 5, 8, [(2,2,2304),(0,1,1152),(1,1,64),(4,2,16)], 0, 9)
            for d, ch in ((w*2048, w), (w*2048+1024, 4+w), (L_Q, 8)): a(f's_mov_b32 m0, {d}\ns_mov_b32 s54, {ch*128}\nbuffer_load_dwordx4 v5, s[{SM0}:{SM0+3}], s54 offen lds'); q.append(-1)
        if gi == g1:
            a(f's_mov_b32 s54, 128\n{ldd}'); q.extend([-1, -1])
            if w == 3: a(f'buffer_load_dword v5, off, {DBG}, s57 sc1 ;!'); q.append(-1)
        if gi == g1+4:
            L = a.lab('RSB'); E = a.lab('RSE'); C = a.lab('RSC')
            a(f'''s_branch {C}
{L}:
s_cmp_lt_u32 s49, 1
s_cbranch_scc1 {E}
s_sub_u32 s49, s49, 1
s_mov_b32 s54, 128
{ldd}
s_waitcnt vmcnt(0)
{C}:
@vmclear
v_add3_u32 v7, v8, v9, v10
v_add3_u32 v7, v7, v11, v12
v_add3_u32 v7, v7, v13, v14
v_add_u32 v7, v7, v15
v_cmp_gt_u32 vcc, 32, v7
s_cbranch_vccnz {L}
{E}:
v_max3_u32 v8, v8, v9, v10
v_max3_u32 v8, v8, v11, v12
v_max3_u32 v8, v8, v13, v14
v_max_u32 v8, v8, v15
v_readfirstlane_b32 s64, v8''')
            a(f's_mov_b32 m0, {L_K + w*512}')
            if opt.get('rt', 1) and w == 2: a(f'v_and_b32 v4, 0x780, v4\ns_lshl_b32 s54, s3, 11\ns_add_u32 s54, s54, {WS_RING}\n{tch}'); q.append(-1)
            if opt.get('pt', 0) and w < 2: a(f's_sub_u32 s54, s37, {1024*w}\n{tch}'); q.append(-1)
            if w == 3: a(f'v_mov_b32 v7, v5\ns_mov_b32 s60, {WS_RING}'); flg(a.lab('RFN')); q.extend([-1]*2)
        for T in range(2):
            if g[0] in 'qkv': key, ad, ex = (g[0], T, g[1]), 2+T, 0
            elif g[0] == 'o': key, ad, ex = ('o', g[1], 2*g[2]+T), 5+T, 0
            else: key, ad, ex = ('h', T, 0), 3, 512*T
            kind, idx = loc[key]
            dst = idx if kind == 'R' else (8 if idx < 10 else 16 + 8*(idx-10))
            for p in range(4): a(f'ds_read_b64_tr_b16 {X(dst+2*p,2)}, v{ad} offset:{(5+gi%4)*4096 + p*1024 + ex}')
            if kind == 'L' and idx < 10:
                assert gi < 27
                a(f'ds_write_b128 v1, v[8:11] offset:{idx*2048}\nds_write_b128 v1, v[12:15] offset:{idx*2048+1024}')
    a('s_waitcnt lgkmcnt(0)\ns_barrier')
    for idx in range(10, 18):
        r = 16 + 8*(idx-10)
        a(f'ds_write_b128 v1, {V(r,4)} offset:{idx*2048}\nds_write_b128 v1, {V(r+4,4)} offset:{idx*2048+1024}')
    if w == 3:
        L = a.lab('RF'); E = a.lab('RFE')
        a(f'''s_cmp_eq_u32 s60, s58
s_cbranch_scc1 {E}
{L}:
s_cmp_lt_u32 s49, 1
s_cbranch_scc1 {E}
s_sub_u32 s49, s49, 1
buffer_load_dword v7, off, {DBG}, s57 sc1
s_waitcnt vmcnt(0)''')
        flg(L)
        a(f'{E}:\ns_lshl_b32 s57, s3, 7\ns_add_u32 s57, s57, {WS_FLAG}')
    lane(a, 8)
    a('v_lshlrev_b32 v0, 4, v8\nv_lshrrev_b32 v6, 4, v8\nv_xor_b32 v6, v6, v8\nv_lshlrev_b32 v6, 3, v6')
    for r, o in ((MA, w*2048), (MB, w*2048+1024), (M8, L_Q)): a(f'ds_read_b128 {V(r,4)}, v0 offset:{o}')
    expr(a, 2, 8, [(1,1,0xAAAA)], 0x4444, 9)
    expr(a, 4, 8, [(4,2,256),(2,2,32),(0,1,16)], 0, 9)
    expr(a, 3, 8, [(1,1,128)], 'v4', 9)
    expr(a, 5, 8, [(0,4,32),(4,2,8)], 0, 9); expr(a, 10, 8, [(2,2,8)], 0, 9); a('v_xor_b32 v5, v5, v10')
    if w < 3: red_addr(a, w, 7, 8, 9)

def red_addr(a, w, d, ln, tmp):
    a('s_lshl_b32 s54, s60, 7\ns_add_u32 s54, s54, s59')
    expr(a, d, ln, [(3,3,PHEAD),(0,3,16)], 's54', tmp)
    if w == 2: a(f's_lshl_b32 s54, s55, 29\nv_or_b32 v{d}, s54, v{d}')

def zero(b): return [f'v_mov_b64 {V(b,2)}, 0', f'v_mov_b64 {V(b+2,2)}, 0']
def ldw(buf, idx): return [f'ds_read_b128 {V(buf,4)}, v1 offset:{idx*2048}', f'ds_read_b128 {V(buf+4,4)}, v1 offset:{idx*2048+1024}']
def cvt(d, s): return f'v_cvt_pk_bf16_f32 v{d}, v{s}, v{s+1}'
def padd(b): return f'v_pk_add_f32 {V(b,2)}, {V(b,2)}, {V(b+2,2)}'
DP = 'row_mask:0xf bank_mask:0xf'
DENSE = {
 'sx0': f'v_mfma_f32_16x16x32_bf16 {V(G4,4)}, {V(MA,4)}, {V(G0,4)}, 0',
 'sx1': f'v_mfma_f32_16x16x32_bf16 {V(G4,4)}, {V(N[0],4)}, {V(G1,4)}, {V(G4,4)}',
 'sm0': f'v_mfma_f32_16x16x32_bf16 {V(M8,4)}, {V(G2,4)}, {V(G0,4)}, 0',
 'sm1': f'v_mfma_f32_16x16x32_bf16 {V(M8,4)}, {V(G3,4)}, {V(G1,4)}, {V(M8,4)}',
 'zx': f'v_mfma_f32_16x16x32_bf16 {V(G3,4)}, {V(MB,4)}, {V(N[0],4)}, 0',
 'zm': f'v_mfma_f32_16x16x16_bf16 {V(G3,4)}, {V(MB,2)}, {V(MA,2)}, {V(G3,4)}',
 'px0': f'v_mfma_f32_16x16x32_bf16 {V(X0,4)}, {V(N[1],4)}, {V(N[0],4)}, 0',
 'px1': f'v_mfma_f32_16x16x32_bf16 {V(X1,4)}, {V(N[2],4)}, {V(N[0],4)}, 0',
 'pm0': f'v_mfma_f32_16x16x16_bf16 {V(X0,4)}, {V(G4+2,2)}, {V(MA,2)}, {V(X0,4)}',
 'pm1': f'v_mfma_f32_16x16x16_bf16 {V(X1,4)}, {V(G4+2,2)}, {V(MA+2,2)}, {V(X1,4)}',
}
def step(a, w, mode, l, loc, n, us, opt):
    sf = ' sc1' if mode else ''
    P = f'R{w}{mode}'
    ns = {i: [] for i in range(len(l))}; vs = {i: [] for i in range(len(l))}
    def put(d, s0, lst, per=1):
        for i, x in enumerate(lst): d[s0 + i//per].append(x)
    lidx = {i: loc[e[0]][1] for i, e in enumerate(l) if not isinstance(e, str) and e[3] is not None}
    pos = lambda ch: (ch&3)*2048 + (ch>>2)*1024
    add2 = lambda b: [f'v_add_f32 v{b}, v{b}, v{b+2}', f'v_add_f32 v{b+1}, v{b+1}, v{b+3}']
    tag = lambda r: f'v_and_or_b32 v{r}, v{r}, -2, s65'
    rdc = lambda r, c: f'ds_read_b128 {V(r,4)}, v0 offset:{pos(c)}'
    x2 = "x2" if w == 2 else ""
    g = opt.get
    b1, bw, cw, b2, bq, bk, bp, sx, sm, zm = g('b1', 1), g('bw', 19), g('cw', 21), g('b2', 24), g('bq', 41), g('bk', 51), g('bp', 55), g('sx', 45), g('sm', 55), g('zm', 60)
    last = lambda key: max(i for i, e in enumerate(l) if not isinstance(e, str) and e[0][:len(key)] == key)
    ns[b1] += ['s_barrier', rdc(N[0], n[0])]; ns[b1+1] += [rdc(N[1], n[1]), rdc(N[2], n[2])]
    T = N[3]
    wrb = f'ds_write_b128 v0, {V(MB,4)} offset:{w*2048+1024}'
    chb = [f'v_max3_u32 v{T}, v{MB}, v{MB+1}, v{MB+2}', f'v_max3_u32 v{T}, v{MB+3}, v{M8}, v{T}', f'v_max3_u32 v{T+1}, v{M8+1}, v{M8+2}, v{M8+3}', f'v_max_u32 v{T}, v{T+1}, v{T}', f'v_cmp_lt_u32 vcc, s66, v{T}']
    for i, r, ad, of in ((6, MA, 3, 0), (12, N[0], 3, 1024), (18, N[1], 0, 2048), (24, N[2], 0, 3072)):
        ns[i].append(f'buffer_load_dwordx4 {V(r,4)}, v{ad}, {WS}, s47 offen offset:{of} sc1')
    ns[bw] += [wrb]; vs[bw] += chb[:1]; vs[cw] += chb[1:3]; vs[cw+1] += chb[3:]; vs[min(cw+2, 23)] += [f's_cbranch_vccnz {P}PB', f'{P}B:']
    ns[b2] += ['s_barrier', rdc(N[3], n[3])]; ns[max(b2+1, 24)] += [rdc(N[4], n[4]), rdc(N[5], n[5])]
    prev = {}
    for u in sorted(lidx):
        bf = l[u][3]
        if u > 3: put(ns, g('ls', {}).get(u, {64: 58, 77: 70, 79: 72, 81: 74}.get(u, prev[bf] + 1)), ldw(bf, lidx[u]))
        prev[bf] = u
    if w < 3:
        vs[3].append(f'v_mov_b64 {V(T,2)}, -1')
        ns[7].append(f'buffer_store_dword{x2} {V(T, 2 if w == 2 else 1)}, v{G4}, {WS}, s46 offen{sf}')
    ns[14].append(f'ds_read_b64_tr_b16 {V(G4,2)}, v6 offset:{L_K + w*512}')
    ns[g('kms', 30) + g('kst', 2)*w] += [f'buffer_store_dwordx4 {V(G4,4)}, v0, {WS}, s48 offen' + opt.get('kmf', ' sc1')]
    ns[47] += ['s_add_u32 s48, s48, %d' % opt.get('kmi', 0x20000)]; ns[26] += ['s_add_u32 s47, s47, %d' % opt.get('kvi', 0x80000)]
    ns[27] += ['s_add_u32 s45, s45, 0x4000']; ns[31] += ['s_bitset0_b32 s45, 16', 's_add_u32 s44, s45, 8192']; ns[33] += [f's_add_u32 s43, s45, {w*1024}', f's_add_u32 s63, s45, {4096 + w*1024}']
    ns[38] += ['s_xor_b32 s46, s45, 0x8000', 's_and_b32 s65, s36, 1']
    tch = opt.get('touch', 1)
    if w == 3:
        vs[3].append('v_readfirstlane_b32 s54, v7 ;!'); vs[13].append(f'v_lshlrev_b32 v7, 3, v0 ;!')
        ns[6] += ['s_lshr_b32 s54, s54, s60']; ns[7] += ['s_and_b32 s54, s54, 0xff']
        ns[8] += ['s_cmp_gt_u32 s54, s61']; ns[9] += [f's_cbranch_scc0 {P}FL']*(1-opt.get('nofl', 0)) + [f'{P}FR:']
        ts = g('ts', 26)
        if tch: put(ns, ts, [f'buffer_load_dword v7, v7, {WS}, s59 offen sc1 ;!', f'buffer_load_dword v7, v7, {WS}, s62 offen sc1 ;!'])
        ns[ts+4] += [f'buffer_load_dword v7, off, {WS}, s57 sc1 ;!']
    qpost = lambda b, d: [f'v_mul_f32 v{b}, s50, v{b}', f'v_mul_f32 v{b+1}, s50, v{b+1}', f'v_fmac_f32 v{b}, s50, v{b+2}', f'v_fmac_f32 v{b+1}, s50, v{b+3}', cvt(d, b)]
    put(vs, 32, qpost(G0, G0), 2); put(vs, 35, qpost(G1, G0+1) + [f'ds_write_b64 v5, {V(G0,2)} offset:{L_Q + w*512}'], g('qp', 3))
    trq = [f'ds_read_b64_tr_b16 {V(G0+2*u,2)}, v6 offset:{L_Q + u*512}' for u in range(4)]
    ns[bq] = ['s_barrier'] + trq[:2] + ns[bq]; ns[bq+1] = trq[2:] + ns[bq+1]
    k0, k1 = last(('k', 0)), last(('k', 1))
    put(vs, k0+2, add2(G2) + [cvt(G2, G2)]); put(vs, k1+2, add2(G3) + [cvt(G2+1, G3), f'ds_write_b64 v5, {V(G2,2)} offset:{L_K + w*512}'], g('kp', 2))
    spost = lambda b: [f'v_add_f32_dpp v{b}, v{b+2}, v{b} quad_perm:[2,3,0,1] {DP}', f'v_add_f32_dpp v{b+1}, v{b+3}, v{b+1} quad_perm:[2,3,0,1] {DP}',
                       f'v_exp_f32_dpp v{b+2}, v{b} quad_perm:[0,1,0,1] {DP}', f'v_exp_f32_dpp v{b+3}, v{b+1} quad_perm:[0,1,0,1] {DP}']
    put(vs, sx+3, spost(G4) + [cvt(G4+2, G4+2), f'ds_write_b32 v0, v{G4+2} offset:{L_P + 4*w}'], 2)
    trk = [f'ds_read_b64_tr_b16 {V(G2+2*u,2)}, v6 offset:{L_K + u*512}' for u in range(4)]
    ns[bk] = ['s_barrier'] + trk[:2] + ns[bk]; ns[bk+1] = trk[2:] + ns[bk+1]
    put(vs, sx+6, [f'v_mov_b32 v{MA+1}, 0', f'v_mov_b32 v{MA+2}, 0'])
    ns[last(('v', 1, 4+w))+1].append(f'ds_read_b128 {V(MB,4)}, v0 offset:{L_ONE}')
    ns[bp] = ['s_barrier']*(bp != bk) + ns[bp] + [f'ds_read_b128 {V(N[0],4)}, v0 offset:{L_P}']
    put(vs, sm+g('mo', 2), spost(M8) + [cvt(MA, M8+2), cvt(MA+3, M8+2)], 2)
    ns[56].append('s_cmp_eq_u32 s36, 63')
    v0_, v1_ = last(('v', 0)), last(('v', 1))
    put(vs, v0_+g('vo', 2), add2(W0) + [cvt(G4+2, W0)], 2); put(vs, v1_+2, add2(W1) + [cvt(G4+3, W1)], 2)
    ns[61].append(f's_cbranch_scc1 {P}TAIL')
    vs[61] += zero(G2); vs[zm+2] += [f'v_rcp_f32 v{G3}, v{G3}', f'v_subrev_u32 v{G3+2}, s52, v{G3+2}']
    mul = [f'v_pk_mul_f32 {V(X0+2*i,2)}, {V(X0+2*i,2)}, {V(G3,2)} op_sel_hi:[1,0]' for i in range(4)]
    co = [cvt(M8+i, X0+2*i) for i in range(4)]
    if zm == 61: vs[62] += zero(W0)
    vs[63] += [f'v_cmp_le_u32 vcc, s53, v{G3+2}'] + zero(W0)*(zm == 60) + [f'{P}RJ:'] + mul[:2] + [f's_cbranch_vccnz {P}FB'] + co[:2] + mul[2:] + co[2:]
    vs[63] += [f'ds_write_b128 v4, {V(M8,4)} offset:{L_Q + (w>>1)*1024 + (w&1)*128}', 's_waitcnt lgkmcnt(1)']
    vs[64] += zero(W1); vs[65] += zero(G1); vs[66] += zero(G0)
    ro = [f'ds_read_b128 {V(r,4)}, v4 offset:{L_Q + (u>>1)*1024 + (u&1)*128}' for r, u in zip((MA, MB, G3), us)]
    ns[opt.get('bo', 66)] += ['s_barrier'] + ro
    put(ns, 68, [f'ds_read_b128 {V(X0+4*j,4)}, v3 offset:{L_Q + j*1024}' for j in range(2)])
    put(vs, 72, [cvt(G2, G2), cvt(G2+1, G2+2), tag(G2)]); vs[75] += [cvt(G2+2, W0), cvt(G2+3, W0+2)]
    (vs[75] if g('ast') is None else ns[76 + g('ast')*w]).append(f'buffer_store_dwordx4 {V(G2,4)}, v0, {WS}, s37 offen{sf}')
    put(vs, 77, add2(G0) + [cvt(M8+1, G0), tag(M8+1)]); vs[81] += [cvt(W1, W1), cvt(W1+1, W1+2), tag(W1)]
    vs[68].append(f'v_lshrrev_b32 v{M8}, 2, v0')
    hold = opt.get('hold', 0)
    sth = f'buffer_store_dword v{M8+1}, v{M8}, {WS}, s38 offen{sf}'; stb = f'buffer_store_dwordx4 {V(W1,4)}, v0, {WS}, s37 offen offset:1024{sf}'
    if not hold & 1: ns[81].append(sth)
    hs = [stb]*(hold>>1) + [sth]*(hold&1); XB = '\n'.join(['s_barrier ;!'] + hs)
    if w < 3: ns[76].append(f'ds_read_b32 v{G4}, v0 offset:{L_PUB + 4*w}')
    ns[77].append('s_add_u32 s36, s36, 1')
    nx3 = ['s_cmp_gt_u32 s36, 1', 's_addc_u32 s59, s36, 1', 's_min_u32 s59, s59, 63', 's_lshl_b32 s60, s59, 3', 's_lshr_b32 s61, s59, 2', 's_lshl_b32 s59, s59, 19', 's_add_u32 s59, s59, s58', 's_add_u32 s62, s59, 8192'] if w == 3 else []
    RB = [G0, G1, G2, G3]
    rld = [f'buffer_load_dwordx4 {V(RB[i],4)}, v7, {WS}, s{39+i} offen sc1 ;!' for i in range(4)]
    BUD = 's_sub_u32 s49, s49, 1\ns_cselect_b32 s49, 0, s49\ns_cselect_b32 s66, -1, -2\ns_cselect_b32 s67, 1, 0'
    pre = ldw(PA, lidx[0]) + ldw(PB, lidx[1]) + ldw(PC, lidx[2]) + ldw(X0, lidx[3])
    zs = zero(G0) + zero(G1) + zero(G2) + zero(G3) + zero(W0) + zero(W1)
    wra = f'ds_write_b128 v0, {V(MA,4)} offset:{w*2048}'
    poll = f'buffer_load_dwordx4 {V(MA,4)}, v0, {WS}, s43 offen sc1 ;!'
    ldb = [f'buffer_load_dwordx4 {V(MB,4)}, v0, {WS}, s63 offen sc1', f'buffer_load_dwordx4 {V(M8,4)}, v0, {WS}, s44 offen sc1']
    nop = lambda k: ['s_nop 3']*k
    lb = opt.get('lb')
    if lb is not None:
        ns[0].append('s_cmp_eq_u32 s36, 0'); ns[lb] += [f's_cbranch_scc1 {P}LB'] + ldb + [f'{P}LB:']
    fs = opt.get('fs'); F = N[3]
    fpoll = f'buffer_load_ushort v{F+3}, v{F+2}, {WS}, s58 offen sc1 ;!'
    if fs is not None and w == 1:
        ns[30] += ['s_add_u32 s59, s36, 1', 's_mul_i32 s60, s59, 0x10001']
        vs[67] += [f'v_lshrrev_b32 v{F+2}, 3, v0']; vs[64] += [f'v_mov_b32 v{F}, s60']; vs[65] += [f'v_and_b32 v{F+1}, 0x300, v0']
        ns[fs] += [f'buffer_store_dword v{F}, v{F+1}, {WS}, s57 offen{sf}']
        for i in opt.get('fp', (69, 72, 75, 78)): ns[i] += [fpoll]
    spec = opt.get('spec', 0); ec = opt.get('ec')
    if ec is not None:
        T = G4+1
        ns[ec] += [f's_cbranch_scc1 {P}EW', 's_waitcnt vmcnt(0)', f'{P}EW:']
        ns[bw].insert(0, 's_waitcnt vmcnt(%d)' % sum(x.startswith('buffer_') for i in range(ec+2, bw) for x in ns[i] + vs[i]))
        c_ = [f'v_max3_u32 v{T}, v{MB}, v{MB+1}, v{MB+2} ;!', f'v_max3_u32 v{T}, v{MB+3}, v{M8}, v{T} ;!', f'v_max3_u32 v{T}, v{M8+1}, v{M8+2}, v{T} ;!', f'v_max_u32 v{T}, v{M8+3}, v{T} ;!', f'v_cmp_lt_u32 vcc, s66, v{T}']
        vs[ec] += c_[:2]; vs[ec+1] += c_[2:] + [f's_cbranch_vccnz {P}EC', f'{P}ER:']
    st = opt.get('st', [])
    def stamp(p):
        if p in st: a(f's_memtime s[{76+2*st.index(p)}:{77+2*st.index(p)}] ;!')
    if bp != bk:
        fl = [x for i in range(bk) for x in ns[i] + vs[i]]; kw = max(i for i, x in enumerate(fl) if x.startswith('ds_write_b64'))
        ns[bk][0:1] = ['s_waitcnt lgkmcnt(%d)' % sum(x.startswith('ds_') for x in fl[kw+1:]), 's_barrier ;!']
    a('\n'.join(pre + zs + nx3 + [f'ds_read_b32 v{G4}, v0 offset:{L_PUB + 4*min(w, 2)}', 's_mov_b32 s66, -1']))
    if opt.get('prof'): a('s_memtime s[70:71]\ns_waitcnt lgkmcnt(0)\ns_mov_b32 s72, s49')
    if opt.get('drop') is not None: a('s_mov_b32 s49, 0\ns_mov_b32 s53, -1')
    if opt.get('prof'):
        for k in range(6): a(f's_mov_b32 s{90+k}, 0\ns_mov_b32 s{76+2*k}, s70')
    T = G4+1
    chk = f'v_max3_u32 v{T}, v{MA}, v{MA+1}, v{MA+2}\nv_max_u32 v{T}, v{MA+3}, v{T}\n{wra}\nv_cmp_lt_u32 vcc, s66, v{T}'
    a('s_waitcnt lgkmcnt(0)')
    if w < 3 and not mode and opt.get('rr', 0):
        a(f'v_mov_b64 {V(G4+2,2)}, -1')
        for sl in range(4): a(f's_mov_b32 s54, {WS_RING + sl*RSLOT}\nbuffer_store_dword{x2} {V(G4+2, 2 if w == 2 else 1)}, v{G4}, {WS}, s54 offen')
    def hclk(R=G4+1):
        if opt.get('hst') == 2 and w == 3:
            L = a.lab('HC'); k = opt.get('hk', 0)
            a(f's_memtime s[90:91]\ns_load_dwordx2 s[98:99], s[0:1], 128\ns_lshl_b32 s94, s3, 8\ns_or_b32 s94, s94, s36\ns_lshr_b32 s95, s94, {k}\ns_and_b32 s94, s94, {(1<<k)-1}\ns_lshl_b32 s94, s94, 8\ns_or_b32 s94, s94, s95\ns_cmp_lt_u32 s94, 16\ns_waitcnt lgkmcnt(0)\ns_cbranch_scc0 {L}\ns_lshl_b32 s94, s94, 2\ns_sub_u32 s90, s90, s68\nv_mov_b32 v{R+1}, s94\nv_mov_b32 v{R}, s90\nglobal_store_dword v{R+1}, v{R}, s[98:99] sc1\n{L}:')
    hclk()
    if opt.get('hst') == 3 and w == opt.get('hw', 0):
        R = G4+1
        a(f's_memtime s[90:91]\ns_load_dwordx2 s[98:99], s[0:1], 128\ns_lshl_b32 s94, s3, 1\ns_waitcnt lgkmcnt(0)\ns_sub_u32 s90, s90, s68\nv_mov_b32 v{R+1}, s94\nv_mov_b32 v{R}, s90\nglobal_store_short v{R+1}, v{R}, s[98:99] sc1')
    a(f'''s_branch {P}STEP
@loop {P}
{P}TOP:
{poll}
{BUD}
{P}TW:
@vmclear
s_waitcnt vmcnt({opt.get('depth', 1)}) lgkmcnt(0)
{chk}
s_cbranch_vccnz {P}TOP''')
    a('\n'.join(['s_cmp_eq_u32 s36, s36'] if ec is not None else ldb if lb is None or opt.get('lb2') else []) + f'\n{P}STEP:')
    stamp('top')
    for i, e in enumerate(l):
        if isinstance(e, str): a(DENSE[e])
        else:
            kind, idx = loc[e[0]]
            a(f'v_smfmac_f32_16x16x64_bf16 {V(e[2],4)}, {V(e[1],4)}, {X(idx if kind == "R" else e[3], 8)}, v2')
        if i != 1: stamp(i)
        a('\n'.join(x for x in ns[i] + vs[i] if not any(x.startswith(p) for p in opt.get('drop', []))))
        if i == 1: stamp(i)
    sel = f'ds_read_b128 {V(M8,4)}, v0 offset:{L_SEL}'
    al = opt.get('al', 'ack0'); d1 = opt.get('d1', (0, 0, 0)); xb = opt.get('xb', 'early')
    a(f'{cvt(W1+2, G1)}\n{cvt(W1+3, G1+2)}')
    if w == 1 and al == 'pre': a('\n'.join(nop(d1[1]) + rld))
    else: a('\n'.join(nop(opt.get('bd', 0))))
    a(('' if hold & 2 else stb) + f'\n{P}HOP:')
    stamp('hop')
    def reduce(beh, mid=()):
        bo = lambda d, x, y: f'v_bitop3_b32 v{d}, v{x}, v{y}, s65 bitop3:0x7e'
        T = G0; T2 = G1
        for i in range(4):
            a(f's_waitcnt vmcnt({3-i+beh + (len(mid) if i else 0)})')
            if i == 0:
                stamp('ld')
                if w == 1 and xb == 'bar': a(f's_barrier ;!\n{P}P1X:')
            o2 = (RB[i], M8) if w < 2 else (M8, RB[i])
            a(f'v_mfma_f32_16x16x32_bf16 {V(MB,4)}, {V(o2[0],4)}, {V(o2[1],4)}, ' + ('0' if i == 0 else V(MB,4)))
            if i == 0: a('\n'.join(mid) + '\n@vmclear')
            if i == 1: a(bo(T, RB[0], RB[1]))
            elif i == 3: a(bo(T2, RB[2], RB[3]))
        if w == 2 and mode:
            for i in range(4):
                for j in range(1, 4): a(f'v_bitop3_b32 v{T}, v{T}, v{RB[i]+j}, s65 bitop3:0xf6')
        a(f'v_bitop3_b32 v{T}, v{T}, v{T2}, 1 bitop3:0xa8\nv_cmp_lt_u32 vcc, s67, v{T}\ns_cbranch_vccnz {P}R1')
        if w < 2: a(f'v_permlane32_swap_b32 v{MB}, v{MB+2}\nv_permlane32_swap_b32 v{MB+1}, v{MB+3}\n' + '\n'.join(add2(MB) + [cvt(MB, MB)]))
        else: a('\n'.join([f'v_add_f32_dpp v{MB+i}, v{MB+i}, v{MB+i} row_ror:8 {DP}' for i in range(4)] + [cvt(MB, MB), cvt(MB+1, MB+2)]))
        a(f'buffer_store_dword{x2} {V(MB, 2 if w == 2 else 1)}, v{G4}, {WS}, s45 offen{sf}')
        stamp('p1')
    def endst(to):
        if spec: to = a.lab(P + 'SP')
        if st: a('s_memtime s[74:75] ;!')
        if st and 'tl' in opt:
            n_ = len(st)
            a(f's_waitcnt lgkmcnt(0)\ns_sub_u32 s88, s36, {opt["tl"]}\ns_cmp_lt_u32 s88, {20//n_}\ns_cbranch_scc0 {to}\ns_mul_i32 m0, s88, {n_}\ns_nop 0')
            for k in range(n_): a(f's_movreld_b32 s{16+k}, s{76+2*k}')
        elif st:
            a('s_waitcnt lgkmcnt(0)')
            for k in range(len(st)): a(f's_sub_u32 s88, s74, s{76+2*k}\ns_add_u32 s{90+k}, s{90+k}, s88\ns_mov_b32 s{76+2*k}, s74')
        if not spec: a(f's_branch {to}'); return
        a(f'{to}:\n@reset\n' + '\n'.join([poll]*(spec-2) + nop(opt.get('d3', 0)) + [x + ' ;!' for x in ldb]) + f'\n{BUD}')
        for i in range(spec): a(f'@vmclear\ns_waitcnt vmcnt({spec+1-i}) lgkmcnt(0)\n{chk}\ns_cbranch_vccz {P}STEP')
        a(f's_branch {P}TOP')
    xf = opt.get('xf', 0)
    pf = opt.get('pf', (4, 0, 0, 0))
    def plain(k=0):
        a('s_barrier ;!'); stamp('y')
        sp_ = nop(opt.get('sp', 0)); r = pre[k:]; h = len(r)//2; z0 = opt.get('z0', 8)
        a('\n'.join(nop(opt.get('d2', 0)) + zs[:z0] + [poll] + r[:h] + zs[z0:6+z0//2] + sp_ + ([poll] if opt.get('depth', 1) > 1 else []) + r[h:] + zs[6+z0//2:] + sp_))
    if w == 1:
        if fs is not None:
            a(f'{P}F1:\nv_cmp_ne_u32 vcc, s59, v{F+3} ;!\ns_cbranch_vccz {P}F2\n{fpoll}\ns_sub_u32 s49, s49, 1\ns_cselect_b32 s49, 0, s49\ns_waitcnt vmcnt(8)\ns_cbranch_scc0 {P}F1\n{P}F2:')
            stamp('f')
        if al[:3] == 'ack': a('s_waitcnt vmcnt(%s)' % (al[3:] or 2))
        if al != 'pre': a('\n'.join(nop(d1[1]) + pre[:pf[1]] + rld))
        if xf: a(XB)
        a(f'{sel}\n{BUD}\n@vmclear\n{P}P1:'); reduce(1 if al == 'pre' else len(hs)); plain(pf[1]); a(f'@end {P}'); endst(f'{P}TOP')
    elif w == 3:
        a('\n'.join(nx3))
        a(f's_cmp_eq_u32 s36, 2\ns_cbranch_scc0 {P}X3\nv_lshlrev_b32 v{MB}, 3, v0\ns_add_u32 s54, s58, 0x180000\nbuffer_load_dword v{MB+1}, v{MB}, {WS}, s54 offen sc1 ;!\ns_add_u32 s54, s58, 0x182000\nbuffer_load_dword v{MB+1}, v{MB}, {WS}, s54 offen sc1 ;!\n@vmclear\n{P}X3:')
        hclk(MB+2)
        if opt.get('clk'): a(f's_memtime s[90:91]\ns_memrealtime s[92:93]\ns_lshl_b32 s94, s3, 7\ns_add_u32 s94, s94, s36\ns_lshl_b32 s94, s94, 3\ns_add_u32 s94, s94, 0x220000\ns_waitcnt lgkmcnt(0)\nv_mov_b32 v{G0}, s90\nv_mov_b32 v{G0+1}, s92\nbuffer_store_dwordx2 {V(G0,2)}, off, {WS}, s94')
        if xb == 'bar' or xf: a(XB)
        plain(); a(f'@end {P}'); endst(f'{P}TOP')
    elif xb == 'early':
        if w == 2: a(f's_cmp_lg_u32 s55, 0\ns_cbranch_scc1 {P}NQ')
        if hold: a(XB)
        a(f'{sel}\n{BUD}\ns_waitcnt vmcnt(%d)' % (63 if xf == 2 else 0 if w == 0 else opt.get('ah', 0)))
        if xf and not hold: a(XB)
        a('\n'.join(nop(d1[w]) + pre[:pf[w]] + rld + ['@vmclear', f'{P}P1:'])); reduce(0); plain(pf[w]); a(f'@end {P}'); endst(f'{P}TOP')
    else:
        if w == 2: a(f's_cmp_lg_u32 s55, 0\ns_cbranch_scc1 {P}NQ')
        if hold: a(XB)
        a('\n'.join([sel] + pre[pf[w]:] + [BUD]))
        if xb == 'ack': a('s_waitcnt vmcnt(%d)' % (0 if w == 0 else opt.get('ah', 0)))
        if (xb == 'bar' or xf) and not hold: a('s_barrier ;!')
        a('\n'.join(nop(d1[w]) + pre[:pf[w]] + rld + ['s_barrier ;!'])); stamp('y')
        a('\n'.join(nop(opt.get('d2', 0)) + [poll, '@vmclear', f'{P}P1:'])); reduce(1, [poll] if opt.get('depth', 1) > 1 else [])
        a('\n'.join(zs) + f'\n@end {P}'); endst(f'{P}TW')
    T = N[3]
    a(f'''@reset
{P}PB:
{ldb[0]} ;!
{ldb[1]} ;!
{BUD}
@vmclear
s_waitcnt vmcnt({opt.get('pbd', 0)})
''' + '\n'.join(chb) + f'''
{wrb}
s_cbranch_vccnz {P}PB
s_waitcnt lgkmcnt(0)
s_branch {P}B''')
    if ec is not None: a(f'@reset\n{P}EC:\n{ldb[0]} ;!\n{ldb[1]} ;!\ns_branch {P}ER')
    if w < 3: a(f'@reset\n{P}R1:\n' + '\n'.join(rld) + f'\n{BUD}\ns_waitcnt vmcnt(0)\ns_branch {P}P1' + ('X' if w == 1 and xb == 'bar' else ''))
    if w == 2:
        a(f'@reset\n{P}NQ:')
        if xb == 'bar' or xf: a(XB)
        plain(); endst(f'{P}TOP')
    a(f'''@reset
{P}TAIL:
s_waitcnt lgkmcnt(0)
ds_read_b64_tr_b16 {V(G4,2)}, v6 offset:{L_K + w*512}
buffer_store_dwordx4 {V(G4,4)}, v0, {WS}, s48 offen sc1''')
    if opt.get('hst') == 1: a(f's_mov_b32 s81, {mode+1}'); hstamps(a, 0, [(0,68),(13,82),(2,70),(3,78),(11,81)], w)
    elif opt.get('prof'):
        a(f'''s_memtime s[74:75]
s_waitcnt lgkmcnt(0)
s_sub_u32 s74, s74, s70
s_sub_u32 s70, s70, s68
s_sub_u32 s72, s72, s49
v_mov_b32 v8, s74
v_mov_b32 v9, s70
v_mov_b32 v10, s72
v_mov_b32 v11, {mode}
s_lshl_b32 s54, s3, 6
s_add_u32 s54, s54, {0x200000 + w*16}
buffer_store_dwordx4 v[8:11], off, {WS}, s54
s_add_u32 s54, s54, 0x1000
v_mov_b32 v12, s90
v_mov_b32 v13, s91
v_mov_b32 v14, s92
v_mov_b32 v15, s93
buffer_store_dwordx4 v[12:15], off, {WS}, s54''')
    if 'tl' in opt:
        a(f's_lshl_b32 s54, s3, 9\ns_add_u32 s54, s54, {0x210000 + w*128}')
        a(f'''s_memtime s[76:77]
s_memrealtime s[78:79]
s_mov_b32 s90, 0
s_mov_b32 s91, 0
s_mov_b32 s92, 0
s_waitcnt lgkmcnt(0)
{P}CAL:
s_memtime s[80:81]
s_memrealtime s[82:83]
s_waitcnt lgkmcnt(0)
s_sub_u32 s80, s80, s76
s_sub_u32 s82, s82, s78
s_add_u32 s90, s90, s80
s_add_u32 s91, s91, s82
s_add_u32 s92, s92, 1
s_cmp_lt_u32 s92, 256
s_cbranch_scc1 {P}CAL
v_mov_b32 v40, s76
v_mov_b32 v41, s78
v_mov_b32 v42, s90
v_mov_b32 v43, s91''')
        for k in range(20): a(f'v_mov_b32 v{20+k}, s{16+k}')
        for k in range(6): a(f'buffer_store_dwordx4 {V(20+4*k,4)}, off, {WS}, s54 offset:{16*k}')
    a('s_waitcnt vmcnt(0)\ns_endpgm')
    a(f'''@reset
{P}FB:
s_waitcnt vmcnt(0) lgkmcnt(0)
ds_write_b64 v6, {V(G4,2)} offset:{L_Q + w*512}
s_barrier''')
    for u in range(4): a(f'ds_read_b64 {V(X0+2*u,2)}, v6 offset:{L_Q + u*512}')
    t = G3
    a(f'''s_waitcnt lgkmcnt(0)
s_barrier
v_max3_f32 v{t}, v{X0}, v{X0+1}, v{X0+2}
v_max3_f32 v{t}, v{t}, v{X0+3}, v{X0+4}
v_max3_f32 v{t}, v{t}, v{X0+5}, v{X0+6}
v_max3_f32 v{t}, v{t}, v{X0+7}, v{M8}
v_max_f32 v{t}, v{t}, v{M8+1}
v_mov_b32 v{t+1}, v{t}
v_permlane16_swap_b32 v{t}, v{t+1}
v_max_f32 v{t}, v{t}, v{t+1}
v_mov_b32 v{t+1}, v{t}
v_permlane32_swap_b32 v{t}, v{t+1}
v_max_f32 v{t}, v{t}, v{t+1}''')
    rs = [X0+i for i in range(8)] + [M8, M8+1]
    for r in rs: a(f'v_sub_f32 v{r}, v{r}, v{t}')
    for r in rs: a(f'v_exp_f32_dpp v{r}, v{r} quad_perm:[0,1,0,1] {DP}')
    for u in range(4): a(cvt(N[0]+u, X0+2*u))
    a(cvt(MA, M8)); a(cvt(MA+3, M8))
    for e in ('zx', 'px0', 'px1', 'zm', 'pm0', 'pm1'): a(DENSE[e])
    a(f'v_rcp_f32 v{G3}, v{G3}\ns_mov_b64 vcc, 0\ns_nop 7\ns_branch {P}RJ')
    if w == 3:
        a(f'''@reset
{P}FL:
buffer_load_dword v7, off, {WS}, s57 sc1
s_cmp_lt_u32 s49, 1
s_waitcnt vmcnt(0)
s_cbranch_scc1 {P}FR
s_sub_u32 s49, s49, 1
v_readfirstlane_b32 s54, v7
s_lshr_b32 s54, s54, s60
s_and_b32 s54, s54, 0xff
s_cmp_gt_u32 s54, s61
s_cbranch_scc1 {P}FR
s_branch {P}FL''')

def gen(opt):
    out = []
    a = Asm(); a('REC:')
    if opt.get('hx'): a('s_xor_b32 s3, s3, %d' % opt['hx'])
    if opt.get('prof'): a('s_memtime s[68:69]')
    srds(a, [('ws',8),('dbg',12),('wq',SWQ),('wk',SWK),('wv',SWV),('wo',SWO),('mem0',SM0)])
    for w in range(1, 4): a(f's_cmp_eq_u32 s4, {w}\ns_cbranch_scc1 RECW{w}')
    out.append(a.text())
    for w in range(4):
        l, loc, n, us = plan(w, opt)
        a = Asm(); a.uid = 100*w; a(f'RECW{w}:'); init(a, w, loc, opt)
        if opt.get('mode') is None: a(f's_cmp_eq_u32 s64, 32\ns_cbranch_scc0 RECM{w}')
        elif opt['mode'] == 1: a(f's_branch RECM{w}')
        step(a, w, 0, l, loc, n, us, opt)
        a(f'@reset\nRECM{w}:'); step(a, w, 1, l, loc, n, us, opt)
        out.append(a.text())
        if opt.get('sim') == w:
            for t, x in a.sim(f'R{w}0TOP', f'R{w}0TAIL'): print(t, x)
    return '\n'.join(out)
```

```python
from common import *
import struct, math
def f2u(x): return struct.unpack('<I', struct.pack('<f', x))[0]
WS, DBG, SX, SWO, SOUT, SG = 's[8:11]', 's[12:15]', 's[16:19]', 's[20:23]', 's[24:27]', 's[28:31]'
SLA, SAI, SCR, SCI, SDT, SDK = 32, 36, 40, 44, 76, 80
CS = 4160; CW = 8*CS; UB = 4*CW; US = 1552; UC = 4*US
TAB = 4160 + 64; PAR = 3*4160 + 64
def cvt(d, s, s2=None): return f'v_cvt_pk_bf16_f32 v{d}, v{s}, v{s+1 if s2 is None else s2}'
L2E = 1.4426950408889634
LHI = struct.unpack('<f', struct.pack('<I', f2u(L2E) & 0xffffff00))[0]; LLO = (L2E - LHI)*math.log(2)
def bexp(a, r, t):
    a(f'v_mul_f32 v{t}, {f2u(LLO)}, v{r}\nv_mul_f32 v{r}, {f2u(LHI)}, v{r}\nv_exp_f32 v{r}, v{r}\nv_fmac_f32 v{r}, v{t}, v{r}\n{cvt(r, r, r)}\nv_lshlrev_b32 v{r}, 16, v{r}')
def conv(a, opt):
    XR, U2, GA, POS, AC, T, GV = 16, 48, 64, 124, 132, 148, 180
    a('s_sub_u32 s54, s5, 5\ns_mul_i32 s54, s54, 24\ns_add_u32 s54, s54, s3\ns_lshl_b32 s55, s54, 4\ns_lshl_b32 s6, s54, 3\ns_add_u32 s6, s6, s4')
    a('v_mul_u32_u24 v1, 9216, v0')
    for i in range(8): a(f's_add_u32 s54, s55, {i*1152}\nbuffer_load_dwordx4 {V(XR+4*i,4)}, v1, {SX}, s54 offen')
    a(f's_mul_i32 s7, s4, {CW}\ns_add_u32 s56, s7, {TAB}')
    a('v_lshlrev_b32 v2, 3, v8')
    for u in range(4):
        for k in range(15):
            r = GA + 15*u + k
            a(f'v_add_u32 v{r}, {512*u + k - 7}, v2\nv_cvt_f32_i32 v{r}, v{r}\n{cvt(r, r, r)}\nv_lshlrev_b32 v{r}, 16, v{r}\nv_cvt_i32_f32 v{r}, v{r}')
            a(f'v_ashrrev_i32 v3, 2, v{r}\nv_add_u32 v3, 0x180, v3\nv_min_i32 v{r}, v{r}, v3\nv_lshl_add_u32 v{r}, v{r}, 2, s56')
    a(f'v_and_b32 v2, 15, v8\nv_cvt_f32_u32 v{POS}, v2\nv_mul_f32 v{POS+1}, 4.0, v{POS}\nv_mul_f32 v{POS+2}, 4.0, v{POS+1}\nv_add_f32 v{POS+3}, {f2u(256.)}, v{POS+2}')
    a(f'v_mul_f32 v{POS+4}, 4.0, v{POS+2}\nv_add_f32 v{POS+5}, {f2u(1536.)}, v{POS+4}\nv_add_f32 v{POS+4}, {f2u(512.)}, v{POS+4}')
    expr(a, 2, 0, [(0,5,16),(5,2,US),(7,1,2*UC)], UB, 9)
    a(f'v_mov_b64 v[12:13], 0\nv_mov_b64 v[14:15], 0\nds_write_b128 v2, v[12:15]\nds_write_b128 v2, v[12:15] offset:{UC}')
    expr(a, 1, 0, [(0,2,US),(2,6,16)], UB + 512, 9)
    a('s_mov_b32 s58, 0x05040100\ns_mov_b32 s59, 0x07060302')
    for c in range(8):
        d = U2 + 4*(c&3)
        for j in range(4): a(f'v_perm_b32 v{d+j}, v{XR+4*(6-2*j)+(c>>1)}, v{XR+4*(7-2*j)+(c>>1)}, s{58+(c&1)}')
        if c < 4: a(f'ds_write_b128 v1, {V(d,4)} offset:{c*UC}')
        if c == 3: a('s_waitcnt lgkmcnt(0)')
    expr(a, 2, 8, [(0,6,32)], 's7', 9)
    expr(a, 4, 8, [(0,4,64),(4,2,16)], 's56', 9)
    expr(a, 5, 8, [(0,6,16)], 's7', 9)
    expr(a, 6, 8, [(0,3,CS),(3,2,16)], 's7', 9); a('v_lshrrev_b32 v9, 5, v8\nv_xor_b32 v9, 1, v9\nv_lshl_add_u32 v6, v9, 4, v6')
    a(f's_mul_i32 s54, s4, {UC}\ns_add_u32 s54, s54, {UB}'); expr(a, 7, 8, [(0,5,16),(5,1,US)], 's54', 9)
    expr(a, 10, 8, [(0,5,64),(5,1,16)], 0, 9)
    expr(a, 11, 8, [(0,3,CS),(3,2,16)], 's7', 9)
    a('s_mov_b32 s60, 0\ns_barrier\n@loop CR\nCONVR:')
    a('s_lshl_b32 s54, s6, 8\ns_lshl_b32 s55, s6, 1\nv_lshlrev_b32 v9, 2, v8')
    for i, s in enumerate((SLA, SAI, SCR, SCI)): a(f'buffer_load_dword v{T+i}, v9, s[{s}:{s+3}], s54 offen')
    a(f'buffer_load_ushort v{T+4}, off, s[{SDT}:{SDT+3}], s55\nbuffer_load_ushort v{T+5}, off, s[{SDK}:{SDK+3}], s55')
    expr(a, 3, 8, [(4,2,16)], 's7', 9)
    for t in range(16): a(f'v_mov_b32 v{AC+t}, 0')
    a(f'v_lshlrev_b32 v{T+4}, 16, v{T+4}'); bexp(a, T+4, 9)
    a(f'v_lshlrev_b32 v{T+5}, 16, v{T+5}\nv_cmp_eq_u32 vcc, 0, v8\nv_cndmask_b32 v{AC}, 0, v{T+5}, vcc')
    for h in range(2):
        p = T+8+4*h
        for i in range(4): a(f'v_and_b32 v{p+i}, 0xffff0000, v{T+i}' if h else f'v_lshlrev_b32 v{p+i}, 16, v{T+i}')
        bexp(a, p, 9)
        for i in range(4): a(f'v_mul_f32 v{p+i}, v{p+i}, v{T+4}')
        a(f'v_mul_f32 v{p}, {f2u(-L2E)}, v{p}\nv_mul_f32 v{p+1}, 0.15915494, v{p+1}\nv_add_f32 v{p+2}, v{p+2}, v{p+2}\nv_add_f32 v{p+3}, v{p+3}, v{p+3}')
        a(f'ds_write_b128 v2, {V(p,4)} offset:{PAR + 16*h}')
    PR = T; E = T+4; C = T+16; SN = T+18; AA = T+24
    a(f's_waitcnt lgkmcnt(0)\nds_read_b128 {V(PR,4)}, v3 offset:{PAR}\ns_mov_b32 s61, 0\n@loop CK\nCONVK:')
    for i in range(6): a(f'v_mul_f32 v{E+2*i}, v{PR}, v{POS+i}\nv_mul_f32 v{E+2*i+1}, v{PR+1}, v{POS+i}')
    a(f'v_mov_b64 {V(C,2)}, {V(PR+2,2)}\nv_add_u32 v3, 64, v3\nds_read_b128 {V(PR,4)}, v3 offset:{PAR}')
    pend = []
    def ev(i):
        e = E+2*i; s = SN+i
        return [f'v_fract_f32 v{e+1}, v{e+1}', f'v_exp_f32 v{e}, v{e}', f'v_sin_f32 v{s}, v{e+1}', f'v_cos_f32 v{e+1}, v{e+1}', None, f'v_mul_f32 v{s}, v{s}, v{e}', f'v_mul_f32 v{e}, v{e+1}, v{e}']
    def ca(i):
        e = E+2*i; s = SN+i; d = AA+2*i
        return [f'v_mul_f32 v{d}, v{e}, v{C}', f'v_mul_f32 v{d+1}, v{e}, v{C+1}', f'v_fma_f32 v{d}, -v{s}, v{C+1}, v{d}', f'v_fma_f32 v{d+1}, -v{s}, v{C}, -v{d+1}']
    mm = lambda t: [f'v_mfma_f32_16x16x4_f32 {V(AC+4*t,4)}, v{AA+2*(t>>1)+h}, v{(E+4+2*t, SN+2+t)[h]}, {V(AC+4*t,4)}' for h in range(2)]
    for blk, t in ((ev(0)+ca(0), None), (ev(2), 0), (ev(3), 1), (ev(1)+[None]+ca(1), None), (ev(4), 2), (ev(5), 3)):
        if pend: a(pend.pop(0))
        for x in blk:
            if x is not None: a(x)
            elif pend: a(pend.pop(0))
        if t is not None: pend += mm(t)
    a('s_add_u32 s61, s61, 1\ns_cmp_lt_u32 s61, 32\n' + '\n'.join(pend) + '\ns_cbranch_scc1 CONVK\n@end CK')
    for t in range(4): a(f'ds_write_b128 v4, {V(AC+4*t,4)} offset:{1024*t}')
    a(f's_mov_b64 exec, 3\nds_write_b128 v5, v[12:15] offset:{TAB-32}\ns_mov_b64 exec, -1\ns_waitcnt lgkmcnt(0)')
    for k in range(60): a(f'ds_read_b32 v{GV+k}, v{GA+k}')
    a('s_waitcnt lgkmcnt(0)\nds_write_b128 v11, v[12:15]')
    for u in range(4):
        for c in range(8):
            d = AC + 4*((8*u+c)%8)
            for j in range(4): a(cvt(d+j, GV+15*u+c+2*j))
            a(f'ds_write_b128 v5, {V(d,4)} offset:{c*CS + 48 + 1024*u}')
        a('s_waitcnt lgkmcnt(0)')
    def rd(it):
        D_, k = it>>1, it&1; f = GV + 16*(it%3); m = 2*D_ - k
        return [f'ds_read_b128 {V(f,4)}, v6 offset:{32*m+32}', f'ds_read_b128 {V(f+4,4)}, v7 offset:{(32-D_)*16 + 2*k*US}',
                f'ds_read_b128 {V(f+8,4)}, v7 offset:{(64-D_)*16 + 2*k*US}', f'ds_read_b128 {V(f+12,4)}, v6 offset:{32*m+32+2048}']
    a('\n'.join(rd(0) + rd(1)))
    for it in range(64):
        f = GV + 16*(it%3); r = rd(it+2) if it < 62 else ['']*4
        for n, (x, y) in enumerate(((0, 4), (0, 8), (12, 4))):
            a(f'v_mfma_f32_32x32x16_bf16 {V(AC+16*n,16)}, {V(f+x,4)}, {V(f+y,4)}, ' + ('0' if it == 0 else V(AC+16*n,16)))
            a('\n'.join(r[:2] if n == 0 else r[n+1:n+2]))
    a(f's_lshl_b32 s54, s6, 12\ns_add_u32 s54, s54, {WS_B}\ns_barrier')
    for c in range(4): a(f'ds_write_b128 v1, {V(U2+4*c,4)} offset:{c*UC}')
    for i in range(16): a(f'v_add_f32 v{AC+16+i}, v{AC+16+i}, v{AC+32+i}')
    for t in range(2):
        for U in range(2):
            d = AC + 16*t + 8*U
            for j in range(4): a(cvt(d+j, d+2*j))
            a(f'v_permlane32_swap_b32 v{d}, v{d+2}\nv_permlane32_swap_b32 v{d+1}, v{d+3}\nbuffer_store_dwordx4 {V(d,4)}, v10, {WS}, s54 offen offset:{2048*t + 32*U} sc1')
    a('s_add_u32 s6, s6, 4\ns_add_u32 s60, s60, 1\ns_cmp_lt_u32 s60, 2\ns_waitcnt vmcnt(0)\ns_barrier\ns_cbranch_scc1 CONVR\n@end CR')
    a(f's_cmp_eq_u32 s4, 0\ns_cbranch_scc0 OUT\nv_mov_b32 v9, 1\ns_mov_b64 exec, 1\nbuffer_atomic_add v9, off, {DBG}, 0 offset:160 sc1\ns_mov_b64 exec, -1')

def out(a, opt):
    RG = 36864; L_G = 4*RG; L_R = L_G + 1024; L_B = L_R + 12288
    a('@reset\nOUT:')
    if opt.get('prof'): a('s_memtime s[70:71]')
    a('s_sub_u32 s54, s5, 5\ns_lshl_b32 s54, s54, 5\ns_add_u32 s57, s54, s3\ns_mul_i32 s6, s57, 43\ns_lshr_b32 s6, s6, 9\ns_mul_i32 s54, s6, 12\ns_sub_u32 s7, s57, s54')
    a(f's_mul_i32 s54, s7, 96\ns_mul_i32 s55, s4, {1024*1152}\ns_add_u32 s54, s54, s55\ns_mul_i32 s43, s4, {RG}')
    for n in range(3):
        a(f'v_add_u32 v9, {64*n}, v8\nv_mul_u32_u24 v10, 171, v9\nv_lshrrev_b32 v10, 10, v10\nv_mul_u32_u24 v11, 1056, v10\nv_lshl_add_u32 v11, v9, 4, v11\nv_add_u32 v{n}, s54, v11')
    wreg = lambda ks, t: 128 + 12*ks + 4*t
    def wdma(ks):
        for n in range(3): a(f's_add_u32 m0, s43, {(ks%12)*3072 + n*1024}\ns_mov_b32 s54, {ks*36864}\nbuffer_load_dwordx4 v{n}, {SWO}, s54 offen lds')
    expr(a, 3, 8, [(5,1,1536),(4,1,384),(2,2,96),(0,2,8)], 's43', 9)
    for ks in range(12): wdma(ks)
    for k0 in range(0, 32, 2):
        a(f's_waitcnt vmcnt({3*(min(12, 32-k0) - 2)})')
        for ks in (k0, k0+1):
            for t in range(3):
                for j in range(2): a(f'ds_read_b64_tr_b16 {X(wreg(ks,t)+2*j,2)}, v3 offset:{(ks%12)*3072 + 768*j + 32*t}')
        a('s_waitcnt lgkmcnt(0)')
        for ks in (k0+12, k0+13):
            if ks < 32: wdma(ks)
    GW, XG = 16, 52
    expr(a, 0, 8, [(0,2,16)], 0, 9); expr(a, 1, 8, [(2,4,1152)], 'v0', 9)
    a(f's_lshl_b32 s54, s4, 5\ns_add_u32 s54, s54, s6\ns_mul_i32 s55, s54, 18432')
    for n in range(4): a(f'v_mov_b32 v{12+n}, 0')
    for hf in range(2):
        for j in range(9): a(f'buffer_load_dwordx4 {V(GW+4*j,4)}, v0, {SG}, 0 offen offset:{576*hf + 64*j}')
        for n in range(4):
            x = XG + 36*(n&1)
            if n%2 == 0:
                for n2 in (n, n+1):
                    a(f's_add_u32 s54, s55, {n2*8*18432}')
                    for j in range(9): a(f'buffer_load_dwordx4 {V(XG+36*(n2&1)+4*j,4)}, v1, {SX}, s54 offen offset:{576*hf + 64*j}')
            for j in range(36): a(f'v_dot2_f32_bf16 v{12+n}, v{x+j}, v{GW+j}, v{12+n}')
    DP = 'row_mask:0xf bank_mask:0xf'; a('s_nop 2')
    for qp in ('[1,0,3,2]', '[2,3,0,1]'):
        for n in range(4): a(f'v_add_f32_dpp v{12+n}, v{12+n}, v{12+n} quad_perm:{qp} {DP}')
    for n in range(4): a(f'v_mul_f32 v{12+n}, {f2u(-L2E)}, v{12+n}\nv_exp_f32 v{12+n}, v{12+n}\nv_add_f32 v{12+n}, 1.0, v{12+n}\nv_rcp_f32 v{12+n}, v{12+n}')
    a(f's_lshl_b32 s54, s4, 8\ns_add_u32 s54, s54, {L_G}'); expr(a, 2, 8, [(2,4,4)], 's54', 9)
    for n in range(4): a(f'ds_write_b32 v2, v{12+n} offset:{64*n}')
    if opt.get('prof'): a('s_memtime s[72:73]')
    a(f'''v_lshlrev_b32 v0, 2, v8
v_mov_b32 v1, 72
v_mov_b32 v2, 0x10101010
v_cmp_gt_u32 vcc, 32, v8
v_cndmask_b32 v1, v1, v2, vcc
s_mov_b32 s49, 400000
s_mov_b32 exec_hi, 0x100''')
    if opt.get('w2', 1): a(f'''s_cmp_eq_u32 s4, 0
s_cbranch_scc0 OUTX
s_mov_b32 exec_lo, 0
OUTV:
buffer_load_dword v2, v0, {DBG}, 0 offen sc1
s_sub_u32 s49, s49, 1
s_cselect_b32 s49, 0, s49
s_cbranch_scc1 OUTX
v_cmp_gt_u32 vcc, v1, v2
s_cbranch_vccnz OUTV
s_mov_b32 exec_lo, -1''')
    a(f'''OUTW:
buffer_load_dword v2, v0, {DBG}, 0 offen sc1
s_sub_u32 s49, s49, 1
s_cselect_b32 s49, 0, s49
s_cbranch_scc1 OUTX
v_cmp_gt_u32 vcc, v1, v2
s_cbranch_vccnz OUTW
OUTX:
s_mov_b64 exec, -1
s_waitcnt vmcnt(0)
s_barrier''')
    if opt.get('prof'): a('s_memtime s[74:75]')
    a(f's_lshl_b32 s37, s6, 17\ns_lshl_b32 s54, s4, 15\ns_add_u32 s37, s37, s54\ns_add_u32 s37, s37, {WS_O}')
    a(f's_mul_i32 s54, s7, 3\ns_min_u32 s55, s4, 2\ns_add_u32 s54, s54, s55\ns_lshl_b32 s38, s54, 16\ns_lshl_b32 s56, s6, 5\ns_add_u32 s38, s38, s56\ns_add_u32 s38, s38, {WS_B}')
    a('s_lshl_b32 s39, s54, 5\ns_mul_i32 s56, s6, 18432\ns_add_u32 s39, s39, s56')
    a('v_lshlrev_b32 v0, 4, v8'); expr(a, 1, 8, [(0,6,512)], 496, 9)
    if opt.get('po', 1): a('s_and_b32 s54, s7, 3\ns_lshl_b32 s54, s54, 7\nv_subrev_u32 v1, s54, v1')
    expr(a, 2, 8, [(0,2,8),(2,4,4096)], 0, 9)
    a(f's_lshl_b32 s54, s4, 9\ns_add_u32 s54, s54, {L_B}'); expr(a, 3, 8, [(0,6,8)], 's54', 9)
    expr(a, 5, 8, [(0,4,4)], L_G, 9)
    a(f's_mul_i32 s54, s4, 3072\ns_add_u32 s54, s54, {L_R}\nv_add_u32 v6, s54, v0\ns_lshl_b32 s55, s55, 10\ns_add_u32 s55, s55, {L_R}\nv_add_u32 v7, s55, v0')
    expr(a, 4, 8, [(0,4,1152),(4,2,8)], 0, 9)
    AC, BT, OB, NB = 16, 28, 32, 24
    BUD = 's_sub_u32 s49, s49, 1\ns_cselect_b32 s49, 0, s49\ns_cselect_b32 s66, -1, -2'
    a(f'''s_mov_b32 s36, 0
@loop OT
OUTT:
buffer_load_dwordx2 v[10:11], v2, {WS}, s38 offen sc1''')
    if opt.get('lp', 3) & 2: a(f'''s_cmp_eq_u32 s4, 3
s_cbranch_scc0 OUTB
s_cmp_ge_u32 s37, {WS_O + 63*0x40000}
s_cselect_b32 s54, 0x40000, 0
s_sub_u32 s54, s37, s54
OUTL:
buffer_load_dword v12, off, {WS}, s54 offset:496 sc1
{BUD}
v_cmp_lt_u32 vcc, s66, v12
s_cbranch_vccnz OUTL
OUTB:''')
    a(f'''s_waitcnt vmcnt(0)
s_barrier
ds_read_b32 v9, v5
v_add_u32 v5, 64, v5
ds_write_b64 v3, v[10:11]
s_waitcnt lgkmcnt(0)
ds_read_b64_tr_b16 v[10:11], v3
v_sub_f32 v12, 1.0, v9
v_lshlrev_b32 v{BT}, 16, v10
v_and_b32 v{BT+1}, 0xffff0000, v10
v_lshlrev_b32 v{BT+2}, 16, v11
v_and_b32 v{BT+3}, 0xffff0000, v11''')
    for i in range(4): a(f'v_mul_f32 v{BT+i}, v{BT+i}, v12')
    a(f'''OUTP:
buffer_load_dword v10, v1, {WS}, s37 offen sc1
{BUD}
v_cmp_lt_u32 vcc, s66, v10
s_cbranch_vccnz OUTP''')
    for q in range(1, 8): a(f's_add_u32 s{58+q}, s37, {4096*q}')
    ld = lambda ks: f'buffer_load_dwordx4 {V(OB+4*(ks%NB),4)}, v0, {WS}, s{58+(ks>>2) if ks >= 4 else 37} offen offset:{(ks&3)*1024} sc1'
    for ks in range(NB): a(ld(ks))
    a('v_mov_b32 v10, 0')
    for ks in range(32):
        o = OB+4*(ks%NB)
        for t in range(3):
            a(f'v_mfma_f32_16x16x32_bf16 {V(AC+4*t,4)}, {X(wreg(ks,t),4)}, {V(o,4)}, ' + ('0' if ks == 0 else V(AC+4*t,4)))
            if t == 0: a(f'v_max_u32 v10, v10, v{o}')
        if ks+NB < 32: a(ld(ks+NB))
    a('v_cmp_lt_u32 vcc, s66, v10\ns_cbranch_vccnz OUTP')
    for t in range(3): a(f'ds_write_b128 v6, {V(AC+4*t,4)} offset:{1024*t}')
    a('s_add_u32 s37, s37, 0x100000\ns_add_u32 s38, s38, 256\ns_add_u32 s36, s36, 1\ns_cmp_eq_u32 s4, 3\ns_barrier\ns_cbranch_scc1 OUTN')
    for w in range(4): a(f'ds_read_b128 {V(OB+4*w,4)}, v7 offset:{3072*w}')
    for i in range(4): a(f'v_add_f32 v{OB+i}, v{OB+i}, v{OB+4+i}')
    for i in range(4): a(f'v_add_f32 v{OB+8+i}, v{OB+8+i}, v{OB+12+i}')
    for i in range(4): a(f'v_add_f32 v{OB+i}, v{OB+i}, v{OB+8+i}')
    for i in range(4): a(f'v_fmac_f32 v{BT+i}, v{OB+i}, v9')
    a(f'{cvt(BT, BT)}\n{cvt(BT+1, BT+2)}\nbuffer_store_dwordx2 {V(BT,2)}, v4, {SOUT}, s39 offen{opt.get("of", "")}\nOUTN:\ns_add_u32 s39, s39, {8*18432}\ns_cmp_lt_u32 s36, 16\ns_cbranch_scc1 OUTT\n@end OT')
    if opt.get('hst') == 1: hstamps(a, 167, [(12,68),(15,82),(7,70),(8,72),(9,74),(10,78)])
    elif opt.get('prof'):
        a('s_memtime s[76:77]\ns_waitcnt lgkmcnt(0)')
        for i in range(4): a(f's_sub_u32 s{70+2*i}, s{70+2*i}, s68\nv_mov_b32 v{12+i}, s{70+2*i}')
        a(f's_lshl_b32 s54, s57, 5\ns_add_u32 s54, s54, 0x203000\nbuffer_store_dwordx4 v[12:15], off, {WS}, s54\ns_memrealtime s[76:77]\ns_waitcnt lgkmcnt(0)\nv_mov_b32 v16, s76\nbuffer_store_dword v16, off, {WS}, s54 offset:16')
    a('s_waitcnt vmcnt(0)\ns_endpgm')

def gen(opt):
    a = Asm(); a.uid = 2000
    a('CONV:')
    if opt.get('prof'): a('s_memtime s[68:69]')
    srds(a, [('ws',8),('dbg',12),('x',16),('wo',20),('out',24),('gate',28),('loga',SLA),('aim',SAI),('cr',SCR),('ci',SCI),('logdt',SDT),('dsk',SDK)] + [('wk',84),('wv',92),('wq',96)]*bool(opt.get('pw')))
    lane(a, 8)
    if opt.get('pw'):
        st = opt.get('pfs', 128)
        a(f's_sub_u32 s54, s5, 5\ns_lshl_b32 s54, s54, 5\ns_add_u32 s54, s54, s3\ns_lshl_b32 s54, s54, 2\ns_add_u32 s54, s54, s4\ns_mul_i32 s54, s54, 12288\ns_add_u32 s55, s54, 4096\ns_add_u32 s56, s54, 8192\nv_lshlrev_b32 v9, {st.bit_length()-1}, v8')
        for m in opt['pw']:
            r = dict(k=84, v=92, q=96, o=20)[m]
            for j in range(2 if st == 128 else 3): a(f'buffer_load_dword v250, v9, s[{r}:{r+3}], s{54+j} offen ;!')
    a('s_cmp_ge_u32 s3, 24\ns_cbranch_scc1 OUT')
    conv(a, opt); out(a, opt)
    return a.text()
```

```python
from common import *
import struct
N = [8+4*i for i in range(6)]; MA, MB, M8, X0, X1, W0, W1 = 32, 36, 40, 44, 48, 52, 56
G0, G1, G2, G3, G4 = 60, 64, 68, 72, 76
PA, PB, PC = N[0], N[2], N[4]
L_Q, L_K, L_SEL, L_PUB, L_P, L_ONE, L_W = 8192, 10240, 12288, 13312, 14336, 15360, 16384
WREG = 36864
WS, DBG, SWQ, SWK, SWV, SWO, SM0 = 's[8:11]', 's[12:15]', 16, 20, 24, 28, 32
def f2u(x): return struct.unpack('<I', struct.pack('<f', x))[0]

def plan(w, opt):
    a_, b_ = w, 4+w; n = [c for c in range(8) if c not in (a_, b_)]
    us = [u for u in range(4) if u != w]
    Q = lambda T, c, A, buf=None: (('q', T, c), A, (G0, G1)[T], buf)
    K = lambda T, c, A, buf=None: (('k', T, c), A, (G2, G3)[T], buf)
    Vv = lambda T, c, A, buf=None: (('v', T, c), A, (W0, W1)[T], buf)
    acc = (G2, W0, W1, G1)
    O = lambda u, t, A, buf=None: (('o', u, t), A, acc[t], buf)
    s = {}
    sx, sm = opt.get('sx', 45), opt.get('sm', 55)
    st = {0: PA, 1: PB, 2: PC, 3: X0, 9: PC, 16: PC, 23: PC, 64: PC, 77: PC, 79: PA, 81: PB}
    for u in opt.get('xs', (11, 19, 27, 34, 41, 48, 54)): st[u] = X0
    l = []
    for c, A in ((a_, MA), (n[0], N[0]), (n[1], N[1]), (n[2], N[2])): l += [Q(0,c,A), Q(1,c,A), K(0,c,A), K(1,c,A), Vv(0,c,A), Vv(1,c,A)]
    B5 = [(b_, MB), (8, M8), (n[3], N[3]), (n[4], N[4]), (n[5], N[5])]
    l += [Q(T, *B5[i]) for T, i in ((0,0),(1,0),(0,1),(1,1),(0,2),(0,3),(0,4),(1,2),(1,3),(1,4))]
    l += [K(T, *B5[i]) for T in range(2) for i in range(5)]
    l += [Vv(T, *B5[i]) for T, i in ((0,0),(1,0),(0,1),(1,1),(0,2),(1,2),(0,3),(0,4),(1,3),(1,4))]
    l[sx:sx] = ['sx0', 'sx1']; l[sm:sm] = ['sm0', 'sm1']
    l += ['zx', 'px0', 'zm', 'px1', 'pm0', 'pm1'] if opt.get('zm', 60) == 60 else ['zx', 'px0', 'px1', 'zm', 'pm0', 'pm1']
    l += [O(w,t,M8) for t in range(4)]
    oa = (MA, MB, G3)
    for t in range(4):
        if t == 2: l += [(('h',0,0), X0, G0, None), (('h',1,0), X1, G0, None)]
        for k in range(3): l.append(O(us[k], t, oa[k]))
    for i, b in st.items(): l[i] = l[i][:3] + (b,)
    loc = {}; nl = nr = 0
    for e in l:
        if isinstance(e, str): continue
        if e[3] is not None: loc[e[0]] = ('L', nl); nl += 1
        else: loc[e[0]] = ('R', 80+8*nr); nr += 1
    assert nl == 18 and nr == 54, (nl, nr)
    return l, loc, n, us

def init(a, w, loc, opt):
    lane(a, 8)
    expr(a, 4, 8, [(5,1,64)], (w&1)*128, 9); expr(a, 1, 8, [(0,5,16)], 0, 9); a('v_xor_b32 v4, v4, v1')
    expr(a, 1, 8, [(5,1,1152)], (32*(w&1) + 4*(w>>1))*1152, 9); a('v_add_u32 v4, v4, v1')
    expr(a, 7, 8, [(4,1,32)], (w&1)*64, 9); expr(a, 1, 8, [(0,3,16)], 0, 9); a('v_xor_b32 v7, v7, v1')
    expr(a, 1, 8, [(3,1,1152),(4,1,8*1152),(5,1,64*1152)], (32*(w&1) + 4*(w>>1))*1152, 9); a('v_add_u32 v7, v7, v1')
    a('s_lshl_b32 s62, s3, 8\ns_mul_i32 s63, s3, %d' % (128*1152))
    groups = [('h',)] + [('o', u, tp) for u in range(4) for tp in range(2)] + [(x[0], int(c)) for x in opt.get('go', 'q01238 k0123 v0123 q4567 k45678 v45678').split() for c in x[1:]]
    if opt.get('il'): o_ = groups[3:9]; r_ = groups[9:]; groups = groups[:3] + [x for i in range(6) for x in r_[3*i:3*i+3] + [o_[i]]] + r_[18:]
    q = []
    def dma(gi):
        g = groups[gi]
        for p in range(4):
            a(f's_mov_b32 m0, {L_W + WREG*w + (5 + gi%4)*4096 + p*1024}')
            ro = 16*(p>>1) + 2*(p&1)
            if g[0] in 'qkv': off, sb, vr, srd = (64*g[1] + ro)*8192, 62, 0, {'q':SWQ,'k':SWK,'v':SWV}[g[0]]
            elif g[0] == 'o': off, sb, vr, srd = (64*(g[1]>>1) + 8*(g[1]&1) + ro)*1152 + 512*g[2], 63, 4, SWO
            else: off, sb, vr, srd = ro*1152 + 1024, 63, 7, SWO
            a(f's_add_u32 s54, s{sb}, {off}\nbuffer_load_dwordx4 v{vr}, s[{srd}:{srd+3}], s54 offen{opt.get("wf", "")} lds'); q.append(gi)
    for gi in range(3): dma(gi)
    a('s_mul_i32 s54, s3, %d' % PHEAD)
    a(f's_add_u32 s37, s54, {WS_PART + w*2048}\ns_add_u32 s38, s54, {WS_PART + 8192 + 256*w}')
    for n in range(4): a(f's_mov_b32 s{39+n}, {WS_PART + n*8*PHEAD}')
    a(f's_mov_b32 s45, {WS_RING}\ns_mov_b32 s46, {WS_RING+0x8000}\ns_lshl_b32 s54, s3, 14\ns_add_u32 s47, s54, {WS_KV + w*4096}\ns_add_u32 s58, s54, {WS_KV}')
    a(f's_lshl_b32 s54, s3, 12\ns_add_u32 s48, s54, {WS_KM + w*1024}\ns_mov_b32 s49, 400000\ns_mov_b32 s36, 0')
    sc = f2u(128**-0.5 * 1.4426950408889634)
    a(f's_mov_b32 s50, {sc}\ns_mov_b32 s51, {sc}\ns_mov_b32 s52, {(127-48)<<23}\ns_mov_b32 s53, {112<<23}\ns_lshl_b32 s57, s3, 2')
    if w < 2: a(f's_lshr_b32 s59, s3, 3\ns_lshl_b32 s59, s59, 11\ns_add_u32 s59, s59, {1024 if w == 0 else 0}\ns_and_b32 s60, s3, 7')
    elif w == 2: a('s_mov_b32 s59, 8192\ns_lshr_b32 s60, s3, 2\ns_and_b32 s55, s3, 3')
    if w < 3:
        red_addr(a, w, 7, 8, 9)
        a('s_and_b32 s54, s60, 1\ns_lshl_b32 s54, s54, 8\ns_lshr_b32 s61, s60, 1\ns_lshl_b32 s61, s61, 6\ns_add_u32 s54, s54, s61\ns_lshr_b32 s61, s3, 3\ns_lshl_b32 s61, s61, 10\ns_add_u32 s54, s54, s61\ns_add_u32 s54, s54, %d' % (4096 if w == 0 else 0))
        expr(a, 10, 8, [(1,1,512),(2,1,32),(0,1,16),(4,1,8),(5,1,4),(3,1,1<<30)], 's54', 9)
        if w == 2:
            a('s_lshr_b32 s54, s60, 2\ns_lshl_b32 s54, s54, 5\ns_bfe_u32 s61, s60, 0x10001\ns_lshl_b32 s61, s61, 9\ns_add_u32 s54, s54, s61\ns_and_b32 s61, s60, 1\ns_lshl_b32 s61, s61, 7\ns_add_u32 s54, s54, s61\ns_add_u32 s54, s54, 8192')
            expr(a, 10, 8, [(0,1,8),(1,1,256),(2,1,64),(4,1,16),(3,1,1<<30),(5,1,1<<28)], 's54', 9)
            a('v_xor_b32 v10, 0x10000000, v10')
            a('s_lshl_b32 s54, s55, 29\nv_or_b32 v10, s54, v10')
        a('v_mov_b64 v[12:13], -1\nv_mov_b64 v[14:15], -1')
        for sl in range(1):
            for n in range(4):
                a(f's_mov_b32 s54, {WS_PART + sl*PSLOT + n*8*PHEAD}\nbuffer_store_dwordx4 v[12:15], v7, {WS}, s54 offen sc1')
        for sl in range(4): a(f's_mov_b32 s54, {WS_RING + sl*RSLOT}\nbuffer_store_dword{"x2 v[12:13]" if w == 2 else " v12"}, v10, {WS}, s54 offen sc1')
        a(f'v_lshlrev_b32 v11, 4, v8\nds_write_b32 v11, v10 offset:{L_PUB + 4*w}')
        if w == 1: a(f's_add_u32 s57, s57, {WS_FLAG + 0x2000}\ns_and_b32 s58, s3, 3\ns_lshl_b32 s58, s58, 8\ns_add_u32 s58, s58, {WS_FLAG + 0x2000}\nv_and_b32 v11, 0x300, v11\nbuffer_store_dword v12, v11, {WS}, s57 offen sc1')
    else:
        expr(a, 16, 8, [(0,2,2),(2,1,1)], 0, 9)
        a('v_and_b32 v9, 15, v8\nv_cmp_lt_u32 vcc, 7, v9\nv_cndmask_b32 v9, v9, v16, vcc\nv_mov_b32 v10, 0x3f80\nv_mov_b32 v11, 0x3f800000')
        for r in range(4):
            a(f'v_mov_b32 v{12+r}, 0\nv_cmp_eq_u32 vcc, {2*r}, v9\nv_cndmask_b32 v{12+r}, v{12+r}, v10, vcc\nv_cmp_eq_u32 vcc, {2*r+1}, v9\nv_cndmask_b32 v{12+r}, v{12+r}, v11, vcc')
        a(f'v_lshlrev_b32 v11, 4, v8\nds_write_b128 v11, v[12:15] offset:{L_SEL}')
        for r in range(4): a(f'v_mov_b32 v{16+r}, 0x3f803f80')
        a(f'ds_write_b128 v11, v[16:19] offset:{L_ONE}')
    expr(a, 0, 8, [(4,2,64)], (w&1)*16, 9); expr(a, 1, 8, [(0,4,16)], 0, 9); a('v_xor_b32 v0, v0, v1')
    expr(a, 1, 8, [(4,1,8192),(5,1,32*8192)], 4*w*8192, 9); a('v_add_u32 v0, v0, v1')
    base = [(4,2,WREG),(0,1,8)]
    expr(a, 2, 8, [(1,1,32)], (8*(w>>1) + (w&1))*16, 9); expr(a, 1, 8, [(4,1,16),(2,2,64)], 0, 9); a('v_xor_b32 v2, v2, v1')
    expr(a, 1, 8, base + [(2,2,256)], L_W, 9); a('v_add_u32 v2, v2, v1')
    expr(a, 3, 8, [(1,1,16)], 2*w*16, 9); expr(a, 1, 8, [(3,1,32),(4,1,64)], 0, 9); a('v_xor_b32 v3, v3, v1')
    expr(a, 1, 8, base + [(2,2,128)], L_W, 9); a('v_add_u32 v3, v3, v1')
    expr(a, 5, 8, [(1,1,16),(3,1,32)], 8*w*16, 9); expr(a, 1, 8, [(2,1,64),(4,1,128)], 0, 9); a('v_xor_b32 v5, v5, v1')
    expr(a, 1, 8, base + [(2,1,512)], L_W, 9); a('v_add_u32 v5, v5, v1\nv_xor_b32 v6, 64, v5')
    expr(a, 1, 8, [(0,6,16)], L_W + WREG*w, 9)
    g1 = opt.get('g1', 28); tn = 2 if opt.get('tm', 64) else 4
    ldd = f'buffer_load_dwordx4 v[8:11], off, {DBG}, s54 sc1 ;!\nbuffer_load_dwordx4 v[12:15], off, {DBG}, s54 offset:16 sc1 ;!'
    tch = f'buffer_load_dword v4, {WS}, s54 offen sc1 lds ;!'
    def flg(L):
        a('v_readfirstlane_b32 s54, v7')
        for b in range(4): a(f's_and_b32 s59, s54, {hex(0xff << 8*b)}\ns_cbranch_scc0 {L}')
        a(f's_mov_b32 s60, s58')
        if L[:3] == 'RFN': a(f'{L}:')
        for o in (0, 0x2000, 0x80000, 0x82000)[:tn]: a(f's_add_u32 s54, s60, {o}\n{tch}')
    q.extend([-1]*(8, 9, 8, 0)[w])
    for gi, g in enumerate(groups):
        a(f's_waitcnt vmcnt({q[::-1].index(gi)}) lgkmcnt(0)\ns_barrier')
        if gi == 3 and w == 0:
            a(f's_getreg_b32 s64, hwreg(HW_REG_XCC_ID,0,3)\ns_lshl_b32 s54, s64, 2\ns_add_u32 s54, s54, 128\nv_mov_b32 v8, 1\ns_mov_b64 exec, 1\nbuffer_atomic_add v8, off, {DBG}, s54 sc1\ns_mov_b64 exec, -1'); q.append(-1)
        if gi+3 < len(groups): dma(gi+3)
        if gi == 1: a('v_xor_b32 v3, 64, v2')
        if gi == 27:
            lane(a, 8)
            a('v_lshlrev_b32 v4, 7, v8'); expr(a, 5, 8, [(2,2,2304),(0,1,1152),(1,1,64),(4,2,16)], 0, 9)
            for d, ch in ((w*2048, w), (w*2048+1024, 4+w), (L_Q, 8)): a(f's_mov_b32 m0, {d}\ns_mov_b32 s54, {ch*128}\nbuffer_load_dwordx4 v5, s[{SM0}:{SM0+3}], s54 offen lds'); q.append(-1)
        if gi == g1:
            a(f's_mov_b32 s54, 128\n{ldd}'); q.extend([-1, -1])
            if w == 3: a(f'buffer_load_dword v5, off, {DBG}, s57 sc1 ;!'); q.append(-1)
        if gi == g1+4:
            L = a.lab('RSB'); E = a.lab('RSE'); C = a.lab('RSC')
            a(f'''s_branch {C}
{L}:
s_cmp_lt_u32 s49, 1
s_cbranch_scc1 {E}
s_sub_u32 s49, s49, 1
s_mov_b32 s54, 128
{ldd}
s_waitcnt vmcnt(0)
{C}:
@vmclear
v_add3_u32 v7, v8, v9, v10
v_add3_u32 v7, v7, v11, v12
v_add3_u32 v7, v7, v13, v14
v_add_u32 v7, v7, v15
v_cmp_gt_u32 vcc, 32, v7
s_cbranch_vccnz {L}
{E}:
v_max3_u32 v8, v8, v9, v10
v_max3_u32 v8, v8, v11, v12
v_max3_u32 v8, v8, v13, v14
v_max_u32 v8, v8, v15
v_readfirstlane_b32 s64, v8''')
            a(f's_mov_b32 m0, {L_K + w*512}')
            if opt.get('pt', 1) == 2:
                a(f'v_mov_b64 v[8:9], -1\nv_mov_b64 v[10:11], -1\nv_lshrrev_b32 v12, 3, v4\nv_lshrrev_b32 v13, 5, v4\nbuffer_store_dwordx4 v[8:11], v12, {WS}, s37 offen\nbuffer_store_dwordx4 v[8:11], v12, {WS}, s37 offen offset:1024\nbuffer_store_dword v8, v13, {WS}, s38 offen'); q.extend([-1]*3)
            if opt.get('rt', 1) and w == 2: a(f'v_and_b32 v4, 0x780, v4\ns_lshl_b32 s54, s3, 11\ns_add_u32 s54, s54, {WS_RING}\n{tch}'); q.append(-1)
            if opt.get('pt', 1) == 1 and w < 2: a(f's_sub_u32 s54, s37, {1024*w}\n{tch}'); q.append(-1)
            if w == 3: a(f'v_mov_b32 v7, v5\ns_mov_b32 s60, {WS_RING}'); flg(a.lab('RFN')); q.extend([-1]*tn)
        for T in range(2):
            if g[0] in 'qkv': key, ad, ex = (g[0], T, g[1]), 2+T, 0
            elif g[0] == 'o': key, ad, ex = ('o', g[1], 2*g[2]+T), 5+T, 0
            else: key, ad, ex = ('h', T, 0), 3, 512*T
            kind, idx = loc[key]
            dst = idx if kind == 'R' else (8 if idx < 10 else 16 + 8*(idx-10))
            for p in range(4): a(f'ds_read_b64_tr_b16 {X(dst+2*p,2)}, v{ad} offset:{(5+gi%4)*4096 + p*1024 + ex}')
            if kind == 'L' and idx < 10:
                assert gi < 27
                a(f'ds_write_b128 v1, v[8:11] offset:{idx*2048}\nds_write_b128 v1, v[12:15] offset:{idx*2048+1024}')
    a('s_waitcnt lgkmcnt(0)\ns_barrier')
    for idx in range(10, 18):
        r = 16 + 8*(idx-10)
        a(f'ds_write_b128 v1, {V(r,4)} offset:{idx*2048}\nds_write_b128 v1, {V(r+4,4)} offset:{idx*2048+1024}')
    if w == 3:
        L = a.lab('RF'); E = a.lab('RFE')
        a(f'''s_cmp_eq_u32 s60, s58
s_cbranch_scc1 {E}
{L}:
s_cmp_lt_u32 s49, 1
s_cbranch_scc1 {E}
s_sub_u32 s49, s49, 1
buffer_load_dword v7, off, {DBG}, s57 sc1
s_waitcnt vmcnt(0)''')
        flg(L)
        a(f'{E}:\ns_lshl_b32 s57, s3, 7\ns_add_u32 s57, s57, {WS_FLAG}')
    lane(a, 8)
    a('v_lshlrev_b32 v0, 4, v8\nv_lshrrev_b32 v6, 4, v8\nv_xor_b32 v6, v6, v8\nv_lshlrev_b32 v6, 3, v6')
    for r, o in ((MA, w*2048), (MB, w*2048+1024), (M8, L_Q)): a(f'ds_read_b128 {V(r,4)}, v0 offset:{o}')
    expr(a, 2, 8, [(1,1,0xAAAA)], 0x4444, 9)
    expr(a, 4, 8, [(4,2,256),(2,2,32),(0,1,16)], 0, 9)
    expr(a, 3, 8, [(1,1,128)], 'v4', 9)
    expr(a, 5, 8, [(0,4,32),(4,2,8)], 0, 9); expr(a, 10, 8, [(2,2,8)], 0, 9); a('v_xor_b32 v5, v5, v10')
    if w < 3: red_addr(a, w, 7, 8, 9)

def red_addr(a, w, d, ln, tmp):
    a('s_lshl_b32 s54, s60, 7\ns_add_u32 s54, s54, s59')
    expr(a, d, ln, [(3,3,PHEAD),(0,3,16)], 's54', tmp)
    if w == 2: a(f's_lshl_b32 s54, s55, 29\nv_or_b32 v{d}, s54, v{d}')

def zero(b): return [f'v_mov_b64 {V(b,2)}, 0', f'v_mov_b64 {V(b+2,2)}, 0']
def ldw(buf, idx): return [f'ds_read_b128 {V(buf,4)}, v1 offset:{idx*2048}', f'ds_read_b128 {V(buf+4,4)}, v1 offset:{idx*2048+1024}']
def cvt(d, s): return f'v_cvt_pk_bf16_f32 v{d}, v{s}, v{s+1}'
def padd(b): return f'v_pk_add_f32 {V(b,2)}, {V(b,2)}, {V(b+2,2)}'
DP = 'row_mask:0xf bank_mask:0xf'
DENSE = {
 'sx0': f'v_mfma_f32_16x16x32_bf16 {V(G4,4)}, {V(MA,4)}, {V(G0,4)}, 0',
 'sx1': f'v_mfma_f32_16x16x32_bf16 {V(G4,4)}, {V(N[0],4)}, {V(G1,4)}, {V(G4,4)}',
 'sm0': f'v_mfma_f32_16x16x32_bf16 {V(M8,4)}, {V(G2,4)}, {V(G0,4)}, 0',
 'sm1': f'v_mfma_f32_16x16x32_bf16 {V(M8,4)}, {V(G3,4)}, {V(G1,4)}, {V(M8,4)}',
 'zx': f'v_mfma_f32_16x16x32_bf16 {V(G3,4)}, {V(MB,4)}, {V(N[0],4)}, 0',
 'zm': f'v_mfma_f32_16x16x16_bf16 {V(G3,4)}, {V(MB,2)}, {V(MA,2)}, {V(G3,4)}',
 'px0': f'v_mfma_f32_16x16x32_bf16 {V(X0,4)}, {V(N[1],4)}, {V(N[0],4)}, 0',
 'px1': f'v_mfma_f32_16x16x32_bf16 {V(X1,4)}, {V(N[2],4)}, {V(N[0],4)}, 0',
 'pm0': f'v_mfma_f32_16x16x16_bf16 {V(X0,4)}, {V(G4+2,2)}, {V(MA,2)}, {V(X0,4)}',
 'pm1': f'v_mfma_f32_16x16x16_bf16 {V(X1,4)}, {V(G4+2,2)}, {V(MA+2,2)}, {V(X1,4)}',
}
def step(a, w, mode, l, loc, n, us, opt):
    sf = ' sc1' if mode else ''
    P = f'R{w}{mode}'
    ns = {i: [] for i in range(len(l))}; vs = {i: [] for i in range(len(l))}
    def put(d, s0, lst, per=1):
        for i, x in enumerate(lst): d[s0 + i//per].append(x)
    lidx = {i: loc[e[0]][1] for i, e in enumerate(l) if not isinstance(e, str) and e[3] is not None}
    pos = lambda ch: (ch&3)*2048 + (ch>>2)*1024
    add2 = lambda b: [f'v_add_f32 v{b}, v{b}, v{b+2}', f'v_add_f32 v{b+1}, v{b+1}, v{b+3}']
    tag = lambda r: f'v_and_or_b32 v{r}, v{r}, -2, s65'
    rdc = lambda r, c: f'ds_read_b128 {V(r,4)}, v0 offset:{pos(c)}'
    x2 = "x2" if w == 2 else ""
    g = opt.get
    b1, bw, cw, b2, bq, bk, bp, sx, sm, zm = g('b1', 1), g('bw', 19), g('cw', 21), g('b2', 24), g('bq', 41), g('bk', 51), g('bp', 55), g('sx', 45), g('sm', 55), g('zm', 60)
    last = lambda key: max(i for i, e in enumerate(l) if not isinstance(e, str) and e[0][:len(key)] == key)
    ns[b1] += ['s_barrier', rdc(N[0], n[0])]; ns[b1+1] += [rdc(N[1], n[1]), rdc(N[2], n[2])]
    T = N[3]
    wrb = f'ds_write_b128 v0, {V(MB,4)} offset:{w*2048+1024}'
    chb = [f'v_max3_u32 v{T}, v{MB}, v{MB+1}, v{MB+2}', f'v_max3_u32 v{T}, v{MB+3}, v{M8}, v{T}', f'v_max3_u32 v{T+1}, v{M8+1}, v{M8+2}, v{M8+3}', f'v_max_u32 v{T}, v{T+1}, v{T}', f'v_cmp_lt_u32 vcc, s66, v{T}']
    for i, r, ad, of in ((6, MA, 3, 0), (12, N[0], 3, 1024), (18, N[1], 0, 2048), (24, N[2], 0, 3072)):
        ns[i].append(f'buffer_load_dwordx4 {V(r,4)}, v{ad}, {WS}, s47 offen offset:{of} sc1')
    ns[bw] += [wrb]; vs[bw] += chb[:1]; vs[cw] += chb[1:3]; vs[cw+1] += chb[3:]; vs[min(cw+2, 23)] += [f's_cbranch_vccnz {P}PB', f'{P}B:']
    ns[b2] += ['s_barrier', rdc(N[3], n[3])]; ns[max(b2+1, 24)] += [rdc(N[4], n[4]), rdc(N[5], n[5])]
    prev = {}
    for u in sorted(lidx):
        bf = l[u][3]
        if u > 3: put(ns, g('ls', {}).get(u, {64: 58, 77: 70, 79: 72, 81: 74}.get(u, prev[bf] + 1)), ldw(bf, lidx[u]))
        prev[bf] = u
    if w < 3:
        vs[3].append(f'v_mov_b64 {V(T,2)}, -1')
        ns[7].append(f'buffer_store_dword{x2} {V(T, 2 if w == 2 else 1)}, v{G4}, {WS}, s46 offen{sf}')
    ns[14].append(f'ds_read_b64_tr_b16 {V(G4,2)}, v6 offset:{L_K + w*512}')
    kst_ = f'buffer_store_dwordx4 {V(G4,4)}, v0, {WS}, s48 offen'; kmf = sf or opt.get('kmf', ' nt'); assert g('kk', 62) <= 62
    ns[g('kms', 30) + g('kst', 2)*w] += [kst_ + kmf] if kmf == ' sc1' else ['s_cmp_ge_u32 s36, %d' % g('kk', 62), f's_cbranch_scc1 {P}KS', kst_ + kmf, f'{P}KR:']
    ns[47] += ['s_add_u32 s48, s48, %d' % opt.get('kmi', 0x20000)]; ns[26] += ['s_add_u32 s47, s47, %d' % opt.get('kvi', 0x80000)]
    ns[27] += ['s_add_u32 s45, s45, 0x4000']; ns[31] += ['s_bitset0_b32 s45, 16', 's_add_u32 s44, s45, 8192']; ns[33] += [f's_add_u32 s43, s45, {w*1024}', f's_add_u32 s63, s45, {4096 + w*1024}']
    ns[38] += ['s_xor_b32 s46, s45, 0x8000', 's_and_b32 s65, s36, 1']
    tch = opt.get('touch', 1)
    if w == 3:
        vs[3].append('v_readfirstlane_b32 s54, v7 ;!'); vs[13].append(f'v_lshlrev_b32 v7, 3, v0 ;!')
        ns[6] += ['s_lshr_b32 s54, s54, s60']; ns[7] += ['s_and_b32 s54, s54, 0xff']
        ns[8] += ['s_cmp_gt_u32 s54, s61']; ns[9] += [f's_cbranch_scc0 {P}FL']*(1-opt.get('nofl', 0)) + [f'{P}FR:']
        ts = g('ts', 26)
        if tch: put(ns, ts, [f'buffer_load_dword v7, v7, {WS}, s59 offen sc1 ;!', f'buffer_load_dword v7, v7, {WS}, s62 offen sc1 ;!'])
        ns[ts+4] += [f'buffer_load_dword v7, off, {WS}, s57 sc1 ;!']
    qpost = lambda b, d: [f'v_mul_f32 v{b}, s50, v{b}', f'v_mul_f32 v{b+1}, s50, v{b+1}', f'v_fmac_f32 v{b}, s50, v{b+2}', f'v_fmac_f32 v{b+1}, s50, v{b+3}', cvt(d, b)]
    put(vs, 32, qpost(G0, G0), 2); put(vs, 35, qpost(G1, G0+1) + [f'ds_write_b64 v5, {V(G0,2)} offset:{L_Q + w*512}'], g('qp', 3))
    trq = [f'ds_read_b64_tr_b16 {V(G0+2*u,2)}, v6 offset:{L_Q + u*512}' for u in range(4)]
    ns[bq] = ['s_barrier'] + trq[:2] + ns[bq]; ns[bq+1] = trq[2:] + ns[bq+1]
    k0, k1 = last(('k', 0)), last(('k', 1))
    put(vs, k0+2, add2(G2) + [cvt(G2, G2)]); put(vs, k1+2, add2(G3) + [cvt(G2+1, G3), f'ds_write_b64 v5, {V(G2,2)} offset:{L_K + w*512}'], g('kp', 2))
    spost = lambda b: [f'v_add_f32_dpp v{b}, v{b+2}, v{b} quad_perm:[2,3,0,1] {DP}', f'v_add_f32_dpp v{b+1}, v{b+3}, v{b+1} quad_perm:[2,3,0,1] {DP}',
                       f'v_exp_f32_dpp v{b+2}, v{b} quad_perm:[0,1,0,1] {DP}', f'v_exp_f32_dpp v{b+3}, v{b+1} quad_perm:[0,1,0,1] {DP}']
    put(vs, sx+3, spost(G4) + [cvt(G4+2, G4+2), f'ds_write_b32 v0, v{G4+2} offset:{L_P + 4*w}'], 2)
    trk = [f'ds_read_b64_tr_b16 {V(G2+2*u,2)}, v6 offset:{L_K + u*512}' for u in range(4)]
    ns[bk] = ['s_barrier'] + trk[:2] + ns[bk]; ns[bk+1] = trk[2:] + ns[bk+1]
    put(vs, sx+6, [f'v_mov_b32 v{MA+1}, 0', f'v_mov_b32 v{MA+2}, 0'])
    ns[last(('v', 1, 4+w))+1].append(f'ds_read_b128 {V(MB,4)}, v0 offset:{L_ONE}')
    ns[bp] = ['s_barrier']*(bp != bk) + ns[bp] + [f'ds_read_b128 {V(N[0],4)}, v0 offset:{L_P}']
    put(vs, sm+g('mo', 2), spost(M8) + [cvt(MA, M8+2), cvt(MA+3, M8+2)], 2)
    ns[56].append('s_cmp_eq_u32 s36, 63')
    v0_, v1_ = last(('v', 0)), last(('v', 1))
    put(vs, v0_+g('vo', 2), add2(W0) + [cvt(G4+2, W0)], 2); put(vs, v1_+2, add2(W1) + [cvt(G4+3, W1)], 2)
    ns[61].append(f's_cbranch_scc1 {P}TAIL')
    vs[61] += zero(G2); vs[zm+2] += [f'v_rcp_f32 v{G3}, v{G3}', f'v_subrev_u32 v{G3+2}, s52, v{G3+2}']
    mul = [f'v_pk_mul_f32 {V(X0+2*i,2)}, {V(X0+2*i,2)}, {V(G3,2)} op_sel_hi:[1,0]' for i in range(4)]
    co = [cvt(M8+i, X0+2*i) for i in range(4)]
    if zm == 61: vs[62] += zero(W0)
    vs[63] += [f'v_cmp_le_u32 vcc, s53, v{G3+2}'] + zero(W0)*(zm == 60) + [f'{P}RJ:'] + mul[:2] + [f's_cbranch_vccnz {P}FB'] + co[:2] + mul[2:] + co[2:]
    vs[63] += [f'ds_write_b128 v4, {V(M8,4)} offset:{L_Q + (w>>1)*1024 + (w&1)*128}', 's_waitcnt lgkmcnt(1)']
    vs[64] += zero(W1); vs[65] += zero(G1); vs[66] += zero(G0)
    ro = [f'ds_read_b128 {V(r,4)}, v4 offset:{L_Q + (u>>1)*1024 + (u&1)*128}' for r, u in zip((MA, MB, G3), us)]
    ns[opt.get('bo', 66)] += ['s_barrier'] + ro
    put(ns, 68, [f'ds_read_b128 {V(X0+4*j,4)}, v3 offset:{L_Q + j*1024}' for j in range(2)])
    put(vs, 72, [cvt(G2, G2), cvt(G2+1, G2+2), tag(G2)]); vs[75] += [cvt(G2+2, W0), cvt(G2+3, W0+2)]
    (vs[75] if g('ast') is None else ns[76 + g('ast')*w]).append(f'buffer_store_dwordx4 {V(G2,4)}, v0, {WS}, s37 offen{sf}')
    put(vs, 77, add2(G0) + [cvt(M8+1, G0), tag(M8+1)]); vs[81] += [cvt(W1, W1), cvt(W1+1, W1+2), tag(W1)]
    vs[68].append(f'v_lshrrev_b32 v{M8}, 2, v0')
    hold = opt.get('hold', 0)
    sth = f'buffer_store_dword v{M8+1}, v{M8}, {WS}, s38 offen{sf}'; stb = f'buffer_store_dwordx4 {V(W1,4)}, v0, {WS}, s37 offen offset:1024{sf}'
    if not hold & 1: ns[81].append(sth)
    hs = [stb]*(hold>>1) + [sth]*(hold&1); XB = '\n'.join(['s_barrier ;!'] + hs)
    if w < 3: ns[76].append(f'ds_read_b32 v{G4}, v0 offset:{L_PUB + 4*w}')
    ns[77].append('s_add_u32 s36, s36, 1')
    nx3 = (['s_cmp_gt_u32 s36, %d' % (g('tm', 64)-1), 's_addc_u32 s59, s36, 1'] if g('tm', 64) else ['s_add_u32 s59, s36, 2']) + [ 's_min_u32 s59, s59, 63', 's_lshl_b32 s60, s59, 3', 's_lshr_b32 s61, s59, 2', 's_lshl_b32 s59, s59, 19', 's_add_u32 s59, s59, s58', 's_add_u32 s62, s59, 8192'] if w == 3 else []
    RB = [G0, G1, G2, G3]
    rld = [f'buffer_load_dwordx4 {V(RB[i],4)}, v7, {WS}, s{39+i} offen sc1 ;!' for i in range(4)]
    BUD = 's_sub_u32 s49, s49, 1\ns_cselect_b32 s49, 0, s49\ns_cselect_b32 s66, -1, -2\ns_cselect_b32 s67, 1, 0'
    pre = ldw(PA, lidx[0]) + ldw(PB, lidx[1]) + ldw(PC, lidx[2]) + ldw(X0, lidx[3])
    zs = zero(G0) + zero(G1) + zero(G2) + zero(G3) + zero(W0) + zero(W1)
    wra = f'ds_write_b128 v0, {V(MA,4)} offset:{w*2048}'
    poll = f'buffer_load_dwordx4 {V(MA,4)}, v0, {WS}, s43 offen sc1 ;!'
    ldb = [f'buffer_load_dwordx4 {V(MB,4)}, v0, {WS}, s63 offen sc1', f'buffer_load_dwordx4 {V(M8,4)}, v0, {WS}, s44 offen sc1']
    nop = lambda k: ['s_nop 3']*k
    lb = opt.get('lb')
    if lb is not None:
        ns[0].append('s_cmp_eq_u32 s36, 0'); ns[lb] += [f's_cbranch_scc1 {P}LB'] + ldb + [f'{P}LB:']
    fs = opt.get('fs'); F = N[3]
    fpoll = f'buffer_load_ushort v{F+3}, v{F+2}, {WS}, s58 offen sc1 ;!'
    if fs is not None and w == 1:
        ns[30] += ['s_add_u32 s59, s36, 1', 's_mul_i32 s60, s59, 0x10001']
        vs[67] += [f'v_lshrrev_b32 v{F+2}, 3, v0']; vs[64] += [f'v_mov_b32 v{F}, s60']; vs[65] += [f'v_and_b32 v{F+1}, 0x300, v0']
        ns[fs] += [f'buffer_store_dword v{F}, v{F+1}, {WS}, s57 offen{sf}']
        for i in opt.get('fp', (69, 72, 75, 78)): ns[i] += [fpoll]
    spec = opt.get('spec', 0); ec = opt.get('ec')
    if ec is not None:
        T = G4+1
        ns[ec] += [f's_cbranch_scc1 {P}EW', 's_waitcnt vmcnt(0)', f'{P}EW:']
        ns[bw].insert(0, 's_waitcnt vmcnt(%d)' % sum(x.startswith('buffer_') for i in range(ec+2, bw) for x in ns[i] + vs[i]))
        c_ = [f'v_max3_u32 v{T}, v{MB}, v{MB+1}, v{MB+2} ;!', f'v_max3_u32 v{T}, v{MB+3}, v{M8}, v{T} ;!', f'v_max3_u32 v{T}, v{M8+1}, v{M8+2}, v{T} ;!', f'v_max_u32 v{T}, v{M8+3}, v{T} ;!', f'v_cmp_lt_u32 vcc, s66, v{T}']
        vs[ec] += c_[:2]; vs[ec+1] += c_[2:] + [f's_cbranch_vccnz {P}EC', f'{P}ER:']
    st = opt.get('st', [])
    def stamp(p):
        if p in st: a(f's_memtime s[{76+2*st.index(p)}:{77+2*st.index(p)}] ;!')
    if bp != bk:
        fl = [x for i in range(bk) for x in ns[i] + vs[i]]; kw = max(i for i, x in enumerate(fl) if x.startswith('ds_write_b64'))
        ns[bk][0:1] = ['s_waitcnt lgkmcnt(%d)' % sum(x.startswith('ds_') for x in fl[kw+1:]), 's_barrier ;!']
    a('\n'.join(pre + zs + nx3 + [f'ds_read_b32 v{G4}, v0 offset:{L_PUB + 4*min(w, 2)}', 's_mov_b32 s66, -1']))
    if opt.get('prof'): a('s_memtime s[70:71]\ns_waitcnt lgkmcnt(0)\ns_mov_b32 s72, s49')
    if opt.get('drop') is not None: a('s_mov_b32 s49, 0\ns_mov_b32 s53, -1')
    if opt.get('prof'):
        for k in range(6): a(f's_mov_b32 s{90+k}, 0\ns_mov_b32 s{76+2*k}, s70')
    T = G4+1
    chk = f'v_max3_u32 v{T}, v{MA}, v{MA+1}, v{MA+2}\nv_max_u32 v{T}, v{MA+3}, v{T}\n{wra}\nv_cmp_lt_u32 vcc, s66, v{T}'
    a('s_waitcnt lgkmcnt(0)')
    if w < 3 and not mode and opt.get('rr', 0):
        a(f'v_mov_b64 {V(G4+2,2)}, -1')
        for sl in range(4): a(f's_mov_b32 s54, {WS_RING + sl*RSLOT}\nbuffer_store_dword{x2} {V(G4+2, 2 if w == 2 else 1)}, v{G4}, {WS}, s54 offen')
    def hclk(R=G4+1):
        if opt.get('hst') == 2 and w == 3:
            L = a.lab('HC'); k = opt.get('hk', 0)
            a(f's_memtime s[90:91]\ns_load_dwordx2 s[98:99], s[0:1], 128\ns_lshl_b32 s94, s3, 8\ns_or_b32 s94, s94, s36\ns_lshr_b32 s95, s94, {k}\ns_and_b32 s94, s94, {(1<<k)-1}\ns_lshl_b32 s94, s94, 8\ns_or_b32 s94, s94, s95\ns_cmp_lt_u32 s94, 16\ns_waitcnt lgkmcnt(0)\ns_cbranch_scc0 {L}\ns_lshl_b32 s94, s94, 2\ns_sub_u32 s90, s90, s68\nv_mov_b32 v{R+1}, s94\nv_mov_b32 v{R}, s90\nglobal_store_dword v{R+1}, v{R}, s[98:99] sc1\n{L}:')
    hclk()
    if opt.get('clk') and w == 3: a(f's_memrealtime s[92:93]\ns_lshl_b32 s94, s3, 10\ns_add_u32 s94, s94, 0x220000\ns_waitcnt lgkmcnt(0)\nv_mov_b32 v{G4+2}, s96\nv_mov_b32 v{G4+3}, s92\nbuffer_store_dwordx2 {V(G4+2,2)}, off, {WS}, s94')
    if opt.get('hst') == 3 and w == opt.get('hw', 0):
        R = G4+1
        a(f's_memtime s[90:91]\ns_load_dwordx2 s[98:99], s[0:1], 128\ns_lshl_b32 s94, s3, 1\ns_waitcnt lgkmcnt(0)\ns_sub_u32 s90, s90, s68\nv_mov_b32 v{R+1}, s94\nv_mov_b32 v{R}, s90\nglobal_store_short v{R+1}, v{R}, s[98:99] sc1')
    pa = opt.get('pa', 5); PAD = '' if pa is None else '\n.p2align 8' + '\ns_nop 0'*(pa[w] if isinstance(pa, tuple) else pa)
    a(f'''s_branch {P}STEP{PAD}
@loop {P}
{P}TOP:
{poll}
{BUD}
{P}TW:
@vmclear
s_waitcnt vmcnt({opt.get('depth', 1)}) lgkmcnt(0)
{chk}
s_cbranch_vccnz {P}TOP''')
    a('\n'.join(['s_cmp_eq_u32 s36, s36'] if ec is not None else ldb if lb is None or opt.get('lb2') else []) + f'\n{P}STEP:')
    stamp('top')
    for i, e in enumerate(l):
        if isinstance(e, str): a(DENSE[e])
        else:
            kind, idx = loc[e[0]]
            a(f'v_smfmac_f32_16x16x64_bf16 {V(e[2],4)}, {V(e[1],4)}, {X(idx if kind == "R" else e[3], 8)}, v2')
        if i != 1: stamp(i)
        a('\n'.join(x for x in ns[i] + vs[i] if not any(x.startswith(p) for p in opt.get('drop', []))))
        if i == 1: stamp(i)
    sel = f'ds_read_b128 {V(M8,4)}, v0 offset:{L_SEL}'
    al = opt.get('al', 'ack0'); d1 = opt.get('d1', (0, 0, 0)); xb = opt.get('xb', 'early')
    a(f'{cvt(W1+2, G1)}\n{cvt(W1+3, G1+2)}')
    if w == 1 and al == 'pre': a('\n'.join(nop(d1[1]) + rld))
    else: a('\n'.join(nop(opt.get('bd', 0))))
    a(('' if hold & 2 else stb) + f'\n{P}HOP:')
    stamp('hop')
    def reduce(beh, mid=()):
        bo = lambda d, x, y: f'v_bitop3_b32 v{d}, v{x}, v{y}, s65 bitop3:0x7e'
        T = G0; T2 = G1
        for i in range(4):
            a(f's_waitcnt vmcnt({3-i+beh + (len(mid) if i else 0)})')
            if i == 0:
                stamp('ld')
                if w == 1 and xb == 'bar': a(f's_barrier ;!\n{P}P1X:')
            o2 = (RB[i], M8) if w < 2 else (M8, RB[i])
            a(f'v_mfma_f32_16x16x32_bf16 {V(MB,4)}, {V(o2[0],4)}, {V(o2[1],4)}, ' + ('0' if i == 0 else V(MB,4)))
            if i == 0: a('\n'.join(mid) + '\n@vmclear')
            if i == 1: a(bo(T, RB[0], RB[1]))
            elif i == 3: a(bo(T2, RB[2], RB[3]))
        if w == 2 and mode:
            for i in range(4):
                for j in range(1, 4): a(f'v_bitop3_b32 v{T}, v{T}, v{RB[i]+j}, s65 bitop3:0xf6')
        a(f'v_bitop3_b32 v{T}, v{T}, v{T2}, 1 bitop3:0xa8\nv_cmp_lt_u32 vcc, s67, v{T}\ns_cbranch_vccnz {P}R1')
        if w < 2: a(f'v_permlane32_swap_b32 v{MB}, v{MB+2}\nv_permlane32_swap_b32 v{MB+1}, v{MB+3}\n' + '\n'.join(add2(MB) + [cvt(MB, MB)]))
        else: a('\n'.join([f'v_add_f32_dpp v{MB+i}, v{MB+i}, v{MB+i} row_ror:8 {DP}' for i in range(4)] + [cvt(MB, MB), cvt(MB+1, MB+2)]))
        a(f'buffer_store_dword{x2} {V(MB, 2 if w == 2 else 1)}, v{G4}, {WS}, s45 offen{sf}')
        stamp('p1')
    def endst(to):
        if spec: to = a.lab(P + 'SP')
        if st: a('s_memtime s[74:75] ;!')
        if st and 'tl' in opt:
            n_ = len(st)
            a(f's_waitcnt lgkmcnt(0)\ns_sub_u32 s88, s36, {opt["tl"]}\ns_cmp_lt_u32 s88, {20//n_}\ns_cbranch_scc0 {to}\ns_mul_i32 m0, s88, {n_}\ns_nop 0')
            for k in range(n_): a(f's_movreld_b32 s{16+k}, s{76+2*k}')
        elif st:
            a('s_waitcnt lgkmcnt(0)')
            for k in range(len(st)): a(f's_sub_u32 s88, s74, s{76+2*k}\ns_add_u32 s{90+k}, s{90+k}, s88\ns_mov_b32 s{76+2*k}, s74')
        if not spec: a(f's_branch {to}'); return
        a(f'{to}:\n@reset\n' + '\n'.join([poll]*(spec-2) + nop(opt.get('d3', 0)) + [x + ' ;!' for x in ldb]) + f'\n{BUD}')
        for i in range(spec): a(f'@vmclear\ns_waitcnt vmcnt({spec+1-i}) lgkmcnt(0)\n{chk}\ns_cbranch_vccz {P}STEP')
        a(f's_branch {P}TOP')
    xf = opt.get('xf', 0)
    pf = opt.get('pf', (4, 0, 0, 0))
    def plain(k=0):
        a('s_barrier ;!'); stamp('y')
        sp_ = nop(opt.get('sp', 0)); r = pre[k:]; h = len(r)//2; z0 = opt.get('z0', 8)
        a('\n'.join(nop(opt.get('d2', 0)) + zs[:z0] + [poll] + r[:h] + zs[z0:6+z0//2] + sp_ + ([poll] if opt.get('depth', 1) > 1 else []) + r[h:] + zs[6+z0//2:] + sp_))
    if w == 1:
        if fs is not None:
            a(f'{P}F1:\nv_cmp_ne_u32 vcc, s59, v{F+3} ;!\ns_cbranch_vccz {P}F2\n{fpoll}\ns_sub_u32 s49, s49, 1\ns_cselect_b32 s49, 0, s49\ns_waitcnt vmcnt(8)\ns_cbranch_scc0 {P}F1\n{P}F2:')
            stamp('f')
        if al[:3] == 'ack': a('s_waitcnt vmcnt(%s)' % (al[3:] or 2))
        if al != 'pre': a('\n'.join(nop(d1[1]) + pre[:pf[1]] + rld))
        if xf: a(XB)
        a(f'{sel}\n{BUD}\n@vmclear\n{P}P1:'); reduce(1 if al == 'pre' else len(hs)); plain(pf[1]); a(f'@end {P}'); endst(f'{P}TOP')
    elif w == 3:
        a('\n'.join(nx3))
        if g('x3'): a(f's_cmp_eq_u32 s36, 2\ns_cbranch_scc0 {P}X3\nv_lshlrev_b32 v{MB}, 3, v0\ns_add_u32 s54, s58, 0x180000\nbuffer_load_dword v{MB+1}, v{MB}, {WS}, s54 offen sc1 ;!\ns_add_u32 s54, s58, 0x182000\nbuffer_load_dword v{MB+1}, v{MB}, {WS}, s54 offen sc1 ;!\n@vmclear\n{P}X3:')
        hclk(MB+2)
        if opt.get('clk'): a(f's_memtime s[90:91]\ns_memrealtime s[92:93]\ns_lshl_b32 s94, s3, 7\ns_add_u32 s94, s94, s36\ns_lshl_b32 s94, s94, 3\ns_add_u32 s94, s94, 0x220000\ns_waitcnt lgkmcnt(0)\nv_mov_b32 v{G0}, s90\nv_mov_b32 v{G0+1}, s92\nbuffer_store_dwordx2 {V(G0,2)}, off, {WS}, s94')
        if xb == 'bar' or xf: a(XB)
        plain(); a(f'@end {P}'); endst(f'{P}TOP')
    elif xb == 'early':
        if w == 2: a(f's_cmp_lg_u32 s55, 0\ns_cbranch_scc1 {P}NQ')
        if hold: a(XB)
        a(f'{sel}\n{BUD}\ns_waitcnt vmcnt(%d)' % (63 if xf == 2 else 0 if w == 0 else opt.get('ah', 0)))
        if xf and not hold: a(XB)
        a('\n'.join(nop(d1[w]) + pre[:pf[w]] + rld + ['@vmclear', f'{P}P1:'])); reduce(0); plain(pf[w]); a(f'@end {P}'); endst(f'{P}TOP')
    else:
        if w == 2: a(f's_cmp_lg_u32 s55, 0\ns_cbranch_scc1 {P}NQ')
        if hold: a(XB)
        a('\n'.join([sel] + pre[pf[w]:] + [BUD]))
        if xb == 'ack': a('s_waitcnt vmcnt(%d)' % (0 if w == 0 else opt.get('ah', 0)))
        if (xb == 'bar' or xf) and not hold: a('s_barrier ;!')
        a('\n'.join(nop(d1[w]) + pre[:pf[w]] + rld + ['s_barrier ;!'])); stamp('y')
        a('\n'.join(nop(opt.get('d2', 0)) + [poll, '@vmclear', f'{P}P1:'])); reduce(1, [poll] if opt.get('depth', 1) > 1 else [])
        a('\n'.join(zs) + f'\n@end {P}'); endst(f'{P}TW')
    T = N[3]
    a(f'''@reset
{P}PB:
{ldb[0]} ;!
{ldb[1]} ;!
{BUD}
@vmclear
s_waitcnt vmcnt({opt.get('pbd', 0)})
''' + '\n'.join(chb) + f'''
{wrb}
s_cbranch_vccnz {P}PB
s_waitcnt lgkmcnt(0)
s_branch {P}B''')
    if kmf != ' sc1': a(f'@reset\n{P}KS:\ns_waitcnt lgkmcnt(0)\n{kst_} sc1\ns_branch {P}KR')
    if ec is not None: a(f'@reset\n{P}EC:\n{ldb[0]} ;!\n{ldb[1]} ;!\ns_branch {P}ER')
    if w < 3: a(f'@reset\n{P}R1:\n' + '\n'.join(rld) + f'\n{BUD}\ns_waitcnt vmcnt(0)\ns_branch {P}P1' + ('X' if w == 1 and xb == 'bar' else ''))
    if w == 2:
        a(f'@reset\n{P}NQ:')
        if xb == 'bar' or xf: a(XB)
        plain(); endst(f'{P}TOP')
    a(f'''@reset
{P}TAIL:
s_waitcnt lgkmcnt(0)
ds_read_b64_tr_b16 {V(G4,2)}, v6 offset:{L_K + w*512}
buffer_store_dwordx4 {V(G4,4)}, v0, {WS}, s48 offen sc1''')
    if not mode and opt.get('kmf', ' nt') != ' sc1':
        nb = 0
        for i in range(nb): a(f's_sub_u32 s{39+i}, s48, {0x20000*(i+1)}\nbuffer_load_dwordx4 {V(8+4*i,4)}, v0, {WS}, s{39+i} offen sc1')
        for i in range(nb): a(f'buffer_store_dwordx4 {V(8+4*i,4)}, v0, {WS}, s{39+i} offen sc1')
        if w == 3 and opt.get('wb', 1): a(f's_cmp_eq_u32 s3, 0\ns_cbranch_scc0 {P}NW\ns_waitcnt vmcnt(0)\nbuffer_wbl2 sc1\ns_waitcnt vmcnt(0)\n{P}NW:')
    if opt.get('hst') == 1: a(f's_mov_b32 s81, {mode+1}'); hstamps(a, 0, [(0,68),(13,82),(2,70),(3,78),(11,81)], w)
    elif opt.get('prof'):
        a(f'''s_memtime s[74:75]
s_waitcnt lgkmcnt(0)
s_sub_u32 s74, s74, s70
s_sub_u32 s70, s70, s68
s_sub_u32 s72, s72, s49
v_mov_b32 v8, s74
v_mov_b32 v9, s70
v_mov_b32 v10, s72
v_mov_b32 v11, {mode}
s_lshl_b32 s54, s3, 6
s_add_u32 s54, s54, {0x200000 + w*16}
buffer_store_dwordx4 v[8:11], off, {WS}, s54
s_add_u32 s54, s54, 0x1000
v_mov_b32 v12, s90
v_mov_b32 v13, s91
v_mov_b32 v14, s92
v_mov_b32 v15, s93
buffer_store_dwordx4 v[12:15], off, {WS}, s54''')
    if 'tl' in opt:
        a(f's_lshl_b32 s54, s3, 9\ns_add_u32 s54, s54, {0x210000 + w*128}')
        a(f'''s_memtime s[76:77]
s_memrealtime s[78:79]
s_mov_b32 s90, 0
s_mov_b32 s91, 0
s_mov_b32 s92, 0
s_waitcnt lgkmcnt(0)
{P}CAL:
s_memtime s[80:81]
s_memrealtime s[82:83]
s_waitcnt lgkmcnt(0)
s_sub_u32 s80, s80, s76
s_sub_u32 s82, s82, s78
s_add_u32 s90, s90, s80
s_add_u32 s91, s91, s82
s_add_u32 s92, s92, 1
s_cmp_lt_u32 s92, 256
s_cbranch_scc1 {P}CAL
v_mov_b32 v40, s76
v_mov_b32 v41, s78
v_mov_b32 v42, s90
v_mov_b32 v43, s91''')
        for k in range(20): a(f'v_mov_b32 v{20+k}, s{16+k}')
        for k in range(6): a(f'buffer_store_dwordx4 {V(20+4*k,4)}, off, {WS}, s54 offset:{16*k}')
    a('s_waitcnt vmcnt(0)\ns_endpgm')
    a(f'''@reset
{P}FB:
s_waitcnt vmcnt(0) lgkmcnt(0)
ds_write_b64 v6, {V(G4,2)} offset:{L_Q + w*512}
s_barrier''')
    for u in range(4): a(f'ds_read_b64 {V(X0+2*u,2)}, v6 offset:{L_Q + u*512}')
    t = G3
    a(f'''s_waitcnt lgkmcnt(0)
s_barrier
v_max3_f32 v{t}, v{X0}, v{X0+1}, v{X0+2}
v_max3_f32 v{t}, v{t}, v{X0+3}, v{X0+4}
v_max3_f32 v{t}, v{t}, v{X0+5}, v{X0+6}
v_max3_f32 v{t}, v{t}, v{X0+7}, v{M8}
v_max_f32 v{t}, v{t}, v{M8+1}
v_mov_b32 v{t+1}, v{t}
v_permlane16_swap_b32 v{t}, v{t+1}
v_max_f32 v{t}, v{t}, v{t+1}
v_mov_b32 v{t+1}, v{t}
v_permlane32_swap_b32 v{t}, v{t+1}
v_max_f32 v{t}, v{t}, v{t+1}''')
    rs = [X0+i for i in range(8)] + [M8, M8+1]
    for r in rs: a(f'v_sub_f32 v{r}, v{r}, v{t}')
    for r in rs: a(f'v_exp_f32_dpp v{r}, v{r} quad_perm:[0,1,0,1] {DP}')
    for u in range(4): a(cvt(N[0]+u, X0+2*u))
    a(cvt(MA, M8)); a(cvt(MA+3, M8))
    for e in ('zx', 'px0', 'px1', 'zm', 'pm0', 'pm1'): a(DENSE[e])
    a(f'v_rcp_f32 v{G3}, v{G3}\ns_mov_b64 vcc, 0\ns_nop 7\ns_branch {P}RJ')
    if w == 3:
        a(f'''@reset
{P}FL:
buffer_load_dword v7, off, {WS}, s57 sc1
s_cmp_lt_u32 s49, 1
s_waitcnt vmcnt(0)
s_cbranch_scc1 {P}FR
s_sub_u32 s49, s49, 1
v_readfirstlane_b32 s54, v7
s_lshr_b32 s54, s54, s60
s_and_b32 s54, s54, 0xff
s_cmp_gt_u32 s54, s61
s_cbranch_scc1 {P}FR
s_branch {P}FL''')

def gen(opt):
    out = []
    a = Asm(); a('REC:')
    if opt.get('hx'): a('s_xor_b32 s3, s3, %d' % opt['hx'])
    if opt.get('prof'): a('s_memtime s[68:69]')
    if opt.get('clk'): a('s_memrealtime s[96:97]')
    srds(a, [('ws',8),('dbg',12),('wq',SWQ),('wk',SWK),('wv',SWV),('wo',SWO),('mem0',SM0)])
    for w in range(1, 4): a(f's_cmp_eq_u32 s4, {w}\ns_cbranch_scc1 RECW{w}')
    out.append(a.text())
    for w in range(4):
        l, loc, n, us = plan(w, opt)
        a = Asm(); a.uid = 100*w; a(f'RECW{w}:'); init(a, w, loc, opt)
        if opt.get('mode') is None: a(f's_cmp_eq_u32 s64, 32\ns_cbranch_scc0 RECM{w}')
        elif opt['mode'] == 1: a(f's_branch RECM{w}')
        step(a, w, 0, l, loc, n, us, opt)
        a(f'@reset\nRECM{w}:'); step(a, w, 1, l, loc, n, us, opt)
        out.append(a.text())
        if opt.get('sim') == w:
            for t, x in a.sim(f'R{w}0TOP', f'R{w}0TAIL'): print(t, x)
    return '\n'.join(out)
```

```python
import sys, re
from common import *
import gen_rec
NAME = 'gated_mix__memory_aug_recurrent_mem_tr__ssm_conv_s4d__prompt_kernel'
def body(opt):
    roles = opt.get('roles', 'rac'); HS[0] = opt.get('hst', 0)
    a = Asm()
    a('''s_cmp_ge_u32 s2, 256
s_cbranch_scc1 KEND
v_lshrrev_b32 v1, 6, v0
s_and_b32 s5, s2, 7
v_readfirstlane_b32 s4, v1
s_lshr_b32 s3, s2, 3''')
    if opt.get('anyxcd'): a('s_lshr_b32 s5, s2, 5\ns_and_b32 s3, s2, 31')
    a('s_cmp_eq_u32 s5, 0\ns_cbranch_scc1 ' + ('REC' if 'r' in roles else 'KEND'))
    a('s_cmp_le_u32 s5, 4\ns_cbranch_scc1 ' + ('ATT' if 'a' in roles else 'KEND'))
    a('s_branch ' + ('CONV' if 'c' in roles else 'KEND'))
    a('KEND:\ns_endpgm')
    t = [a.text()]
    if 'a' in roles:
        import gen_att; t.append(gen_att.gen(opt))
    if 'c' in roles:
        import gen_conv; t.append(gen_conv.gen(opt))
    if 'r' in roles: t.append(gen_rec.gen(opt))
    t = '\n'.join(t)
    if 'r' in roles and opt.get('fx', 0):
        import align; pa = opt.get('pa', 5)
        for w in range(4):
            t, c, n = align.fix(t, f'R{w}0TOP', f'R{w}0TAIL', pa[w] if isinstance(pa, tuple) else pa, opt.get('pc', 0.1), opt.get('sc', 0.3), opt.get('v'))
            if opt.get('v'): print(w, c, n)
    return t.replace('s_memtime', 's_memrealtime').replace('s_memrealtime s[68:69]', 's_memrealtime s[68:69]\ns_memtime s[88:89]').replace('s_memrealtime s[78:79]', 's_memrealtime s[78:79]\ns_memtime s[82:83]') if HS[0] == 1 else t
def full(opt):
    ref = open('cdna_kernels/' + NAME[:-7] + '.s.ref').read()
    head = ref[:ref.index(NAME + ':')].replace('grid=(4608,1,1) block=(256,1,1) lds=0', 'grid=(256,1,1) block=(256,1,1) lds=163840')
    tail = ref[ref.index('.section .rodata'):].replace('next_free_vgpr 256', 'next_free_vgpr 512')
    b = body(opt)
    return head + NAME + ':\n' + b + '\ns_endpgm\n' + ''.join(f'.set LIT_{x}, {x}\n' for x in sorted(set(re.findall(r'LIT_(\d+)', b)))) + tail
if __name__ == '__main__':
    opt = eval(sys.argv[2]) if len(sys.argv) > 2 else {}
    open(sys.argv[1], 'w').write(full(opt))
```

```python
from common import *
import struct
def f2u(x): return struct.unpack('<I', struct.pack('<f', x))[0]
WS, DBG, SX = 's[8:11]', 's[12:15]', 's[28:31]'
AQ, AK, AV, XF = 16, 32, 48, 64
NS = 30; RING = 36864
def cvt(d, s): return f'v_cvt_pk_bf16_f32 v{d}, v{s}, v{s+1}'
def bases(a):
    a(f'''s_lshl_b32 s54, s7, 5
s_add_u32 s54, s54, s6
s_lshl_b32 s37, s54, 14
s_add_u32 s37, s37, {WS_KV}
s_lshl_b32 s38, s54, 13
s_add_u32 s38, s38, {WS_Q}
s_lshl_b32 s39, s54, 12
s_add_u32 s39, s39, {WS_KM + 32*4096}
s_lshl_b32 s40, s7, 1
s_and_b32 s55, s4, 1
s_add_u32 s40, s40, s55
s_lshl_b32 s40, s40, 5
s_add_u32 s40, s40, s6
s_lshl_b32 s40, s40, 12
s_lshr_b32 s55, s4, 1
s_lshl_b32 s55, s55, 11
s_add_u32 s40, s40, s55
s_add_u32 s40, s40, {WS_O}
s_mov_b32 s36, 0''')
def nxt(a): a('s_add_u32 s37, s37, 0x200000\ns_add_u32 s38, s38, 0x100000\ns_add_u32 s39, s39, 0x80000\ns_add_u32 s40, s40, 0x100000\ns_add_u32 s36, s36, 1')
def xdma(n): return [f's_add_u32 m0, s42, {n*2048}', f's_add_u32 s54, s41, {n*64}', f'buffer_load_dwordx4 v2, {SX}, s54 offen lds']
def gen(opt):
    a = Asm(); a.uid = 1000
    a('ATT:')
    if opt.get('prof'): a('s_memtime s[68:69]')
    srds(a, [('ws',8),('dbg',12),('wq',16),('wk',20),('wv',24),('x',28)])
    a('s_sub_u32 s54, s5, 1\ns_lshl_b32 s54, s54, 5\ns_add_u32 s57, s54, s3\ns_lshr_b32 s6, s57, 2\ns_and_b32 s7, s57, 3\ns_lshl_b32 s59, s6, 7\ns_add_u32 s59, s59, s7\ns_add_u32 s59, s59, %d' % WS_FLAG)
    lane(a, 8)
    expr(a, 2, 8, [(0,2,16)], 0, 9); expr(a, 3, 8, [(4,2,16)], 0, 9); a('v_xor_b32 v2, v2, v3'); expr(a, 2, 8, [(2,4,1152)], 'v2', 9)
    a('''s_and_b32 s54, s4, 1
s_lshr_b32 s55, s4, 1
s_mul_i32 s41, s54, 18432
s_mul_i32 s56, s55, 576
s_add_u32 s41, s41, s56
s_mul_i32 s56, s7, 36864
s_add_u32 s41, s41, s56
s_lshl_b32 s42, s54, 10
s_mul_i32 s56, s55, 18432
s_add_u32 s42, s42, s56''')
    for n in range(9): a('\n'.join(xdma(n)))
    a('s_add_u32 s41, s41, 147456\ns_xor_b32 s42, s42, 0x10000')
    a(f's_lshl_b32 s54, s6, 8\ns_lshl_b32 s55, s4, 6\ns_add_u32 s54, s54, s55\ns_mul_i32 s43, s4, {NS*1024}\ns_add_u32 s43, s43, {RING}')
    expr(a, 0, 8, [(2,4,8192),(0,2,16)], 's54', 9)
    expr(a, 1, 8, [(5,1,512),(2,2,64),(4,1,32),(0,2,8)], 's43', 9)
    order = [(m, ks) for m in (1, 2, 0) for ks in range(36)]
    wreg = lambda m, ks: 80 + 4*(36*m + ks)
    def wdma(i):
        m, ks = order[i]
        a(f's_add_u32 m0, s43, {(i%NS)*1024}\ns_mov_b32 s54, {ks*131072}\nbuffer_load_dwordx4 v0, s[{16+4*m}:{19+4*m}], s54 offen lds')
    def touch():
        a('s_lshl_b32 s54, s7, 2\ns_add_u32 s54, s54, s4\ns_add_u32 s54, s54, 2\ns_lshl_b32 s54, s54, 18\ns_lshl_b32 s55, s6, 8\ns_add_u32 s54, s54, s55')
        expr(a, 3, 8, [(0,1,128),(1,5,8192)], 0, 9)
        for m in opt.get('am', (2, 0)): a(f'buffer_load_dword v16, v3, s[{16+4*m}:{19+4*m}], s54 offen ;!')
    at = opt.get('at')
    for i in range(NS):
        if i == at: touch()
        wdma(i)
    if at == NS: touch()
    bases(a)
    expr(a, 3, 8, [(5,1,16)], 0, 9); expr(a, 4, 8, [(2,2,16)], 0, 9); a('v_xor_b32 v3, v3, v4'); expr(a, 3, 8, [(0,5,64)], 'v3', 9); a('v_xor_b32 v4, 32, v3')
    a('s_lshr_b32 s54, s4, 1\ns_and_b32 s55, s4, 1\ns_lshl_b32 s56, s54, 10\ns_lshl_b32 s58, s55, 7\ns_add_u32 s56, s56, s58')
    expr(a, 5, 8, [(0,1,16),(1,1,4096),(2,1,32),(3,1,8192),(4,1,64),(5,1,256)], 's56', 9)
    a('s_lshl_b32 s56, s54, 13\ns_lshl_b32 s58, s55, 10\ns_add_u32 s56, s56, s58\ns_add_u32 s56, s56, 2048')
    expr(a, 6, 8, [(0,3,16),(3,1,4096),(4,1,128),(5,1,256)], 's56', 9)
    a('v_lshlrev_b32 v7, 4, v8\ns_lshl_b32 s54, s4, 11\nv_add_u32 v10, s54, v7\ns_lshl_b32 s54, s4, 10\nv_add_u32 v11, s54, v7')
    a('v_mov_b64 v[12:13], -1\nv_mov_b64 v[14:15], -1')
    G = 6
    for i0 in range(0, 108, G):
        a(f's_waitcnt vmcnt({min(NS, 108-i0) - G})')
        for i in range(i0, i0+G):
            r = wreg(*order[i])
            for j in range(2): a(f'ds_read_b64_tr_b16 {X(r+2*j,2)}, v1 offset:{(i%NS)*1024 + 256*j}')
        a('s_waitcnt lgkmcnt(0)')
        for i in range(i0+NS, min(108, i0+NS+G)): wdma(i)
    a('s_barrier')
    if opt.get('prof'): a('s_memtime s[70:71]')
    xr = lambda ks: f'ds_read_b128 {V(XF+4*(ks%4),4)}, v{3+(ks&1)} offset:{(ks>>1)*2048}'
    a('@loop A1\nATT1:')
    for ks in range(3): a(xr(ks))
    for ks in range(36):
        x = V(XF+4*(ks%4), 4); c = lambda r: '0' if ks == 0 else V(r, 16)
        a(f'v_mfma_f32_32x32x16_bf16 {V(AK,16)}, {X(wreg(1,ks),4)}, {x}, {c(AK)}')
        if ks+3 < 36: a(xr(ks+3))
        if ks == 12: a(f's_waitcnt vmcnt(0)\ns_barrier ;!\nv_mov_b32 v9, s36\ns_cmp_eq_u32 s4, 0\ns_cbranch_scc0 ATTNF\nbuffer_store_byte v9, off, {WS}, s59 sc1\ns_cmp_eq_u32 s36, 1\ns_cbranch_scc0 ATTNF\nbuffer_store_byte v9, off, {DBG}, s57 sc1\nATTNF:')
        a(f'v_mfma_f32_32x32x16_bf16 {V(AV,16)}, {x}, {X(wreg(2,ks),4)}, {c(AV)}')
        if 13 <= ks < 22: a('\n'.join(xdma(ks-13)))
        a(f'v_mfma_f32_32x32x16_bf16 {V(AQ,16)}, {X(wreg(0,ks),4)}, {x}, {c(AQ)}')
    a('v_xor_b32 v3, 0x10000, v3\nv_xor_b32 v4, 0x10000, v4\ns_add_u32 s41, s41, 147456\ns_min_u32 s41, s41, 2341440\ns_xor_b32 s42, s42, 0x10000\ns_waitcnt vmcnt(0)\ns_barrier')
    a(f'buffer_store_dwordx4 v[12:15], v11, {WS}, s39 offen sc1\nbuffer_store_dwordx4 v[12:15], v7, {WS}, s40 offen sc1\nbuffer_store_dwordx4 v[12:15], v7, {WS}, s40 offen offset:1024 sc1')
    for r, ad, sb, st in ((AK, 5, 37, 512), (AV, 6, 37, 512), (AQ, 10, 38, 1024)):
        for U in range(2):
            for i in range(4): a(cvt(r+8*U+i, r+8*U+2*i))
            a(f'buffer_store_dwordx4 {V(r+8*U,4)}, v{ad}, {WS}, s{sb} offen offset:{U*st} sc1')
    nxt(a)
    a('s_cmp_lt_u32 s36, 16\ns_cbranch_scc1 ATT1\n@end A1')
    a(f's_waitcnt vmcnt(0)\ns_barrier\nv_mov_b32 v9, s36\ns_cmp_eq_u32 s4, 0\ns_cbranch_scc0 ATTNG\nbuffer_store_byte v9, off, {WS}, s59 sc1\nbuffer_store_byte v9, off, {DBG}, s57 sc1\nATTNG:')
    if opt.get('prof'): a('s_memtime s[72:73]')
    Q, K, Vv, KM, MK, S_, SM, P, Z, O, ONE = 16, 32, 64, 80, 96, 104, 112, 120, 128, 132, 148
    bases(a)
    a('s_and_b32 s54, s4, 1\ns_lshl_b32 s55, s54, 8\ns_lshl_b32 s54, s54, 4\ns_lshr_b32 s56, s4, 1\ns_lshl_b32 s56, s56, 13\ns_add_u32 s56, s56, 2048')
    expr(a, 0, 8, [(0,4,16),(4,2,512)], 's55', 9)
    expr(a, 1, 8, [(0,1,16),(1,1,4096),(2,1,32),(3,1,64),(4,2,256)], 0, 9); a('v_add_u32 v2, 0x2000, v1\nv_add_u32 v3, s56, v7\nv_add_u32 v4, 0x1000, v3\nv_add_u32 v5, 0x1000, v0')
    expr(a, 10, 8, [(0,4,1)], 's54', 9); expr(a, 11, 8, [(4,1,4),(5,1,16)], 0, 9); a(f'v_sub_u32 v10, v10, v11\nv_mov_b32 v11, {f2u(-1e30)}')
    for kt in range(2):
        for r in range(4): a(f'v_cmp_gt_i32 vcc, {8*kt+r}, v10\nv_cndmask_b32 v{MK+4*kt+r}, 0, v11, vcc')
    for i in range(4): a(f'v_mov_b32 v{ONE+i}, 0x3f803f80')
    a(f'v_mov_b32 v{P+5}, 0\nv_mov_b32 v{P+6}, 0\ns_mov_b32 s50, {f2u(128**-0.5 * 1.4426950408889634)}\ns_mov_b32 s49, 400000')
    a('@loop A2\nATT2:')
    for wa in range(4): a(f'buffer_load_dwordx4 {V(Q+4*wa,4)}, v{(0,5)[wa>>1]}, {WS}, s38 offen offset:{(wa&1)*2048} sc1')
    for kt in range(2):
        for wa in range(4): a(f'buffer_load_dwordx4 {V(K+16*kt+4*wa,4)}, v{1+kt}, {WS}, s37 offen offset:{(wa>>1)*1024 + (wa&1)*128} sc1')
    for w in range(2):
        for T in range(2): a(f'buffer_load_dwordx4 {V(Vv+8*w+4*T,4)}, v{3+w}, {WS}, s37 offen offset:{T*1024} sc1')
    for wa in range(4):
        for kt in range(2): a(f'v_mfma_f32_16x16x32_bf16 {V(S_+4*kt,4)}, {V(K+16*kt+4*wa,4)}, {V(Q+4*wa,4)}, {V((MK if wa == 0 else S_)+4*kt,4)}')
    a(f'v_max3_f32 v10, v{S_}, v{S_+1}, v{S_+2}\nv_max3_f32 v10, v10, v{S_+3}, v{S_+4}\nv_max3_f32 v10, v10, v{S_+5}, v{S_+6}\nv_max_f32 v10, v10, v{S_+7}\ns_waitcnt vmcnt(0)')
    if opt.get('lp', 3) & 1: a(f'''s_cmp_eq_u32 s4, 0
s_cbranch_scc0 ATT2B
s_cmp_ge_u32 s39, {WS_KM + 64*0x20000}
s_cselect_b32 s54, 0x20000, 0
s_sub_u32 s54, s39, s54
ATT2L:
buffer_load_dword v9, off, {WS}, s54 offset:{opt.get('lpo', 3072)} sc1
s_sub_u32 s49, s49, 1
s_cselect_b32 s49, 0, s49
s_cselect_b32 s66, -1, -2
v_cmp_lt_u32 vcc, s66, v9
s_cbranch_vccnz ATT2L
ATT2B:
s_barrier''')
    a('ATT2P:')
    for w in range(4): a(f'buffer_load_dwordx4 {V(KM+4*w,4)}, v7, {WS}, s39 offen offset:{w*1024} sc1')
    a(f'''s_sub_u32 s49, s49, 1
s_cselect_b32 s49, 0, s49
s_cselect_b32 s66, -1, -2
v_max3_u32 v9, v{KM}, v{KM+4}, v{KM+8}
v_max_u32 v9, v9, v{KM+12}
v_cmp_lt_u32 vcc, s66, v9
v_swap_b32 v{KM+2}, v{KM+4}
v_swap_b32 v{KM+3}, v{KM+5}
v_swap_b32 v{KM+10}, v{KM+12}
v_swap_b32 v{KM+11}, v{KM+13}
s_cbranch_vccnz ATT2P''')
    for wa in range(4): a(f'v_mfma_f32_16x16x32_bf16 {V(SM+4*(wa&1),4)}, {V(KM+8*(wa>>1),4)}, {V(Q+4*wa,4)}, ' + ('0' if wa < 2 else V(SM+4*(wa&1),4)))
    a(f's_cmp_lt_u32 s4, 2\ns_cbranch_scc1 ATT2E\nv_mov_b64 {V(KM+4,2)}, {V(KM+12,2)}\nv_mov_b64 {V(KM+6,2)}, {V(KM+14,2)}\nATT2E:')
    a(f'''v_add_f32 v{SM}, v{SM}, v{SM+6}
v_add_f32 v{SM+1}, v{SM+1}, v{SM+7}
v_max3_f32 v10, v10, v{SM}, v{SM+1}
v_mov_b32 v11, v10
v_permlane16_swap_b32 v10, v11
v_max_f32 v10, v10, v11
v_mov_b32 v11, v10
v_permlane32_swap_b32 v10, v11
v_max_f32 v10, v10, v11
v_mul_f32 v10, s50, v10''')
    for r in range(S_, S_+10): a(f'v_fma_f32 v{r}, v{r}, s50, -v10')
    for r in range(S_, S_+10): a(f'v_exp_f32 v{r}, v{r}')
    for i in range(4): a(cvt(P+i, S_+2*i))
    a(cvt(P+4, SM)); a(cvt(P+7, SM))
    a(f'v_mfma_f32_16x16x32_bf16 {V(Z,4)}, {V(ONE,4)}, {V(P,4)}, 0')
    for T in range(2):
        for w in range(2): a(f'v_mfma_f32_16x16x32_bf16 {V(O+8*T+4*w,4)}, {V(Vv+8*w+4*T,4)}, {V(P,4)}, 0')
        if T == 0: a(f'v_mfma_f32_16x16x16_bf16 {V(Z,4)}, {V(ONE,2)}, {V(P+4,2)}, {V(Z,4)}')
    for T in range(2):
        for w in range(2): a(f'v_mfma_f32_16x16x16_bf16 {V(O+8*T+4*w,4)}, {V(KM+4+2*w,2)}, {V(P+4+2*T,2)}, {V(O+8*T+4*w,4)}')
        if T == 0: a(f'v_rcp_f32 v{Z}, v{Z}')
    for T in range(2):
        for i in range(8): a(f'v_mul_f32 v{O+8*T+i}, v{O+8*T+i}, v{Z}')
        for i in range(4): a(cvt(O+8*T+i, O+8*T+2*i))
        a(f'buffer_store_dwordx4 {V(O+8*T,4)}, v7, {WS}, s40 offen offset:{T*1024} sc1')
    nxt(a)
    a('s_cmp_lt_u32 s36, 16\ns_cbranch_scc1 ATT2\n@end A2')
    if opt.get('hst') == 1: hstamps(a, 252, [(1,68),(14,82),(4,70),(5,72),(6,78)])
    elif opt.get('prof'):
        a(f'''s_memtime s[74:75]
s_waitcnt lgkmcnt(0)
s_sub_u32 s70, s70, s68
s_sub_u32 s72, s72, s68
s_sub_u32 s74, s74, s68
v_mov_b32 v12, s70
v_mov_b32 v13, s72
v_mov_b32 v14, s74
v_mov_b32 v15, s49
s_lshl_b32 s54, s57, 4
s_add_u32 s54, s54, 0x202000
buffer_store_dwordx4 v[12:15], off, {WS}, s54''')
    a('s_waitcnt vmcnt(0)\ns_endpgm')
    return a.text()
```

```python
from common import *
import struct
N = [8+4*i for i in range(6)]; MA, MB, M8, X0, X1, W0, W1 = 32, 36, 40, 44, 48, 52, 56
G0, G1, G2, G3, G4 = 60, 64, 68, 72, 76
PA, PB, PC = N[0], N[2], N[4]
L_Q, L_K, L_SEL, L_PUB, L_P, L_ONE, L_W = 8192, 10240, 12288, 13312, 14336, 15360, 16384
WREG = 36864
WS, DBG, SWQ, SWK, SWV, SWO, SM0 = 's[8:11]', 's[12:15]', 16, 20, 24, 28, 32
def f2u(x): return struct.unpack('<I', struct.pack('<f', x))[0]

def plan(w, opt):
    a_, b_ = w, 4+w; n = [c for c in range(8) if c not in (a_, b_)]
    us = [u for u in range(4) if u != w]
    Q = lambda T, c, A, buf=None: (('q', T, c), A, (G0, G1)[T], buf)
    K = lambda T, c, A, buf=None: (('k', T, c), A, (G2, G3)[T], buf)
    Vv = lambda T, c, A, buf=None: (('v', T, c), A, (W0, W1)[T], buf)
    acc = (G2, W0, W1, G1)
    O = lambda u, t, A, buf=None: (('o', u, t), A, acc[t], buf)
    s = {}
    sx, sm = opt.get('sx', 45), opt.get('sm', 55)
    st = {0: PA, 1: PB, 2: PC, 3: X0, 9: PC, 16: PC, 23: PC, 64: PC, 77: PC, 79: PA, 81: PB}
    for u in opt.get('xs', (11, 19, 27, 34, 41, 48, 54)): st[u] = X0
    l = []
    for c, A in ((a_, MA), (n[0], N[0]), (n[1], N[1]), (n[2], N[2])): l += [Q(0,c,A), Q(1,c,A), K(0,c,A), K(1,c,A), Vv(0,c,A), Vv(1,c,A)]
    B5 = [(b_, MB), (8, M8), (n[3], N[3]), (n[4], N[4]), (n[5], N[5])]
    l += [Q(T, *B5[i]) for T, i in ((0,0),(1,0),(0,1),(1,1),(0,2),(0,3),(0,4),(1,2),(1,3),(1,4))]
    l += [K(T, *B5[i]) for T in range(2) for i in range(5)]
    l += [Vv(T, *B5[i]) for T, i in ((0,0),(1,0),(0,1),(1,1),(0,2),(1,2),(0,3),(0,4),(1,3),(1,4))]
    l[sx:sx] = ['sx0', 'sx1']; l[sm:sm] = ['sm0', 'sm1']
    l += ['zx', 'px0', 'zm', 'px1', 'pm0', 'pm1'] if opt.get('zm', 60) == 60 else ['zx', 'px0', 'px1', 'zm', 'pm0', 'pm1']
    l += [O(w,t,M8) for t in range(4)]
    oa = (MA, MB, G3)
    for t in range(4):
        if t == 2: l += [(('h',0,0), X0, G0, None), (('h',1,0), X1, G0, None)]
        for k in range(3): l.append(O(us[k], t, oa[k]))
    for i, b in st.items(): l[i] = l[i][:3] + (b,)
    loc = {}; nl = nr = 0
    for e in l:
        if isinstance(e, str): continue
        if e[3] is not None: loc[e[0]] = ('L', nl); nl += 1
        else: loc[e[0]] = ('R', 80+8*nr); nr += 1
    assert nl == 18 and nr == 54, (nl, nr)
    return l, loc, n, us

def init(a, w, loc, opt):
    lane(a, 8)
    expr(a, 4, 8, [(5,1,64)], (w&1)*128, 9); expr(a, 1, 8, [(0,5,16)], 0, 9); a('v_xor_b32 v4, v4, v1')
    expr(a, 1, 8, [(5,1,1152)], (32*(w&1) + 4*(w>>1))*1152, 9); a('v_add_u32 v4, v4, v1')
    expr(a, 7, 8, [(4,1,32)], (w&1)*64, 9); expr(a, 1, 8, [(0,3,16)], 0, 9); a('v_xor_b32 v7, v7, v1')
    expr(a, 1, 8, [(3,1,1152),(4,1,8*1152),(5,1,64*1152)], (32*(w&1) + 4*(w>>1))*1152, 9); a('v_add_u32 v7, v7, v1')
    a('s_lshl_b32 s62, s3, 8\ns_mul_i32 s63, s3, %d' % (128*1152))
    groups = [('h',)] + [('o', u, tp) for u in range(4) for tp in range(2)] + [(x[0], int(c)) for x in opt.get('go', 'q01238 k0123 v0123 q4567 k45678 v45678').split() for c in x[1:]]
    if opt.get('il'): o_ = groups[3:9]; r_ = groups[9:]; groups = groups[:3] + [x for i in range(6) for x in r_[3*i:3*i+3] + [o_[i]]] + r_[18:]
    q = []
    def dma(gi):
        g = groups[gi]
        for p in range(4):
            a(f's_mov_b32 m0, {L_W + WREG*w + (5 + gi%4)*4096 + p*1024}')
            ro = 16*(p>>1) + 2*(p&1)
            if g[0] in 'qkv': off, sb, vr, srd = (64*g[1] + ro)*8192, 62, 0, {'q':SWQ,'k':SWK,'v':SWV}[g[0]]
            elif g[0] == 'o': off, sb, vr, srd = (64*(g[1]>>1) + 8*(g[1]&1) + ro)*1152 + 512*g[2], 63, 4, SWO
            else: off, sb, vr, srd = ro*1152 + 1024, 63, 7, SWO
            a(f's_add_u32 s54, s{sb}, {off}\nbuffer_load_dwordx4 v{vr}, s[{srd}:{srd+3}], s54 offen{opt.get("wf", "")} lds'); q.append(gi)
    ct = opt.get('ct', ())
    def ctouch():
        lane(a, 12)
        a(f's_mov_b32 m0, {L_K + w*512}\ns_getpc_b64 s[98:99]\nv_lshlrev_b32 v12, 6, v12\nv_mov_b32 v13, s99\nv_add_co_u32 v12, vcc, s98, v12\nv_addc_co_u32 v13, vcc, 0, v13, vcc\nglobal_load_lds_dword v[12:13], off ;!'); q.append(-1)
    if -1 in ct: ctouch()
    for gi in range(3): dma(gi)
    a('s_mul_i32 s54, s3, %d' % PHEAD)
    a(f's_add_u32 s37, s54, {WS_PART + w*2048}\ns_add_u32 s38, s54, {WS_PART + 8192 + 256*w}')
    for n in range(4): a(f's_mov_b32 s{39+n}, {WS_PART + n*8*PHEAD}')
    a(f's_mov_b32 s45, {WS_RING}\ns_mov_b32 s46, {WS_RING+0x8000}\ns_lshl_b32 s54, s3, 14\ns_add_u32 s47, s54, {WS_KV + w*4096}\ns_add_u32 s58, s54, {WS_KV}')
    a(f's_lshl_b32 s54, s3, 12\ns_add_u32 s48, s54, {WS_KM + w*1024}\ns_mov_b32 s49, 400000\ns_mov_b32 s36, 0')
    sc = f2u(128**-0.5 * 1.4426950408889634)
    a(f's_mov_b32 s50, {sc}\ns_mov_b32 s51, {sc}\ns_mov_b32 s52, {(127-48)<<23}\ns_mov_b32 s53, {112<<23}\ns_lshl_b32 s57, s3, 2')
    if w < 2: a(f's_lshr_b32 s59, s3, 3\ns_lshl_b32 s59, s59, 11\ns_add_u32 s59, s59, {1024 if w == 0 else 0}\ns_and_b32 s60, s3, 7')
    elif w == 2: a('s_mov_b32 s59, 8192\ns_lshr_b32 s60, s3, 2\ns_and_b32 s55, s3, 3')
    if w < 3:
        red_addr(a, w, 7, 8, 9)
        a('s_and_b32 s54, s60, 1\ns_lshl_b32 s54, s54, 8\ns_lshr_b32 s61, s60, 1\ns_lshl_b32 s61, s61, 6\ns_add_u32 s54, s54, s61\ns_lshr_b32 s61, s3, 3\ns_lshl_b32 s61, s61, 10\ns_add_u32 s54, s54, s61\ns_add_u32 s54, s54, %d' % (4096 if w == 0 else 0))
        expr(a, 10, 8, [(1,1,512),(2,1,32),(0,1,16),(4,1,8),(5,1,4),(3,1,1<<30)], 's54', 9)
        if w == 2:
            a('s_lshr_b32 s54, s60, 2\ns_lshl_b32 s54, s54, 5\ns_bfe_u32 s61, s60, 0x10001\ns_lshl_b32 s61, s61, 9\ns_add_u32 s54, s54, s61\ns_and_b32 s61, s60, 1\ns_lshl_b32 s61, s61, 7\ns_add_u32 s54, s54, s61\ns_add_u32 s54, s54, 8192')
            expr(a, 10, 8, [(0,1,8),(1,1,256),(2,1,64),(4,1,16),(3,1,1<<30),(5,1,1<<28)], 's54', 9)
            a('v_xor_b32 v10, 0x10000000, v10')
            a('s_lshl_b32 s54, s55, 29\nv_or_b32 v10, s54, v10')
        a('v_mov_b64 v[12:13], -1\nv_mov_b64 v[14:15], -1')
        for sl in range(1):
            for n in range(4):
                a(f's_mov_b32 s54, {WS_PART + sl*PSLOT + n*8*PHEAD}\nbuffer_store_dwordx4 v[12:15], v7, {WS}, s54 offen sc1')
        for sl in range(4): a(f's_mov_b32 s54, {WS_RING + sl*RSLOT}\nbuffer_store_dword{"x2 v[12:13]" if w == 2 else " v12"}, v10, {WS}, s54 offen sc1')
        a(f'v_lshlrev_b32 v11, 4, v8\nds_write_b32 v11, v10 offset:{L_PUB + 4*w}')
        if w == 1: a(f's_add_u32 s57, s57, {WS_FLAG + 0x2000}\ns_and_b32 s58, s3, 3\ns_lshl_b32 s58, s58, 8\ns_add_u32 s58, s58, {WS_FLAG + 0x2000}\nv_and_b32 v11, 0x300, v11\nbuffer_store_dword v12, v11, {WS}, s57 offen sc1')
    else:
        expr(a, 16, 8, [(0,2,2),(2,1,1)], 0, 9)
        a('v_and_b32 v9, 15, v8\nv_cmp_lt_u32 vcc, 7, v9\nv_cndmask_b32 v9, v9, v16, vcc\nv_mov_b32 v10, 0x3f80\nv_mov_b32 v11, 0x3f800000')
        for r in range(4):
            a(f'v_mov_b32 v{12+r}, 0\nv_cmp_eq_u32 vcc, {2*r}, v9\nv_cndmask_b32 v{12+r}, v{12+r}, v10, vcc\nv_cmp_eq_u32 vcc, {2*r+1}, v9\nv_cndmask_b32 v{12+r}, v{12+r}, v11, vcc')
        a(f'v_lshlrev_b32 v11, 4, v8\nds_write_b128 v11, v[12:15] offset:{L_SEL}')
        for r in range(4): a(f'v_mov_b32 v{16+r}, 0x3f803f80')
        a(f'ds_write_b128 v11, v[16:19] offset:{L_ONE}')
    expr(a, 0, 8, [(4,2,64)], (w&1)*16, 9); expr(a, 1, 8, [(0,4,16)], 0, 9); a('v_xor_b32 v0, v0, v1')
    expr(a, 1, 8, [(4,1,8192),(5,1,32*8192)], 4*w*8192, 9); a('v_add_u32 v0, v0, v1')
    base = [(4,2,WREG),(0,1,8)]
    expr(a, 2, 8, [(1,1,32)], (8*(w>>1) + (w&1))*16, 9); expr(a, 1, 8, [(4,1,16),(2,2,64)], 0, 9); a('v_xor_b32 v2, v2, v1')
    expr(a, 1, 8, base + [(2,2,256)], L_W, 9); a('v_add_u32 v2, v2, v1')
    expr(a, 3, 8, [(1,1,16)], 2*w*16, 9); expr(a, 1, 8, [(3,1,32),(4,1,64)], 0, 9); a('v_xor_b32 v3, v3, v1')
    expr(a, 1, 8, base + [(2,2,128)], L_W, 9); a('v_add_u32 v3, v3, v1')
    expr(a, 5, 8, [(1,1,16),(3,1,32)], 8*w*16, 9); expr(a, 1, 8, [(2,1,64),(4,1,128)], 0, 9); a('v_xor_b32 v5, v5, v1')
    expr(a, 1, 8, base + [(2,1,512)], L_W, 9); a('v_add_u32 v5, v5, v1\nv_xor_b32 v6, 64, v5')
    expr(a, 1, 8, [(0,6,16)], L_W + WREG*w, 9)
    g1 = opt.get('g1', 28); tn = 2 if opt.get('tm', 64) else 4
    ldd = f'buffer_load_dwordx4 v[8:11], off, {DBG}, s54 sc1 ;!\nbuffer_load_dwordx4 v[12:15], off, {DBG}, s54 offset:16 sc1 ;!'
    tch = f'buffer_load_dword v4, {WS}, s54 offen sc1 lds ;!'
    def flg(L):
        a('v_readfirstlane_b32 s54, v7')
        for b in range(4): a(f's_and_b32 s59, s54, {hex(0xff << 8*b)}\ns_cbranch_scc0 {L}')
        a(f's_mov_b32 s60, s58')
        if L[:3] == 'RFN': a(f'{L}:')
        for o in (0, 0x2000, 0x80000, 0x82000)[:tn]: a(f's_add_u32 s54, s60, {o}\n{tch}')
    q.extend([-1]*(8, 9, 8, 0)[w])
    for gi, g in enumerate(groups):
        a(f's_waitcnt vmcnt({q[::-1].index(gi)}) lgkmcnt(0)\ns_barrier')
        if gi == 3 and w == 0:
            a(f's_getreg_b32 s64, hwreg(HW_REG_XCC_ID,0,3)\ns_lshl_b32 s54, s64, 2\ns_add_u32 s54, s54, 128\nv_mov_b32 v8, 1\ns_mov_b64 exec, 1\nbuffer_atomic_add v8, off, {DBG}, s54 sc1\ns_mov_b64 exec, -1'); q.append(-1)
        if gi+3 < len(groups): dma(gi+3)
        if gi == 1: a('v_xor_b32 v3, 64, v2')
        if gi in ct and gi < g1: ctouch()
        if gi == 27:
            lane(a, 8)
            a('v_lshlrev_b32 v4, 7, v8'); expr(a, 5, 8, [(2,2,2304),(0,1,1152),(1,1,64),(4,2,16)], 0, 9)
            for d, ch in ((w*2048, w), (w*2048+1024, 4+w), (L_Q, 8)): a(f's_mov_b32 m0, {d}\ns_mov_b32 s54, {ch*128}\nbuffer_load_dwordx4 v5, s[{SM0}:{SM0+3}], s54 offen lds'); q.append(-1)
        if gi == g1:
            a(f's_mov_b32 s54, 128\n{ldd}'); q.extend([-1, -1])
            if w == 3: a(f'buffer_load_dword v5, off, {DBG}, s57 sc1 ;!'); q.append(-1)
        if gi == g1+4:
            L = a.lab('RSB'); E = a.lab('RSE'); C = a.lab('RSC')
            a(f'''s_branch {C}
{L}:
s_cmp_lt_u32 s49, 1
s_cbranch_scc1 {E}
s_sub_u32 s49, s49, 1
s_mov_b32 s54, 128
{ldd}
s_waitcnt vmcnt(0)
{C}:
@vmclear
v_add3_u32 v7, v8, v9, v10
v_add3_u32 v7, v7, v11, v12
v_add3_u32 v7, v7, v13, v14
v_add_u32 v7, v7, v15
v_cmp_gt_u32 vcc, 32, v7
s_cbranch_vccnz {L}
{E}:
v_max3_u32 v8, v8, v9, v10
v_max3_u32 v8, v8, v11, v12
v_max3_u32 v8, v8, v13, v14
v_max_u32 v8, v8, v15
v_readfirstlane_b32 s64, v8''')
            a(f's_mov_b32 m0, {L_K + w*512}')
            if ct: ctouch()
            if opt.get('pt', 1) == 2:
                a(f'v_mov_b64 v[8:9], -1\nv_mov_b64 v[10:11], -1\nv_lshrrev_b32 v12, 3, v4\nv_lshrrev_b32 v13, 5, v4\nbuffer_store_dwordx4 v[8:11], v12, {WS}, s37 offen\nbuffer_store_dwordx4 v[8:11], v12, {WS}, s37 offen offset:1024\nbuffer_store_dword v8, v13, {WS}, s38 offen'); q.extend([-1]*3)
            if opt.get('rt', 1) and w == 2: a(f'v_and_b32 v4, 0x780, v4\ns_lshl_b32 s54, s3, 11\ns_add_u32 s54, s54, {WS_RING}\n{tch}'); q.append(-1)
            if opt.get('pt', 1) == 1 and w < 2: a(f's_sub_u32 s54, s37, {1024*w}\n{tch}'); q.append(-1)
            if w == 3: a(f'v_mov_b32 v7, v5\ns_mov_b32 s60, {WS_RING}'); flg(a.lab('RFN')); q.extend([-1]*tn)
        for T in range(2):
            if g[0] in 'qkv': key, ad, ex = (g[0], T, g[1]), 2+T, 0
            elif g[0] == 'o': key, ad, ex = ('o', g[1], 2*g[2]+T), 5+T, 0
            else: key, ad, ex = ('h', T, 0), 3, 512*T
            kind, idx = loc[key]
            dst = idx if kind == 'R' else (8 if idx < 10 else 16 + 8*(idx-10))
            for p in range(4): a(f'ds_read_b64_tr_b16 {X(dst+2*p,2)}, v{ad} offset:{(5+gi%4)*4096 + p*1024 + ex}')
            if kind == 'L' and idx < 10:
                assert gi < 27
                a(f'ds_write_b128 v1, v[8:11] offset:{idx*2048}\nds_write_b128 v1, v[12:15] offset:{idx*2048+1024}')
    a('s_waitcnt lgkmcnt(0)\ns_barrier')
    for idx in range(10, 18):
        r = 16 + 8*(idx-10)
        a(f'ds_write_b128 v1, {V(r,4)} offset:{idx*2048}\nds_write_b128 v1, {V(r+4,4)} offset:{idx*2048+1024}')
    if w == 3:
        L = a.lab('RF'); E = a.lab('RFE')
        a(f'''s_cmp_eq_u32 s60, s58
s_cbranch_scc1 {E}
{L}:
s_cmp_lt_u32 s49, 1
s_cbranch_scc1 {E}
s_sub_u32 s49, s49, 1
buffer_load_dword v7, off, {DBG}, s57 sc1
s_waitcnt vmcnt(0)''')
        flg(L)
        a(f'{E}:\ns_lshl_b32 s57, s3, 7\ns_add_u32 s57, s57, {WS_FLAG}')
    lane(a, 8)
    a('v_lshlrev_b32 v0, 4, v8\nv_lshrrev_b32 v6, 4, v8\nv_xor_b32 v6, v6, v8\nv_lshlrev_b32 v6, 3, v6')
    for r, o in ((MA, w*2048), (MB, w*2048+1024), (M8, L_Q)): a(f'ds_read_b128 {V(r,4)}, v0 offset:{o}')
    expr(a, 2, 8, [(1,1,0xAAAA)], 0x4444, 9)
    expr(a, 4, 8, [(4,2,256),(2,2,32),(0,1,16)], 0, 9)
    expr(a, 3, 8, [(1,1,128)], 'v4', 9)
    expr(a, 5, 8, [(0,4,32),(4,2,8)], 0, 9); expr(a, 10, 8, [(2,2,8)], 0, 9); a('v_xor_b32 v5, v5, v10')
    if w < 3: red_addr(a, w, 7, 8, 9)

def red_addr(a, w, d, ln, tmp):
    a('s_lshl_b32 s54, s60, 7\ns_add_u32 s54, s54, s59')
    expr(a, d, ln, [(3,3,PHEAD),(0,3,16)], 's54', tmp)
    if w == 2: a(f's_lshl_b32 s54, s55, 29\nv_or_b32 v{d}, s54, v{d}')

def zero(b): return [f'v_mov_b64 {V(b,2)}, 0', f'v_mov_b64 {V(b+2,2)}, 0']
def ldw(buf, idx): return [f'ds_read_b128 {V(buf,4)}, v1 offset:{idx*2048}', f'ds_read_b128 {V(buf+4,4)}, v1 offset:{idx*2048+1024}']
def cvt(d, s): return f'v_cvt_pk_bf16_f32 v{d}, v{s}, v{s+1}'
def padd(b): return f'v_pk_add_f32 {V(b,2)}, {V(b,2)}, {V(b+2,2)}'
DP = 'row_mask:0xf bank_mask:0xf'
DENSE = {
 'sx0': f'v_mfma_f32_16x16x32_bf16 {V(G4,4)}, {V(MA,4)}, {V(G0,4)}, 0',
 'sx1': f'v_mfma_f32_16x16x32_bf16 {V(G4,4)}, {V(N[0],4)}, {V(G1,4)}, {V(G4,4)}',
 'sm0': f'v_mfma_f32_16x16x32_bf16 {V(M8,4)}, {V(G2,4)}, {V(G0,4)}, 0',
 'sm1': f'v_mfma_f32_16x16x32_bf16 {V(M8,4)}, {V(G3,4)}, {V(G1,4)}, {V(M8,4)}',
 'zx': f'v_mfma_f32_16x16x32_bf16 {V(G3,4)}, {V(MB,4)}, {V(N[0],4)}, 0',
 'zm': f'v_mfma_f32_16x16x16_bf16 {V(G3,4)}, {V(MB,2)}, {V(MA,2)}, {V(G3,4)}',
 'px0': f'v_mfma_f32_16x16x32_bf16 {V(X0,4)}, {V(N[1],4)}, {V(N[0],4)}, 0',
 'px1': f'v_mfma_f32_16x16x32_bf16 {V(X1,4)}, {V(N[2],4)}, {V(N[0],4)}, 0',
 'pm0': f'v_mfma_f32_16x16x16_bf16 {V(X0,4)}, {V(G4+2,2)}, {V(MA,2)}, {V(X0,4)}',
 'pm1': f'v_mfma_f32_16x16x16_bf16 {V(X1,4)}, {V(G4+2,2)}, {V(MA+2,2)}, {V(X1,4)}',
}
def step(a, w, mode, l, loc, n, us, opt):
    sf = ' sc1' if mode else ''
    P = f'R{w}{mode}'
    ns = {i: [] for i in range(len(l))}; vs = {i: [] for i in range(len(l))}
    def put(d, s0, lst, per=1):
        for i, x in enumerate(lst): d[s0 + i//per].append(x)
    lidx = {i: loc[e[0]][1] for i, e in enumerate(l) if not isinstance(e, str) and e[3] is not None}
    pos = lambda ch: (ch&3)*2048 + (ch>>2)*1024
    add2 = lambda b: [f'v_add_f32 v{b}, v{b}, v{b+2}', f'v_add_f32 v{b+1}, v{b+1}, v{b+3}']
    tag = lambda r: f'v_and_or_b32 v{r}, v{r}, -2, s65'
    rdc = lambda r, c: f'ds_read_b128 {V(r,4)}, v0 offset:{pos(c)}'
    x2 = "x2" if w == 2 else ""
    g = opt.get
    b1, bw, cw, b2, bq, bk, bp, sx, sm, zm = g('b1', 1), g('bw', 19), g('cw', 21), g('b2', 24), g('bq', 41), g('bk', 51), g('bp', 55), g('sx', 45), g('sm', 55), g('zm', 60)
    last = lambda key: max(i for i, e in enumerate(l) if not isinstance(e, str) and e[0][:len(key)] == key)
    ns[b1] += ['s_barrier', rdc(N[0], n[0])]; ns[b1+1] += [rdc(N[1], n[1]), rdc(N[2], n[2])]
    T = N[3]
    wrb = f'ds_write_b128 v0, {V(MB,4)} offset:{w*2048+1024}'
    chb = [f'v_max3_u32 v{T}, v{MB}, v{MB+1}, v{MB+2}', f'v_max3_u32 v{T}, v{MB+3}, v{M8}, v{T}', f'v_max3_u32 v{T+1}, v{M8+1}, v{M8+2}, v{M8+3}', f'v_max_u32 v{T}, v{T+1}, v{T}', f'v_cmp_lt_u32 vcc, s66, v{T}']
    for i, r, ad, of in ((6, MA, 3, 0), (12, N[0], 3, 1024), (18, N[1], 0, 2048), (24, N[2], 0, 3072)):
        ns[i].append(f'buffer_load_dwordx4 {V(r,4)}, v{ad}, {WS}, s47 offen offset:{of} sc1')
    ns[bw] += [wrb]; vs[bw] += chb[:1]; vs[cw] += chb[1:3]; vs[cw+1] += chb[3:]; vs[min(cw+2, 23)] += [f's_cbranch_vccnz {P}PB', f'{P}B:']
    ns[b2] += ['s_barrier', rdc(N[3], n[3])]; ns[max(b2+1, 24)] += [rdc(N[4], n[4]), rdc(N[5], n[5])]
    prev = {}
    for u in sorted(lidx):
        bf = l[u][3]
        if u > 3: put(ns, g('ls', {}).get(u, {64: 58, 77: 70, 79: 72, 81: 74}.get(u, prev[bf] + 1)), ldw(bf, lidx[u]))
        prev[bf] = u
    if w < 3:
        vs[3].append(f'v_mov_b64 {V(T,2)}, -1')
        ns[7].append(f'buffer_store_dword{x2} {V(T, 2 if w == 2 else 1)}, v{G4}, {WS}, s46 offen{sf}')
    ns[14].append(f'ds_read_b64_tr_b16 {V(G4,2)}, v6 offset:{L_K + w*512}')
    kst_ = f'buffer_store_dwordx4 {V(G4,4)}, v0, {WS}, s48 offen'; kmf = sf or opt.get('kmf', ' nt'); assert g('kk', 62) <= 62
    ns[g('kms', 30) + g('kst', 2)*w] += [kst_ + kmf] if kmf == ' sc1' else ['s_cmp_ge_u32 s36, %d' % g('kk', 62), f's_cbranch_scc1 {P}KS', kst_ + kmf, f'{P}KR:']
    ns[47] += ['s_add_u32 s48, s48, %d' % opt.get('kmi', 0x20000)]; ns[26] += ['s_add_u32 s47, s47, %d' % opt.get('kvi', 0x80000)]
    ns[27] += ['s_add_u32 s45, s45, 0x4000']; ns[31] += ['s_bitset0_b32 s45, 16', 's_add_u32 s44, s45, 8192']; ns[33] += [f's_add_u32 s43, s45, {w*1024}', f's_add_u32 s63, s45, {4096 + w*1024}']
    ns[38] += ['s_xor_b32 s46, s45, 0x8000', 's_and_b32 s65, s36, 1']
    tch = opt.get('touch', 1)
    if w == 3:
        vs[3].append('v_readfirstlane_b32 s54, v7 ;!'); vs[13].append(f'v_lshlrev_b32 v7, 3, v0 ;!')
        ns[6] += ['s_lshr_b32 s54, s54, s60']; ns[7] += ['s_and_b32 s54, s54, 0xff']
        ns[8] += ['s_cmp_gt_u32 s54, s61']; ns[9] += [f's_cbranch_scc0 {P}FL']*(1-opt.get('nofl', 0)) + [f'{P}FR:']
        ts = g('ts', 26)
        if tch: put(ns, ts, [f'buffer_load_dword v7, v7, {WS}, s59 offen sc1 ;!', f'buffer_load_dword v7, v7, {WS}, s62 offen sc1 ;!'])
        ns[ts+4] += [f'buffer_load_dword v7, off, {WS}, s57 sc1 ;!']
    qpost = lambda b, d: [f'v_mul_f32 v{b}, s50, v{b}', f'v_mul_f32 v{b+1}, s50, v{b+1}', f'v_fmac_f32 v{b}, s50, v{b+2}', f'v_fmac_f32 v{b+1}, s50, v{b+3}', cvt(d, b)]
    put(vs, 32, qpost(G0, G0), 2); put(vs, 35, qpost(G1, G0+1) + [f'ds_write_b64 v5, {V(G0,2)} offset:{L_Q + w*512}'], g('qp', 3))
    trq = [f'ds_read_b64_tr_b16 {V(G0+2*u,2)}, v6 offset:{L_Q + u*512}' for u in range(4)]
    ns[bq] = ['s_barrier'] + trq[:2] + ns[bq]; ns[bq+1] = trq[2:] + ns[bq+1]
    k0, k1 = last(('k', 0)), last(('k', 1))
    put(vs, k0+2, add2(G2) + [cvt(G2, G2)]); put(vs, k1+2, add2(G3) + [cvt(G2+1, G3), f'ds_write_b64 v5, {V(G2,2)} offset:{L_K + w*512}'], g('kp', 2))
    spost = lambda b: [f'v_add_f32_dpp v{b}, v{b+2}, v{b} quad_perm:[2,3,0,1] {DP}', f'v_add_f32_dpp v{b+1}, v{b+3}, v{b+1} quad_perm:[2,3,0,1] {DP}',
                       f'v_exp_f32_dpp v{b+2}, v{b} quad_perm:[0,1,0,1] {DP}', f'v_exp_f32_dpp v{b+3}, v{b+1} quad_perm:[0,1,0,1] {DP}']
    put(vs, sx+3, spost(G4) + [cvt(G4+2, G4+2), f'ds_write_b32 v0, v{G4+2} offset:{L_P + 4*w}'], 2)
    trk = [f'ds_read_b64_tr_b16 {V(G2+2*u,2)}, v6 offset:{L_K + u*512}' for u in range(4)]
    ns[bk] = ['s_barrier'] + trk[:2] + ns[bk]; ns[bk+1] = trk[2:] + ns[bk+1]
    put(vs, sx+6, [f'v_mov_b32 v{MA+1}, 0', f'v_mov_b32 v{MA+2}, 0'])
    ns[last(('v', 1, 4+w))+1].append(f'ds_read_b128 {V(MB,4)}, v0 offset:{L_ONE}')
    ns[bp] = ['s_barrier']*(bp != bk) + ns[bp] + [f'ds_read_b128 {V(N[0],4)}, v0 offset:{L_P}']
    put(vs, sm+g('mo', 2), spost(M8) + [cvt(MA, M8+2), cvt(MA+3, M8+2)], 2)
    ns[56].append('s_cmp_eq_u32 s36, 63')
    v0_, v1_ = last(('v', 0)), last(('v', 1))
    put(vs, v0_+g('vo', 2), add2(W0) + [cvt(G4+2, W0)], 2); put(vs, v1_+2, add2(W1) + [cvt(G4+3, W1)], 2)
    ns[61].append(f's_cbranch_scc1 {P}TAIL')
    vs[61] += zero(G2); vs[zm+2] += [f'v_rcp_f32 v{G3}, v{G3}', f'v_subrev_u32 v{G3+2}, s52, v{G3+2}']
    mul = [f'v_pk_mul_f32 {V(X0+2*i,2)}, {V(X0+2*i,2)}, {V(G3,2)} op_sel_hi:[1,0]' for i in range(4)]
    co = [cvt(M8+i, X0+2*i) for i in range(4)]
    if zm == 61: vs[62] += zero(W0)
    vs[63] += [f'v_cmp_le_u32 vcc, s53, v{G3+2}'] + zero(W0)*(zm == 60) + [f'{P}RJ:'] + mul[:2] + [f's_cbranch_vccnz {P}FB'] + co[:2] + mul[2:] + co[2:]
    vs[63] += [f'ds_write_b128 v4, {V(M8,4)} offset:{L_Q + (w>>1)*1024 + (w&1)*128}', 's_waitcnt lgkmcnt(1)']
    vs[64] += zero(W1); vs[65] += zero(G1); vs[66] += zero(G0)
    ro = [f'ds_read_b128 {V(r,4)}, v4 offset:{L_Q + (u>>1)*1024 + (u&1)*128}' for r, u in zip((MA, MB, G3), us)]
    ns[opt.get('bo', 66)] += ['s_barrier'] + ro
    put(ns, 68, [f'ds_read_b128 {V(X0+4*j,4)}, v3 offset:{L_Q + j*1024}' for j in range(2)])
    put(vs, 72, [cvt(G2, G2), cvt(G2+1, G2+2), tag(G2)]); vs[75] += [cvt(G2+2, W0), cvt(G2+3, W0+2)]
    (vs[75] if g('ast') is None else ns[76 + g('ast')*w]).append(f'buffer_store_dwordx4 {V(G2,4)}, v0, {WS}, s37 offen{sf}')
    put(vs, 77, add2(G0) + [cvt(M8+1, G0), tag(M8+1)]); vs[81] += [cvt(W1, W1), cvt(W1+1, W1+2), tag(W1)]
    vs[68].append(f'v_lshrrev_b32 v{M8}, 2, v0')
    hold = opt.get('hold', 0)
    sth = f'buffer_store_dword v{M8+1}, v{M8}, {WS}, s38 offen{sf}'; stb = f'buffer_store_dwordx4 {V(W1,4)}, v0, {WS}, s37 offen offset:1024{sf}'
    if not hold & 1: ns[81].append(sth)
    hs = [stb]*(hold>>1) + [sth]*(hold&1); XB = '\n'.join(['s_barrier ;!'] + hs)
    if w < 3: ns[76].append(f'ds_read_b32 v{G4}, v0 offset:{L_PUB + 4*w}')
    ns[77].append('s_add_u32 s36, s36, 1')
    nx3 = (['s_cmp_gt_u32 s36, %d' % (g('tm', 64)-1), 's_addc_u32 s59, s36, 1'] if g('tm', 64) else ['s_add_u32 s59, s36, 2']) + [ 's_min_u32 s59, s59, 63', 's_lshl_b32 s60, s59, 3', 's_lshr_b32 s61, s59, 2', 's_lshl_b32 s59, s59, 19', 's_add_u32 s59, s59, s58', 's_add_u32 s62, s59, 8192'] if w == 3 else []
    RB = [G0, G1, G2, G3]
    rld = [f'buffer_load_dwordx4 {V(RB[i],4)}, v7, {WS}, s{39+i} offen sc1 ;!' for i in range(4)]
    BUD = 's_sub_u32 s49, s49, 1\ns_cselect_b32 s49, 0, s49\ns_cselect_b32 s66, -1, -2\ns_cselect_b32 s67, 1, 0'
    pre = ldw(PA, lidx[0]) + ldw(PB, lidx[1]) + ldw(PC, lidx[2]) + ldw(X0, lidx[3])
    zs = zero(G0) + zero(G1) + zero(G2) + zero(G3) + zero(W0) + zero(W1)
    wra = f'ds_write_b128 v0, {V(MA,4)} offset:{w*2048}'
    poll = f'buffer_load_dwordx4 {V(MA,4)}, v0, {WS}, s43 offen sc1 ;!'
    ldb = [f'buffer_load_dwordx4 {V(MB,4)}, v0, {WS}, s63 offen sc1', f'buffer_load_dwordx4 {V(M8,4)}, v0, {WS}, s44 offen sc1']
    nop = lambda k: ['s_nop 3']*k
    lb = opt.get('lb')
    if lb is not None:
        ns[0].append('s_cmp_eq_u32 s36, 0'); ns[lb] += [f's_cbranch_scc1 {P}LB'] + ldb + [f'{P}LB:']
    fs = opt.get('fs'); F = N[3]
    fpoll = f'buffer_load_ushort v{F+3}, v{F+2}, {WS}, s58 offen sc1 ;!'
    if fs is not None and w == 1:
        ns[30] += ['s_add_u32 s59, s36, 1', 's_mul_i32 s60, s59, 0x10001']
        vs[67] += [f'v_lshrrev_b32 v{F+2}, 3, v0']; vs[64] += [f'v_mov_b32 v{F}, s60']; vs[65] += [f'v_and_b32 v{F+1}, 0x300, v0']
        ns[fs] += [f'buffer_store_dword v{F}, v{F+1}, {WS}, s57 offen{sf}']
        for i in opt.get('fp', (69, 72, 75, 78)): ns[i] += [fpoll]
    spec = opt.get('spec', 0); ec = opt.get('ec')
    if ec is not None:
        T = G4+1
        ns[ec] += [f's_cbranch_scc1 {P}EW', 's_waitcnt vmcnt(0)', f'{P}EW:']
        ns[bw].insert(0, 's_waitcnt vmcnt(%d)' % sum(x.startswith('buffer_') for i in range(ec+2, bw) for x in ns[i] + vs[i]))
        c_ = [f'v_max3_u32 v{T}, v{MB}, v{MB+1}, v{MB+2} ;!', f'v_max3_u32 v{T}, v{MB+3}, v{M8}, v{T} ;!', f'v_max3_u32 v{T}, v{M8+1}, v{M8+2}, v{T} ;!', f'v_max_u32 v{T}, v{M8+3}, v{T} ;!', f'v_cmp_lt_u32 vcc, s66, v{T}']
        vs[ec] += c_[:2]; vs[ec+1] += c_[2:] + [f's_cbranch_vccnz {P}EC', f'{P}ER:']
    st = opt.get('st', [])
    def stamp(p):
        if p in st: a(f's_memtime s[{76+2*st.index(p)}:{77+2*st.index(p)}] ;!')
    if bp != bk:
        fl = [x for i in range(bk) for x in ns[i] + vs[i]]; kw = max(i for i, x in enumerate(fl) if x.startswith('ds_write_b64'))
        ns[bk][0:1] = ['s_waitcnt lgkmcnt(%d)' % sum(x.startswith('ds_') for x in fl[kw+1:]), 's_barrier ;!']
    a('\n'.join(pre + zs + nx3 + [f'ds_read_b32 v{G4}, v0 offset:{L_PUB + 4*min(w, 2)}', 's_mov_b32 s66, -1']))
    if opt.get('prof'): a('s_memtime s[70:71]\ns_waitcnt lgkmcnt(0)\ns_mov_b32 s72, s49')
    if opt.get('drop') is not None: a('s_mov_b32 s49, 0\ns_mov_b32 s53, -1')
    if opt.get('prof'):
        for k in range(6): a(f's_mov_b32 s{90+k}, 0\ns_mov_b32 s{76+2*k}, s70')
    T = G4+1
    chk = f'v_max3_u32 v{T}, v{MA}, v{MA+1}, v{MA+2}\nv_max_u32 v{T}, v{MA+3}, v{T}\n{wra}\nv_cmp_lt_u32 vcc, s66, v{T}'
    a('s_waitcnt lgkmcnt(0)')
    if w < 3 and not mode and opt.get('rr', 0):
        a(f'v_mov_b64 {V(G4+2,2)}, -1')
        for sl in range(4): a(f's_mov_b32 s54, {WS_RING + sl*RSLOT}\nbuffer_store_dword{x2} {V(G4+2, 2 if w == 2 else 1)}, v{G4}, {WS}, s54 offen')
    def hclk(R=G4+1):
        if opt.get('hst') == 2 and w == 3:
            L = a.lab('HC'); k = opt.get('hk', 0)
            a(f's_memtime s[90:91]\ns_load_dwordx2 s[98:99], s[0:1], 128\ns_lshl_b32 s94, s3, 8\ns_or_b32 s94, s94, s36\ns_lshr_b32 s95, s94, {k}\ns_and_b32 s94, s94, {(1<<k)-1}\ns_lshl_b32 s94, s94, 8\ns_or_b32 s94, s94, s95\ns_cmp_lt_u32 s94, 16\ns_waitcnt lgkmcnt(0)\ns_cbranch_scc0 {L}\ns_lshl_b32 s94, s94, 2\ns_sub_u32 s90, s90, s68\nv_mov_b32 v{R+1}, s94\nv_mov_b32 v{R}, s90\nglobal_store_dword v{R+1}, v{R}, s[98:99] sc1\n{L}:')
    hclk()
    if opt.get('clk') and w == 3: a(f's_memrealtime s[92:93]\ns_lshl_b32 s94, s3, 10\ns_add_u32 s94, s94, 0x220000\ns_waitcnt lgkmcnt(0)\nv_mov_b32 v{G4+2}, s96\nv_mov_b32 v{G4+3}, s92\nbuffer_store_dwordx2 {V(G4+2,2)}, off, {WS}, s94')
    if opt.get('hst') == 3 and w == opt.get('hw', 0):
        R = G4+1
        a(f's_memtime s[90:91]\ns_load_dwordx2 s[98:99], s[0:1], 128\ns_lshl_b32 s94, s3, 1\ns_waitcnt lgkmcnt(0)\ns_sub_u32 s90, s90, s68\nv_mov_b32 v{R+1}, s94\nv_mov_b32 v{R}, s90\nglobal_store_short v{R+1}, v{R}, s[98:99] sc1')
    pa = opt.get('pa', 5); PAD = '' if pa is None else '\n.p2align 8' + '\ns_nop 0'*(pa[w] if isinstance(pa, tuple) else pa)
    a(f'''s_branch {P}STEP{PAD}
@loop {P}
{P}TOP:
{poll}
{BUD}
{P}TW:
@vmclear
s_waitcnt vmcnt({opt.get('depth', 1)}) lgkmcnt(0)
{chk}
s_cbranch_vccnz {P}TOP''')
    a('\n'.join(['s_cmp_eq_u32 s36, s36'] if ec is not None else ldb if lb is None or opt.get('lb2') else []) + f'\n{P}STEP:')
    stamp('top')
    for i, e in enumerate(l):
        if isinstance(e, str): a(DENSE[e])
        else:
            kind, idx = loc[e[0]]
            a(f'v_smfmac_f32_16x16x64_bf16 {V(e[2],4)}, {V(e[1],4)}, {X(idx if kind == "R" else e[3], 8)}, v2')
        if i != 1: stamp(i)
        a('\n'.join(x for x in ns[i] + vs[i] if not any(x.startswith(p) for p in opt.get('drop', []))))
        if i == 1: stamp(i)
    sel = f'ds_read_b128 {V(M8,4)}, v0 offset:{L_SEL}'
    al = opt.get('al', 'ack0'); d1 = opt.get('d1', (0, 0, 0)); xb = opt.get('xb', 'early')
    a(f'{cvt(W1+2, G1)}\n{cvt(W1+3, G1+2)}')
    if w == 1 and al == 'pre': a('\n'.join(nop(d1[1]) + rld))
    else: a('\n'.join(nop(opt.get('bd', 0))))
    a(('' if hold & 2 else stb) + f'\n{P}HOP:')
    stamp('hop')
    def reduce(beh, mid=()):
        bo = lambda d, x, y: f'v_bitop3_b32 v{d}, v{x}, v{y}, s65 bitop3:0x7e'
        T = G0; T2 = G1
        for i in range(4):
            a(f's_waitcnt vmcnt({3-i+beh + (len(mid) if i else 0)})')
            if i == 0:
                stamp('ld')
                if w == 1 and xb == 'bar': a(f's_barrier ;!\n{P}P1X:')
            o2 = (RB[i], M8) if w < 2 else (M8, RB[i])
            a(f'v_mfma_f32_16x16x32_bf16 {V(MB,4)}, {V(o2[0],4)}, {V(o2[1],4)}, ' + ('0' if i == 0 else V(MB,4)))
            if i == 0: a('\n'.join(mid) + '\n@vmclear')
            if i == 1: a(bo(T, RB[0], RB[1]))
            elif i == 3: a(bo(T2, RB[2], RB[3]))
        if w == 2 and mode:
            for i in range(4):
                for j in range(1, 4): a(f'v_bitop3_b32 v{T}, v{T}, v{RB[i]+j}, s65 bitop3:0xf6')
        a(f'v_bitop3_b32 v{T}, v{T}, v{T2}, 1 bitop3:0xa8\nv_cmp_lt_u32 vcc, s67, v{T}\ns_cbranch_vccnz {P}R1')
        if w < 2: a(f'v_permlane32_swap_b32 v{MB}, v{MB+2}\nv_permlane32_swap_b32 v{MB+1}, v{MB+3}\n' + '\n'.join(add2(MB) + [cvt(MB, MB)]))
        else: a('\n'.join([f'v_add_f32_dpp v{MB+i}, v{MB+i}, v{MB+i} row_ror:8 {DP}' for i in range(4)] + [cvt(MB, MB), cvt(MB+1, MB+2)]))
        a(f'buffer_store_dword{x2} {V(MB, 2 if w == 2 else 1)}, v{G4}, {WS}, s45 offen{sf}')
        stamp('p1')
    def endst(to):
        if spec: to = a.lab(P + 'SP')
        if st: a('s_memtime s[74:75] ;!')
        if st and 'tl' in opt:
            n_ = len(st)
            a(f's_waitcnt lgkmcnt(0)\ns_sub_u32 s88, s36, {opt["tl"]}\ns_cmp_lt_u32 s88, {20//n_}\ns_cbranch_scc0 {to}\ns_mul_i32 m0, s88, {n_}\ns_nop 0')
            for k in range(n_): a(f's_movreld_b32 s{16+k}, s{76+2*k}')
        elif st:
            a('s_waitcnt lgkmcnt(0)')
            for k in range(len(st)): a(f's_sub_u32 s88, s74, s{76+2*k}\ns_add_u32 s{90+k}, s{90+k}, s88\ns_mov_b32 s{76+2*k}, s74')
        if not spec: a(f's_branch {to}'); return
        a(f'{to}:\n@reset\n' + '\n'.join([poll]*(spec-2) + nop(opt.get('d3', 0)) + [x + ' ;!' for x in ldb]) + f'\n{BUD}')
        for i in range(spec): a(f'@vmclear\ns_waitcnt vmcnt({spec+1-i}) lgkmcnt(0)\n{chk}\ns_cbranch_vccz {P}STEP')
        a(f's_branch {P}TOP')
    xf = opt.get('xf', 0)
    pf = opt.get('pf', (4, 0, 0, 0))
    def plain(k=0):
        a('s_barrier ;!'); stamp('y')
        sp_ = nop(opt.get('sp', 0)); r = pre[k:]; h = len(r)//2; z0 = opt.get('z0', 8)
        a('\n'.join(nop(opt.get('d2', 0)) + zs[:z0] + [poll] + r[:h] + zs[z0:6+z0//2] + sp_ + ([poll] if opt.get('depth', 1) > 1 else []) + r[h:] + zs[6+z0//2:] + sp_))
    if w == 1:
        if fs is not None:
            a(f'{P}F1:\nv_cmp_ne_u32 vcc, s59, v{F+3} ;!\ns_cbranch_vccz {P}F2\n{fpoll}\ns_sub_u32 s49, s49, 1\ns_cselect_b32 s49, 0, s49\ns_waitcnt vmcnt(8)\ns_cbranch_scc0 {P}F1\n{P}F2:')
            stamp('f')
        if al[:3] == 'ack': a('s_waitcnt vmcnt(%s)' % (al[3:] or 2))
        if al != 'pre': a('\n'.join(nop(d1[1]) + pre[:pf[1]] + rld))
        if xf: a(XB)
        a(f'{sel}\n{BUD}\n@vmclear\n{P}P1:'); reduce(1 if al == 'pre' else len(hs)); plain(pf[1]); a(f'@end {P}'); endst(f'{P}TOP')
    elif w == 3:
        a('\n'.join(nx3))
        if g('x3'): a(f's_cmp_eq_u32 s36, 2\ns_cbranch_scc0 {P}X3\nv_lshlrev_b32 v{MB}, 3, v0\ns_add_u32 s54, s58, 0x180000\nbuffer_load_dword v{MB+1}, v{MB}, {WS}, s54 offen sc1 ;!\ns_add_u32 s54, s58, 0x182000\nbuffer_load_dword v{MB+1}, v{MB}, {WS}, s54 offen sc1 ;!\n@vmclear\n{P}X3:')
        hclk(MB+2)
        if opt.get('clk'): a(f's_memtime s[90:91]\ns_memrealtime s[92:93]\ns_lshl_b32 s94, s3, 7\ns_add_u32 s94, s94, s36\ns_lshl_b32 s94, s94, 3\ns_add_u32 s94, s94, 0x220000\ns_waitcnt lgkmcnt(0)\nv_mov_b32 v{G0}, s90\nv_mov_b32 v{G0+1}, s92\nbuffer_store_dwordx2 {V(G0,2)}, off, {WS}, s94')
        if xb == 'bar' or xf: a(XB)
        plain(); a(f'@end {P}'); endst(f'{P}TOP')
    elif xb == 'early':
        if w == 2: a(f's_cmp_lg_u32 s55, 0\ns_cbranch_scc1 {P}NQ')
        if hold: a(XB)
        a(f'{sel}\n{BUD}\ns_waitcnt vmcnt(%d)' % (63 if xf == 2 else 0 if w == 0 else opt.get('ah', 0)))
        if xf and not hold: a(XB)
        a('\n'.join(nop(d1[w]) + pre[:pf[w]] + rld + ['@vmclear', f'{P}P1:'])); reduce(0); plain(pf[w]); a(f'@end {P}'); endst(f'{P}TOP')
    else:
        if w == 2: a(f's_cmp_lg_u32 s55, 0\ns_cbranch_scc1 {P}NQ')
        if hold: a(XB)
        a('\n'.join([sel] + pre[pf[w]:] + [BUD]))
        if xb == 'ack': a('s_waitcnt vmcnt(%d)' % (0 if w == 0 else opt.get('ah', 0)))
        if (xb == 'bar' or xf) and not hold: a('s_barrier ;!')
        a('\n'.join(nop(d1[w]) + pre[:pf[w]] + rld + ['s_barrier ;!'])); stamp('y')
        a('\n'.join(nop(opt.get('d2', 0)) + [poll, '@vmclear', f'{P}P1:'])); reduce(1, [poll] if opt.get('depth', 1) > 1 else [])
        a('\n'.join(zs) + f'\n@end {P}'); endst(f'{P}TW')
    T = N[3]
    a(f'''@reset
{P}PB:
{ldb[0]} ;!
{ldb[1]} ;!
{BUD}
@vmclear
s_waitcnt vmcnt({opt.get('pbd', 0)})
''' + '\n'.join(chb) + f'''
{wrb}
s_cbranch_vccnz {P}PB
s_waitcnt lgkmcnt(0)
s_branch {P}B''')
    if kmf != ' sc1': a(f'@reset\n{P}KS:\ns_waitcnt lgkmcnt(0)\n{kst_} sc1\ns_branch {P}KR')
    if ec is not None: a(f'@reset\n{P}EC:\n{ldb[0]} ;!\n{ldb[1]} ;!\ns_branch {P}ER')
    if w < 3: a(f'@reset\n{P}R1:\n' + '\n'.join(rld) + f'\n{BUD}\ns_waitcnt vmcnt(0)\ns_branch {P}P1' + ('X' if w == 1 and xb == 'bar' else ''))
    if w == 2:
        a(f'@reset\n{P}NQ:')
        if xb == 'bar' or xf: a(XB)
        plain(); endst(f'{P}TOP')
    a(f'''@reset
{P}TAIL:
s_waitcnt lgkmcnt(0)
ds_read_b64_tr_b16 {V(G4,2)}, v6 offset:{L_K + w*512}
buffer_store_dwordx4 {V(G4,4)}, v0, {WS}, s48 offen sc1''')
    if not mode and opt.get('kmf', ' nt') != ' sc1':
        nb = 0
        for i in range(nb): a(f's_sub_u32 s{39+i}, s48, {0x20000*(i+1)}\nbuffer_load_dwordx4 {V(8+4*i,4)}, v0, {WS}, s{39+i} offen sc1')
        for i in range(nb): a(f'buffer_store_dwordx4 {V(8+4*i,4)}, v0, {WS}, s{39+i} offen sc1')
        if w == 3 and opt.get('wb', 1): a(f's_cmp_eq_u32 s3, 0\ns_cbranch_scc0 {P}NW\ns_waitcnt vmcnt(0)\nbuffer_wbl2 sc1\ns_waitcnt vmcnt(0)\n{P}NW:')
    if opt.get('hst') == 1: a(f's_mov_b32 s81, {mode+1}'); hstamps(a, 0, [(0,68),(13,82),(2,70),(3,78),(11,81)], w)
    elif opt.get('prof'):
        a(f'''s_memtime s[74:75]
s_waitcnt lgkmcnt(0)
s_sub_u32 s74, s74, s70
s_sub_u32 s70, s70, s68
s_sub_u32 s72, s72, s49
v_mov_b32 v8, s74
v_mov_b32 v9, s70
v_mov_b32 v10, s72
v_mov_b32 v11, {mode}
s_lshl_b32 s54, s3, 6
s_add_u32 s54, s54, {0x200000 + w*16}
buffer_store_dwordx4 v[8:11], off, {WS}, s54
s_add_u32 s54, s54, 0x1000
v_mov_b32 v12, s90
v_mov_b32 v13, s91
v_mov_b32 v14, s92
v_mov_b32 v15, s93
buffer_store_dwordx4 v[12:15], off, {WS}, s54''')
    if 'tl' in opt:
        a(f's_lshl_b32 s54, s3, 9\ns_add_u32 s54, s54, {0x210000 + w*128}')
        a(f'''s_memtime s[76:77]
s_memrealtime s[78:79]
s_mov_b32 s90, 0
s_mov_b32 s91, 0
s_mov_b32 s92, 0
s_waitcnt lgkmcnt(0)
{P}CAL:
s_memtime s[80:81]
s_memrealtime s[82:83]
s_waitcnt lgkmcnt(0)
s_sub_u32 s80, s80, s76
s_sub_u32 s82, s82, s78
s_add_u32 s90, s90, s80
s_add_u32 s91, s91, s82
s_add_u32 s92, s92, 1
s_cmp_lt_u32 s92, 256
s_cbranch_scc1 {P}CAL
v_mov_b32 v40, s76
v_mov_b32 v41, s78
v_mov_b32 v42, s90
v_mov_b32 v43, s91''')
        for k in range(20): a(f'v_mov_b32 v{20+k}, s{16+k}')
        for k in range(6): a(f'buffer_store_dwordx4 {V(20+4*k,4)}, off, {WS}, s54 offset:{16*k}')
    a('s_waitcnt vmcnt(0)\ns_endpgm')
    a(f'''@reset
{P}FB:
s_waitcnt vmcnt(0) lgkmcnt(0)
ds_write_b64 v6, {V(G4,2)} offset:{L_Q + w*512}
s_barrier''')
    for u in range(4): a(f'ds_read_b64 {V(X0+2*u,2)}, v6 offset:{L_Q + u*512}')
    t = G3
    a(f'''s_waitcnt lgkmcnt(0)
s_barrier
v_max3_f32 v{t}, v{X0}, v{X0+1}, v{X0+2}
v_max3_f32 v{t}, v{t}, v{X0+3}, v{X0+4}
v_max3_f32 v{t}, v{t}, v{X0+5}, v{X0+6}
v_max3_f32 v{t}, v{t}, v{X0+7}, v{M8}
v_max_f32 v{t}, v{t}, v{M8+1}
v_mov_b32 v{t+1}, v{t}
v_permlane16_swap_b32 v{t}, v{t+1}
v_max_f32 v{t}, v{t}, v{t+1}
v_mov_b32 v{t+1}, v{t}
v_permlane32_swap_b32 v{t}, v{t+1}
v_max_f32 v{t}, v{t}, v{t+1}''')
    rs = [X0+i for i in range(8)] + [M8, M8+1]
    for r in rs: a(f'v_sub_f32 v{r}, v{r}, v{t}')
    for r in rs: a(f'v_exp_f32_dpp v{r}, v{r} quad_perm:[0,1,0,1] {DP}')
    for u in range(4): a(cvt(N[0]+u, X0+2*u))
    a(cvt(MA, M8)); a(cvt(MA+3, M8))
    for e in ('zx', 'px0', 'px1', 'zm', 'pm0', 'pm1'): a(DENSE[e])
    a(f'v_rcp_f32 v{G3}, v{G3}\ns_mov_b64 vcc, 0\ns_nop 7\ns_branch {P}RJ')
    if w == 3:
        a(f'''@reset
{P}FL:
buffer_load_dword v7, off, {WS}, s57 sc1
s_cmp_lt_u32 s49, 1
s_waitcnt vmcnt(0)
s_cbranch_scc1 {P}FR
s_sub_u32 s49, s49, 1
v_readfirstlane_b32 s54, v7
s_lshr_b32 s54, s54, s60
s_and_b32 s54, s54, 0xff
s_cmp_gt_u32 s54, s61
s_cbranch_scc1 {P}FR
s_branch {P}FL''')

def gen(opt):
    out = []
    a = Asm(); a('REC:')
    if opt.get('hx'): a('s_xor_b32 s3, s3, %d' % opt['hx'])
    if opt.get('prof'): a('s_memtime s[68:69]')
    if opt.get('clk'): a('s_memrealtime s[96:97]')
    srds(a, [('ws',8),('dbg',12),('wq',SWQ),('wk',SWK),('wv',SWV),('wo',SWO),('mem0',SM0)])
    for w in range(1, 4): a(f's_cmp_eq_u32 s4, {w}\ns_cbranch_scc1 RECW{w}')
    out.append(a.text())
    for w in range(4):
        l, loc, n, us = plan(w, opt)
        a = Asm(); a.uid = 100*w; a(f'RECW{w}:'); init(a, w, loc, opt)
        if opt.get('mode') is None: a(f's_cmp_eq_u32 s64, 32\ns_cbranch_scc0 RECM{w}')
        elif opt['mode'] == 1: a(f's_branch RECM{w}')
        step(a, w, 0, l, loc, n, us, opt)
        a(f'@reset\nRECM{w}:'); step(a, w, 1, l, loc, n, us, opt)
        out.append(a.text())
        if opt.get('sim') == w:
            for t, x in a.sim(f'R{w}0TOP', f'R{w}0TAIL'): print(t, x)
    return '\n'.join(out)
```
